```python
import torch

def _softmax(x, axis=-1):
    return torch.softmax(x, dim=axis)

def _gelu(x):
    return torch.nn.functional.gelu(x, approximate='tanh')

def _silu(x):
    return torch.nn.functional.silu(x)

def _sigmoid(x):
    return torch.sigmoid(x)

def _layernorm(x, axis=-1, eps=1e-05):
    m = x.mean(dim=axis, keepdim=True)
    v = x.var(dim=axis, keepdim=True, unbiased=False)
    return (x - m) / torch.sqrt(v + eps)

def _scatter_add(tgt, idx, src, axis=0):
    return tgt.clone().index_add_(axis, idx, src)

def _segment_sum(src, seg, n):
    out = torch.zeros((n,) + src.shape[1:], dtype=src.dtype)
    return out.index_add_(0, seg, src)

def _pad(x, pw):
    flat = tuple((v for pair in reversed(pw) for v in pair))
    return torch.nn.functional.pad(x, flat)
kernel_name = 'adaLN_cond__memory_aug_recurrent_mem_tr__glu_gated_bilinear__prompt'

def setup_inputs():

    _w = lambda a: (lambda t: t.to(torch.bfloat16) if t.is_floating_point() else t)(torch.as_tensor(a))

    def _A_setup():
        B, S, Dm = (1, 2048, 576)
        H, Dh = (32, 128)
        M, seg = (8, 32)
        seg = min(seg, S)
        S = S // seg * seg
        return {'x': _w((lambda *s: torch.randn(*s, dtype=torch.bfloat16) * 0.05)(B, S, Dm)), 'mem0': _w((lambda *s: torch.randn(*s, dtype=torch.bfloat16) * 0.8)(B, M, Dm)), 'Wq': _w((lambda *s: torch.randn(*s, dtype=torch.bfloat16) * 1.6)(Dm, H, Dh) * Dm ** (-0.5)), 'Wk': _w((lambda *s: torch.randn(*s, dtype=torch.bfloat16) * 1.6)(Dm, H, Dh) * Dm ** (-0.5)), 'Wv': _w((lambda *s: torch.randn(*s, dtype=torch.bfloat16) * 0.8)(Dm, H, Dh) * Dm ** (-0.5)), 'Wo': _w((lambda *s: torch.randn(*s, dtype=torch.bfloat16) * 0.8)(H, Dh, Dm) * (H * Dh) ** (-0.5)), 'seg_len': seg}
    _A_in = _A_setup()

    def _B_setup():
        B, S, D, F = (1, 2048, 576, 4608)
        return {'x': _w((lambda *s: torch.randn(*s, dtype=torch.bfloat16) * 0.05)(B, S, D)), 'w_gate': _w((lambda *s: torch.randn(*s, dtype=torch.bfloat16) * 0.8)(D, F) * D ** (-0.5)), 'w_up': _w((lambda *s: torch.randn(*s, dtype=torch.bfloat16) * 0.8)(D, F) * D ** (-0.5)), 'w_down': _w((lambda *s: torch.randn(*s, dtype=torch.bfloat16) * 0.8)(F, D) * F ** (-0.5))}
    _B_in = _B_setup()
    return {'A_x': _A_in['x'], 'A_mem0': _A_in['mem0'], 'A_Wq': _A_in['Wq'], 'A_Wk': _A_in['Wk'], 'A_Wv': _A_in['Wv'], 'A_Wo': _A_in['Wo'], 'A_seg_len': _A_in['seg_len'], 'B_x': _B_in['x'], 'B_w_gate': _B_in['w_gate'], 'B_w_up': _B_in['w_up'], 'B_w_down': _B_in['w_down'], 'c': _w((lambda *s: torch.randn(*s, dtype=torch.bfloat16) * 0.1)(1, 576) * 8.0), 'w_mod': _w((lambda *s: torch.randn(*s, dtype=torch.bfloat16) * 0.1)(576, 6 * 576) * 576 ** (-0.5) * 8.0)}

def reference(A_x, A_mem0, A_Wq, A_Wk, A_Wv, A_Wo, A_seg_len, B_x, B_w_gate, B_w_up, B_w_down, c, w_mod):

    def _A_ref(x, mem0, Wq, Wk, Wv, Wo, seg_len):
        B, S, Dm = x.shape
        H, Dh = (Wq.shape[1], Wq.shape[2])
        M = mem0.shape[1]
        scale = Dh ** (-0.5)
        n_seg = S // seg_len
        L = M + seg_len
        idx = torch.arange(L)
        mask = (idx[:, None] < M) | (idx[:, None] >= idx[None, :])
        mem = mem0
        outs = []
        for s in range(n_seg):
            xs = x[:, s * seg_len:(s + 1) * seg_len, :].clone()
            h = torch.concatenate([mem, xs], axis=1)
            q = torch.einsum('btd,dhe->bhte', h, Wq)
            k = torch.einsum('btd,dhe->bhte', h, Wk)
            v = torch.einsum('btd,dhe->bhte', h, Wv)
            scores = torch.einsum('bhqe,bhke->bhqk', q, k) * scale
            scores = torch.where(mask[None, None], scores, -1000000000.0)
            p = _softmax(scores, axis=-1)
            o = torch.einsum('bhqk,bhke->bhqe', p, v)
            o = torch.einsum('bhte,hed->btd', o, Wo)
            mem = o[:, :M, :].clone()
            outs.append(o[:, M:, :])
        return torch.concatenate(outs, axis=1)

    def _B_ref(x, w_gate, w_up, w_down):
        g = torch.einsum('bsd,df->bsf', x, w_gate)
        u = torch.einsum('bsd,df->bsf', x, w_up)
        h = g * u
        return torch.einsum('bsf,fd->bsd', h, w_down)
    x = A_x
    mod = (_silu(c) @ w_mod).reshape(c.shape[0], 6, 1, -1)
    sa, ca, ga, sb, cb, gb = (mod[:, 0].clone(), mod[:, 1].clone(), mod[:, 2].clone(), mod[:, 3].clone(), mod[:, 4].clone(), mod[:, 5].clone())
    h = _layernorm(x, axis=-1) * (1 + ca) + sa
    x = x + ga * _A_ref(h, A_mem0, A_Wq, A_Wk, A_Wv, A_Wo, A_seg_len)
    h = _layernorm(x, axis=-1) * (1 + cb) + sb
    x = x + gb * _B_ref(h, B_w_gate, B_w_up, B_w_down)
    return x
```

```python
import re

_REG = re.compile(r'^(-|\|)?(abs\()?([vas])(?:(\d+)|\[(\d+):(\d+)\])\)?\|?$')


def regs_of(tok):
    tok = tok.strip()
    m = _REG.match(tok)
    if m:
        f = m.group(3)
        if m.group(4) is not None:
            return {(f, int(m.group(4)))}
        return {(f, i) for i in range(int(m.group(5)), int(m.group(6)) + 1)}
    if tok in ('vcc', 'vcc_lo', 'vcc_hi'):
        return {('s', 'vcc')}
    if tok in ('exec', 'exec_lo', 'exec_hi'):
        return {('s', 'exec')}
    if tok == 'm0':
        return {('s', 'm0')}
    return set()


TRANS = ('v_exp_f32', 'v_log_f32', 'v_rcp_f32', 'v_rsq_f32', 'v_sqrt_f32', 'v_sin_f32', 'v_cos_f32')


class Ins:
    def __init__(self, text):
        self.text = text
        t = text.split(';')[0].strip()
        self.label = t.endswith(':')
        self.directive = t.startswith('.') or t == ''
        self.mn = ''
        self.ops = []
        self.mods = ''
        if self.label or self.directive:
            return
        parts = t.split(None, 1)
        self.mn = parts[0]
        rest = parts[1] if len(parts) > 1 else ''
        ops, cur, depth = [], '', 0
        for ch in rest:
            if ch in '[(':
                depth += 1
            if ch in '])':
                depth -= 1
            if ch == ',' and depth == 0:
                ops.append(cur.strip())
                cur = ''
            else:
                cur += ch
        if cur.strip():
            ops.append(cur.strip())
        if ops:
            last = ops[-1].split(None, 1)
            ops[-1] = last[0]
            self.mods = last[1] if len(last) > 1 else ''
        self.ops = ops
        mn = self.mn
        self.is_mfma = mn.startswith('v_mfma') or mn.startswith('v_smfmac')
        self.is_valu = mn.startswith('v_') and not self.is_mfma
        self.is_salu = mn.startswith('s_')
        self.is_vmem = mn.startswith(('buffer_', 'global_', 'flat_'))
        self.is_ds = mn.startswith('ds_')
        self.is_dpp = '_dpp' in mn or 'row_' in self.mods or 'quad_perm' in self.mods
        self.is_trans = mn.replace('_e32', '').replace('_e64', '') in TRANS
        self.is_perml = mn.startswith('v_permlane')
        self.is_rdlane = mn.startswith(('v_readlane', 'v_readfirstlane'))
        R = [regs_of(o) for o in ops]
        w, r = set(), set()
        self.srcc = set()
        self.srcab = set()
        self.store_data = set()
        if self.is_mfma:
            w |= R[0]
            self.srcab = R[1] | R[2]
            if mn.startswith('v_smfmac'):
                self.srcc = set(R[0])
                self.srcab |= R[3]
            else:
                self.srcc = set(R[3])
            r |= self.srcab | self.srcc
            if '32x32x16' in mn or '32x32x32' in mn or '32x32x8' in mn:
                self.passes = 8
            elif '16x16x32' in mn or '16x16x64' in mn or '16x16x16' in mn:
                self.passes = 4
            else:
                raise ValueError('unknown mfma ' + mn)
        elif self.is_valu:
            if self.is_perml:
                w |= R[0] | R[1]
                r |= R[0] | R[1]
            elif mn.startswith('v_cmp'):
                w |= R[0]
                for x in R[1:]:
                    r |= x
                if mn.startswith('v_cmpx'):
                    w |= {('s', 'exec')}
            elif mn.startswith(('v_add_co', 'v_sub_co', 'v_addc_co', 'v_subb_co', 'v_div_scale', 'v_mad_u64')):
                w |= R[0] | R[1]
                for x in R[2:]:
                    r |= x
            elif mn == 'v_nop':
                pass
            else:
                w |= R[0]
                for x in R[1:]:
                    r |= x
                if mn.startswith(('v_fmac', 'v_dot2c', 'v_writelane')) or self.is_dpp or 'sdwa' in mn:
                    r |= R[0]
                if mn.startswith('v_div_fmas'):
                    r |= {('s', 'vcc')}
        elif self.is_vmem:
            lds = ' lds' in (' ' + self.mods) or '_lds_' in mn
            if 'store' in mn:
                for x in R:
                    r |= x
                self.store_data = R[0] if mn.startswith('buffer') else R[1]
            elif 'atomic' in mn:
                for x in R:
                    r |= x
                if 'sc0' in self.mods:
                    w |= R[0]
            elif mn in ('buffer_wbl2', 'buffer_inv'):
                pass
            elif lds:
                for x in R:
                    r |= x
                r |= {('s', 'm0')}
                self.is_ldsdma = True
            else:
                w |= R[0]
                for x in R[1:]:
                    r |= x
        elif self.is_ds:
            if mn.startswith(('ds_write', 'ds_add', 'ds_max', 'ds_or')) and 'rtn' not in mn:
                for x in R:
                    r |= x
            else:
                w |= R[0]
                for x in R[1:]:
                    r |= x
        elif self.is_salu:
            if mn.startswith(('s_cmp', 's_bitcmp', 's_cbranch', 's_branch', 's_waitcnt', 's_nop', 's_barrier',
                              's_endpgm', 's_sleep', 's_setprio', 's_setpc')):
                for x in R:
                    r |= x
            else:
                if R:
                    w |= R[0]
                for x in R[1:]:
                    r |= x
                if 'saveexec' in mn:
                    w |= {('s', 'exec')}
        self.w, self.r = w, r

    def states(self):
        if self.mn == 's_nop':
            return int(self.ops[0], 0) + 1
        return 1


def vg(s):
    return {x for x in s if x[0] in 'va'}


def sg(s):
    return {x for x in s if x[0] == 's'}


XDL_VALU = {2: 5, 4: 8, 8: 12, 16: 20}
XDL_COVL = {2: 4, 4: 6, 8: 10, 16: 18}
XDL_WARC = {2: 1, 4: 3, 8: 7, 16: 15}


def need(p, c):
    n = 0
    if p.is_mfma:
        d = p.w
        if c.is_mfma:
            if d & c.srcab:
                n = max(n, XDL_VALU[p.passes])
            if d & c.srcc:
                if not (d == c.srcc and p.mn == c.mn):
                    n = max(n, XDL_COVL[p.passes])
            elif d & c.w:
                n = max(n, XDL_COVL[p.passes])
        elif c.is_valu or c.is_vmem or c.is_ds:
            if d & (c.r | c.w):
                n = max(n, XDL_VALU[p.passes])
            if c.is_valu and (p.srcc & c.w):
                n = max(n, XDL_WARC[p.passes])
    elif p.is_valu:
        wv, ws = vg(p.w), sg(p.w)
        if c.is_mfma:
            if wv & c.r:
                n = max(n, 2)
            if ('s', 'exec') in ws:
                n = max(n, 4)
        elif c.is_valu:
            if wv & c.r:
                if c.is_dpp or c.is_perml:
                    n = max(n, 2)
                if c.is_rdlane:
                    n = max(n, 1)
                if p.is_trans and not c.is_trans:
                    n = max(n, 1)
                if 'sdwa' in p.mn or 'op_sel' in p.mods:
                    n = max(n, 1)
            if ws & c.r:
                n = max(n, 4 if (c.is_rdlane or c.mn.startswith(('v_writelane', 'v_div_fmas'))) else 2)
            if ('s', 'exec') in ws:
                if c.is_dpp:
                    n = max(n, 5)
                if c.is_rdlane or c.is_perml:
                    n = max(n, 4)
        elif c.is_vmem:
            if ws & c.r:
                n = max(n, 5)
        elif c.is_salu:
            if ws & c.r:
                n = max(n, 1)
    elif p.is_salu:
        if ('s', 'm0') in p.w and getattr(c, 'is_ldsdma', False):
            n = max(n, 1)
    elif p.is_vmem:
        if len(p.store_data) >= 3 and (p.store_data & c.w):
            n = max(n, 2 if c.is_valu else 1)
    return n


class Asm:
    def __init__(self):
        self.lines = []
        self.uid = 0

    def __call__(self, text):
        for ln in text.split('\n'):
            self.lines.append(ln.strip())

    def label(self, name):
        self.lines.append(name + ':')

    def newlabel(self, base='L'):
        self.uid += 1
        return '%s_%d' % (base, self.uid)

    def finish(self):
        out = []
        window = []
        nins = 0
        for ln in self.lines:
            ins = Ins(ln)
            if ins.label or ins.directive:
                out.append(ln)
                continue
            req = 0
            for p, dist in window:
                k = need(p, ins)
                if k > dist:
                    req = max(req, k - dist)
            while req > 0:
                k = min(req, 16)
                out.append('s_nop %d' % (k - 1))
                window = [(p, d + k) for p, d in window]
                req -= k
                nins += 1
            out.append(ln)
            st = ins.states()
            window = [(p, d + st) for p, d in window if d + st < 21]
            window.append((ins, 0))
            nins += 1
        self.nins = nins
        return '\n'.join(('    ' + l if not (l.endswith(':') or l.startswith('.') or l.startswith(';')) else l)
                         for l in out) + '\n'

    def fence(self):
        self('s_nop 11')


def v(i, n=1):
    return 'v%d' % i if n == 1 else 'v[%d:%d]' % (i, i + n - 1)


def a(i, n=1):
    return 'a%d' % i if n == 1 else 'a[%d:%d]' % (i, i + n - 1)


def s(i, n=1):
    return 's%d' % i if n == 1 else 's[%d:%d]' % (i, i + n - 1)
```

```python
NSEG = 64
NH = 32
D = 576
ROWB = 1152

WS_SIZE = 0x10000000
OOB = 0x20000000

PART_OFF = 0x0
PART_BUF = 72 * 4096
MEMR_OFF = 0x100000
MEMR_STRIDE = 0x4000
FLAG_OFF = 0x120000
STAMP_OFF = 0x130000
MOD_OFF = 0x140000
H1_OFF = 0x200000
H2_OFF = 0x500000
KVM_OFF = 0x800000
KVM_BLK = 8192
QKV_OFF = 0x1800000
QKV_BLK = 24576
P2_OFF = 0x4800000
P3_OFF = 0x7000000

K_X, K_MEM0, K_WQ, K_WK, K_WV, K_WO, K_SEG, K_BX, K_WG, K_WU, K_WD, K_C, K_WMOD, K_OUT, K_DBG, K_WS = \
    [8 * i for i in range(16)]

F_A1 = 0x000
F_R = 0x100
F_A2 = 0x200
F_C = 0x300
F_DE = 0x400
F_H1 = 0x600
FLAG_BYTES = 0x800
```

```python
import math
import struct
from asmlib import v, a, s
from layout import *


def f2u(x):
    return struct.unpack('<I', struct.pack('<f', x))[0]


SRD_WS, SRD_DBG, SRD_A, SRD_B, SRD_C = 8, 12, 16, 20, 24
sH, sStep, sPW0, sPW1, sPR, sPRst, sMRd, sMWr, sMPrev, sKV, sKVM, sC, sUnit, sSpin = range(28, 42)
sCHK = 90
sQMASK = 42
sSEL = 44
sPLO, sPHI = 52, 53
sT0, sT1, sT2, sT3 = 54, 55, 56, 57
sPB = 58
sUOFF = 59
sA1 = 60
sFLAGO = 61
sKVMP = 62
sMRd1, sMRd2 = 63, 6
sST = 64

vIdx, vL16, vPartOff, vPart8, vPub, vXW, vXR, vOW, vOR, vWo = range(0, 10)
VP = 10
M = [12 + 4 * m for m in range(9)]
AQ = [48 + 4 * t for t in range(4)]
RA, RB = 64, 72
AV = [64, 68]
SP0, SP1 = 72, 76
sTag, sTag2 = 33, 7
sCK = 40

L_WO = 0
L_KT = 147456
L_X = L_KT + 8192
L_O = L_X + 16 * 272
L_MISC = L_O + 8 * 272


def wfrag(f):
    return a(8 * f, 8) if f < 32 else v(80 + 8 * (f - 32), 8)


def wfreg(f, r):
    return a(8 * f + r) if f < 32 else v(80 + 8 * (f - 32) + r)


def f_qk(m, t):
    return 3 * m + t


def f_wo(j):
    return 27 + j


def wqk(m, t):
    return wfrag(f_qk(m, t))


def wv(m, t):
    return v(112 + 16 * m + 8 * t, 8)


def rowadd(r, b):
    return 32 * (r >> 2) + 8 * (r & 1) + 2 * ((r >> 1) & 1) + b


class Stream:
    def __init__(self, A, window):
        self.A, self.window, self.batches = A, window, []

    def add(self, n, issue, consume, regs=()):
        self.batches.append((n, issue, consume, set(regs)))

    def run(self):
        A = self.A
        q, out, i = [], 0, 0
        B = self.batches
        while i < len(B) or q:
            while i < len(B) and out + B[i][0] <= self.window and not any(B[i][3] & x[3] for x in q):
                B[i][1]()
                q.append(B[i])
                out += B[i][0]
                i += 1
            n, _, consume, _ = q.pop(0)
            out -= n
            A('s_waitcnt vmcnt(%d)' % out)
            consume()


def srd(A, reg, karg, size):
    A('s_load_dwordx2 %s, s[0:1], %d' % (s(reg, 2), karg))
    A('s_mov_b32 %s, 0x%x' % (s(reg + 2), size))
    A('s_mov_b32 %s, 0x20000' % s(reg + 3))


def gen_R(A, opt):
    stamps = opt.get('stamps', False)
    flags = opt.get('flags', True)
    nsteps = NSEG
    A.label('R_entry')
    if stamps:
        A('s_memrealtime %s' % s(sST + 22, 2))
    A('s_mov_b32 %s, s3' % s(sH))
    A('v_and_b32 v20, 63, v0')
    A('v_and_b32 v21, 15, v20')
    A('v_lshrrev_b32 v22, 4, v20')
    A('v_lshlrev_b32 %s, 4, v20' % v(vL16))
    A('v_lshrrev_b32 v23, 2, v21')
    A('v_and_b32 v24, 1, v21')
    A('v_lshl_add_u32 v23, v23, 1, v24')
    A('v_mov_b32 v26, 0x4444')
    A('v_mov_b32 v27, 0xeeee')
    A('v_cmp_eq_u32 vcc, 1, v24')
    A('v_cndmask_b32 %s, v26, v27, vcc' % v(vIdx))
    A('v_lshlrev_b32 v27, 5, v22')
    A('v_lshl_add_u32 v27, v24, 4, v27')
    A('v_lshrrev_b32 v25, 1, v21')
    A('v_mul_u32_u24 v26, 272, v25')
    A('v_add_u32 v28, v26, v27')
    A('v_add_u32 %s, %d, v28' % (v(vOR), L_O))
    A('v_mul_u32_u24 v26, 272, v23')
    A('s_lshl_b32 %s, s4, 6' % s(sT0))
    A('v_lshl_add_u32 v28, v22, 4, v26')
    A('v_add_u32 v28, %s, v28' % s(sT0))
    A('v_add_u32 %s, %d, v28' % (v(vOW), L_O))
    A('v_mul_u32_u24 v26, 272, v21')
    A('v_lshl_add_u32 v26, v22, 4, v26')
    A('v_add_u32 %s, %d, v26' % (v(vXR), L_X))
    A('s_cmp_lt_u32 s4, 2')
    A('s_cselect_b32 %s, 544, 0' % s(sT0))
    A('s_and_b32 %s, s4, 1' % s(sT1))
    A('s_lshl_b32 %s, %s, 7' % (s(sT1), s(sT1)))
    A('s_add_u32 %s, %s, %s' % (s(sT0), s(sT0), s(sT1)))
    A('s_add_u32 %s, %s, %d' % (s(sT0), s(sT0), L_X))
    A('v_mul_u32_u24 v26, 1088, v22')
    A('v_lshl_add_u32 v26, v21, 3, v26')
    A('v_add_u32 %s, %s, v26' % (v(vXW), s(sT0)))
    A('s_mul_i32 %s, s4, 36864' % s(sT0))
    A('v_add_u32 %s, %s, %s' % (v(vWo), s(sT0), v(vL16)))
    A('v_mul_u32_u24 v26, 18, v22')
    A('v_lshrrev_b32 v27, 3, v21')
    A('v_add_u32 v27, v26, v27')
    A('s_lshl_b32 %s, s4, 1' % s(sT0))
    A('v_add_u32 v27, %s, v27' % s(sT0))
    A('v_lshlrev_b32 v27, 12, v27')
    A('v_and_b32 v28, 7, v21')
    A('v_lshl_add_u32 v27, v28, 4, v27')
    A('s_lshl_b32 %s, %s, 7' % (s(sT0), s(sH)))
    A('v_add_u32 %s, %s, v27' % (v(vPartOff), s(sT0)))
    A('v_add_u32 v26, 8, v26')
    A('v_lshlrev_b32 v26, 12, v26')
    A('v_lshl_add_u32 v26, v21, 1, v26')
    A('s_lshl_b32 %s, s4, 5' % s(sT1))
    A('s_add_u32 %s, %s, %s' % (s(sT0), s(sT0), s(sT1)))
    A('v_add_u32 %s, %s, v26' % (v(vPart8), s(sT0)))
    A('s_lshl_b32 %s, s4, 5' % s(sUnit))
    A('s_add_u32 %s, %s, %s' % (s(sUnit), s(sUnit), s(sH)))
    A('s_lshl_b32 %s, %s, 12' % (s(sT0), s(sUnit)))
    A('s_mul_i32 %s, %s, 57' % (s(sT1), s(sUnit)))
    A('s_lshr_b32 %s, %s, 9' % (s(sT1), s(sT1)))
    A('s_mul_i32 %s, %s, 9' % (s(sT2), s(sT1)))
    A('s_sub_u32 %s, %s, %s' % (s(sT2), s(sUnit), s(sT2)))
    A('s_lshl_b32 %s, %s, 10' % (s(sT2), s(sT2)))
    A('s_lshl_b32 %s, %s, 5' % (s(sT1), s(sT1)))
    A('s_add_u32 %s, %s, %s' % (s(sT1), s(sT1), s(sT2)))
    A('s_lshl_b32 %s, %s, 7' % (s(sT2), s(sUnit)))
    A('s_cmp_lt_u32 %s, 72' % s(sUnit))
    A('s_cselect_b32 %s, %s, 0x%x' % (s(sUOFF), s(sT0), OOB))
    A('s_cselect_b32 %s, %s, 0x%x' % (s(sT1), s(sT1), OOB))
    A('v_lshlrev_b32 v26, 8, v25')
    A('v_lshl_add_u32 v26, v24, 4, v26')
    A('v_lshl_add_u32 v26, v22, 3, v26')
    A('v_add_u32 v26, %s, v26' % s(sT1))
    A('v_mov_b32 v27, 0x%x' % OOB)
    A('v_and_b32 v28, 0x28, v20')
    A('v_cmp_eq_u32 vcc, 0, v28')
    A('v_cndmask_b32 %s, v27, v26, vcc' % v(vPub))
    A('v_lshlrev_b32 v29, 4, v21')
    A('v_lshl_add_u32 v29, v22, 3, v29')
    A('v_add_u32 v29, %s, v29' % s(sT2))
    srd(A, SRD_A, K_MEM0, 8 * ROWB)
    A('s_mov_b32 %s, 0xcccccccc' % s(sQMASK))
    A('s_mov_b32 %s, 0xcccccccc' % s(sQMASK + 1))
    for q in range(4):
        A('s_mov_b32 %s, 0x%x' % (s(sSEL + 2 * q), 0x00030003 << (2 * q)))
        A('s_mov_b32 %s, 0x%x' % (s(sSEL + 2 * q + 1), 0x00030003 << (2 * q)))
    A('s_mov_b32 %s, 0x05040100' % s(sPLO))
    A('s_mov_b32 %s, 0x07060302' % s(sPHI))
    A('s_mov_b32 %s, 0x%x' % (s(sC), f2u(128 ** -0.5 * math.log2(math.e))))
    A('s_mov_b32 %s, %d' % (s(sSpin), opt.get('spin', 200000)))

    for i in range(4):
        A('v_mov_b32 v%d, -1' % (SP1 + i))
    A('s_add_u32 %s, %s, %d' % (s(sPR), s(sUOFF), PART_OFF))
    for i in range(4):
        A('buffer_store_dwordx4 %s, %s, %s, %s offen offset:%d sc1' % (v(SP1, 4), v(vL16), s(SRD_WS, 4), s(sPR), 1024 * i))
    for i in range(1, 3):
        A('s_mov_b32 %s, 0x%x' % (s(sT0), MEMR_OFF + i * MEMR_STRIDE))
        A('buffer_store_dwordx2 %s, %s, %s, %s offen sc1' % (v(SP1, 2), v(vPub), s(SRD_WS, 4), s(sT0)))
    A('s_waitcnt lgkmcnt(0)')
    A('buffer_load_dwordx2 v[30:31], v29, %s, 0 offen' % s(SRD_A, 4))
    A('s_mov_b32 %s, 0x%x' % (s(sT0), MEMR_OFF))
    A('s_waitcnt vmcnt(0)')
    A('buffer_store_dwordx2 v[30:31], %s, %s, %s offen sc1' % (v(vPub), s(SRD_WS, 4), s(sT0)))
    A('s_waitcnt vmcnt(0)')
    A('s_barrier')
    lab = A.newlabel('R_noarrive')
    A('s_cmp_lg_u32 s4, 0')
    A('s_cbranch_scc1 %s' % lab)
    A('s_cmp_eq_u32 s5, 0')
    A('s_cselect_b32 %s, 1, 0x10001' % s(sT0))
    if opt.get('force_slow'):
        A('s_mov_b32 %s, 0x10001' % s(sT0))
    A('v_mov_b32 v26, %s' % s(sT0))
    A('s_mov_b64 exec, 1')
    A('buffer_atomic_add v26, off, %s, 0 offset:8' % s(SRD_DBG, 4))
    A('s_mov_b64 exec, -1')
    A.label(lab)

    srd(A, SRD_A, K_WO, 4096 * ROWB)
    A('s_load_dwordx2 %s, s[0:1], %d' % (s(SRD_B, 2), K_WQ))
    A('s_load_dwordx2 %s, s[0:1], %d' % (s(sT2, 2), K_WK))
    A('s_mov_b32 %s, 0x%x' % (s(SRD_B + 2), 576 * 8192))
    A('s_mov_b32 %s, 0x20000' % s(SRD_B + 3))
    srd(A, SRD_C, K_WV, 576 * 8192)
    A('v_lshrrev_b32 v26, 1, v22')
    A('v_lshlrev_b32 v26, 4, v26')
    A('v_and_b32 v27, 1, v22')
    A('v_lshl_add_u32 v26, v27, 2, v26')
    A('s_lshl_b32 %s, %s, 7' % (s(sT0), s(sH)))
    A('v_add_u32 v27, %s, v26' % s(sT0))
    A('v_mul_u32_u24 v27, 1152, v27')
    A('s_lshl_b32 %s, s4, 8' % s(sT0))
    A('v_lshl_add_u32 v28, v21, 4, v27')
    A('v_add_u32 v12, %s, v28' % s(sT0))
    A('s_lshl_b32 %s, s4, 5' % s(sT0))
    A('s_add_u32 %s, %s, 1024' % (s(sT0), s(sT0)))
    A('v_lshl_add_u32 v28, v21, 1, v27')
    A('v_add_u32 v13, %s, v28' % s(sT0))
    A('v_lshlrev_b32 v27, 13, v26')
    A('s_lshl_b32 %s, %s, 8' % (s(sT0), s(sH)))
    A('v_add_u32 v27, %s, v27' % s(sT0))
    A('s_and_b32 %s, s4, 1' % s(sT0))
    A('s_lshl_b32 %s, %s, 7' % (s(sT0), s(sT0)))
    A('v_lshl_add_u32 v28, v21, 3, v27')
    A('v_add_u32 v14, %s, v28' % s(sT0))
    A('s_lshl_b32 %s, s4, 6' % s(sT0))
    A('v_lshl_add_u32 v28, v21, 2, v27')
    A('v_add_u32 v15, %s, v28' % s(sT0))
    A('s_waitcnt lgkmcnt(0)')
    A('s_cmp_lt_u32 s4, 2')
    A('s_cselect_b32 %s, %s, %s' % (s(SRD_B), s(SRD_B), s(sT2)))
    A('s_cselect_b32 %s, %s, %s' % (s(SRD_B + 1), s(SRD_B + 1), s(sT2 + 1)))
    nt = ' nt' if opt.get('nt', True) else ''

    st = Stream(A, 60)
    TMP = [48, 52, 56, 60]

    def wo_issue(m, rh):
        base = 128 + 32 * (2 * m + rh)
        for r1 in range(2):
            A('s_mov_b32 %s, %d' % (s(sT0), (64 * m + 32 * rh + 8 * r1) * ROWB))
            for r2 in range(2):
                for b in range(2):
                    r = 2 * r2 + r1
                    A('buffer_load_dwordx4 %s, v12, %s, %s offen offset:%d%s' % (
                        v(base + 8 * r + 4 * b, 4), s(SRD_A, 4), s(sT0), (2 * r2 + b) * ROWB, nt))

    def put(f, r, src):
        if f < 32:
            A('v_accvgpr_write_b32 %s, v%d' % (wfreg(f, r), src))
        else:
            A('v_mov_b32 %s, v%d' % (wfreg(f, r), src))

    def wo_consume(m, rh):
        base = 128 + 32 * (2 * m + rh)
        for j in range(8):
            o = TMP[j & 3]
            for r in range(4):
                A('v_perm_b32 v%d, v%d, v%d, %s' % (o + r, base + 8 * r + 4 + (j >> 1), base + 8 * r + (j >> 1),
                                                   s(sPHI if j & 1 else sPLO)))
            if m == 1:
                A('ds_write_b128 %s, %s offset:%d' % (v(vWo), v(o, 4), (9 + j) * 2048 + rh * 1024))
            else:
                for r in range(4):
                    put(f_wo(j), 4 * rh + r, o + r)

    def wo8_issue(m):
        for r in range(8):
            if (r >> 1) & 1 == 0:
                pass
            A('s_mov_b32 %s, %d' % (s(sT0), (64 * m + rowadd(r, 0)) * ROWB))
            for b in range(2):
                A('buffer_load_ushort v%d, v13, %s, %s offen offset:%d%s' % (
                    16 + 16 * m + 2 * r + b, s(SRD_A, 4), s(sT0), b * ROWB, nt))

    def wo8_consume(m):
        for rh in range(2):
            o = TMP[rh]
            for r in range(4):
                rr = 16 + 16 * m + 2 * (4 * rh + r)
                A('v_lshl_or_b32 v%d, v%d, 16, v%d' % (o + r, rr + 1, rr))
            if m == 1:
                A('ds_write_b128 %s, %s offset:%d' % (v(vWo), v(o, 4), (9 + 8) * 2048 + rh * 1024))
            else:
                for r in range(4):
                    put(f_wo(8), 4 * rh + r, o + r)

    for m in range(2):
        for rh in range(2):
            st.add(8, lambda m=m, rh=rh: wo_issue(m, rh), lambda m=m, rh=rh: wo_consume(m, rh),
                   range(128 + 32 * (2 * m + rh), 160 + 32 * (2 * m + rh)))
    for m in range(2):
        st.add(16, lambda m=m: wo8_issue(m), lambda m=m: wo8_consume(m))

    def qk_raw(m, i, n=1):
        return v(128 + 32 * (m & 3) + i, n)

    def qk_issue(m):
        for r in range(8):
            for b in range(2):
                A('s_mov_b32 %s, %d' % (s(sT0), (64 * m + rowadd(r, b)) * 8192))
                A('buffer_load_dwordx2 %s, v14, %s, %s offen%s' % (qk_raw(m, 4 * r + 2 * b, 2), s(SRD_B, 4), s(sT0), nt))

    def qk_consume(m):
        base = 128 + 32 * (m & 3)
        for t in range(4):
            for r in range(8):
                lo, hi = base + 4 * r + (t >> 1), base + 4 * r + 2 + (t >> 1)
                sel = s(sPHI if t & 1 else sPLO)
                tmp = 48 + 8 * (t & 1) + r
                A('v_perm_b32 v%d, v%d, v%d, %s' % (tmp, hi, lo, sel))
                if t < 3:
                    put(f_qk(m, t), r, tmp)
            if t == 3:
                A('ds_write_b128 %s, %s offset:%d' % (v(vWo), v(56, 4), m * 2048))
                A('ds_write_b128 %s, %s offset:%d' % (v(vWo), v(60, 4), m * 2048 + 1024))

    for m in range(9):
        st.add(16, lambda m=m: qk_issue(m), lambda m=m: qk_consume(m), range(128 + 32 * (m & 3), 160 + 32 * (m & 3)))

    def v_issue(m):
        for r in range(8):
            for b in range(2):
                A('s_mov_b32 %s, %d' % (s(sT0), (64 * m + rowadd(r, b)) * 8192))
                A('buffer_load_dword v%d, v15, %s, %s offen%s' % (112 + 16 * m + 8 * b + r, s(SRD_C, 4), s(sT0), nt))

    def v_consume(m):
        for r in range(8):
            t0, t1 = 112 + 16 * m + r, 112 + 16 * m + 8 + r
            tmp = 16 + (r & 7)
            A('v_perm_b32 v%d, v%d, v%d, %s' % (tmp, t1, t0, s(sPLO)))
            A('v_perm_b32 v%d, v%d, v%d, %s' % (t1, t1, t0, s(sPHI)))
            A('v_mov_b32 v%d, v%d' % (t0, tmp))

    for m in (0, 3, 4, 5, 6, 7, 8, 1, 2):
        st.add(16, lambda m=m: v_issue(m), lambda m=m: v_consume(m), range(112 + 16 * m, 128 + 16 * m))
    st.run()

    A('s_mov_b32 %s, 0' % s(sStep))
    A('s_mov_b32 %s, 0x%x' % (s(sMRd), MEMR_OFF))
    A('s_mov_b32 %s, 0' % s(sTag))
    A('s_mov_b32 %s, 0' % s(sTag2))
    A('s_mov_b32 %s, %d' % (s(sPW1), PART_OFF + 36864))
    A('s_mov_b32 %s, 0x%x' % (s(sMRd1), MEMR_OFF + 4096))
    A('s_mov_b32 %s, 0x%x' % (s(sMRd2), MEMR_OFF + 8192))
    A('s_mov_b32 %s, 0x%x' % (s(sMWr), MEMR_OFF + MEMR_STRIDE))
    A('s_mov_b32 %s, 0x%x' % (s(sMPrev), MEMR_OFF + 2 * MEMR_STRIDE))
    A('s_mov_b32 %s, %d' % (s(sPB), PART_OFF))
    A('s_mul_i32 %s, %s, %d' % (s(sKV), s(sH), QKV_BLK))
    A('s_add_u32 %s, %s, 0x%x' % (s(sKV), s(sKV), QKV_OFF))
    A('s_lshl_b32 %s, %s, 13' % (s(sKVM), s(sH)))
    A('s_add_u32 %s, %s, 0x%x' % (s(sKVM), s(sKVM), KVM_OFF))
    A('s_lshl_b32 %s, s4, 11' % s(sT0))
    A('s_add_u32 %s, %s, %s' % (s(sKVM), s(sKVM), s(sT0)))
    lw, lw2 = A.newlabel('R_team'), A.newlabel('R_teamok')
    A.label(lw)
    A('buffer_load_dword v26, off, %s, 0 offset:8 sc1' % s(SRD_DBG, 4))
    A('s_waitcnt vmcnt(0) lgkmcnt(0)')
    A('v_readfirstlane_b32 %s, v26' % s(sT0))
    A('s_and_b32 %s, %s, 0xffff' % (s(sT1), s(sT0)))
    A('s_cmp_ge_u32 %s, 32' % s(sT1))
    A('s_cbranch_scc1 %s' % lw2)
    A('s_sub_u32 %s, %s, 1' % (s(sSpin), s(sSpin)))
    A('s_cmp_gt_i32 %s, 0' % s(sSpin))
    A('s_cbranch_scc1 %s' % lw)
    A.label(lw2)
    opt['wait_kv'](A, 0) if flags and 'wait_kv' in opt else None
    A('s_lshl_b32 %s, s4, 11' % s(sT1))
    A('s_add_u32 m0, %s, %d' % (s(sT1), L_KT))
    A('s_add_u32 %s, %s, %s' % (s(sT1), s(sT1), s(sKV)))
    A('s_add_u32 %s, %s, 8192' % (s(sT1), s(sT1)))
    A('buffer_load_dwordx4 %s, %s, %s offen sc1 lds' % (v(vL16), s(SRD_WS, 4), s(sT1)))
    A('buffer_load_dwordx4 %s, %s, %s offen offset:1024 sc1 lds' % (v(vL16), s(SRD_WS, 4), s(sT1)))
    for i in range(48, 64, 2):
        A('v_mov_b64 %s, 0' % v(i, 2))
    A('s_waitcnt lgkmcnt(0)')
    for m in range(2):
        ring = RB if m % 2 == 0 else RA
        A('ds_read_b128 %s, %s offset:%d' % (v(ring, 4), v(vWo), m * 2048))
        A('ds_read_b128 %s, %s offset:%d' % (v(ring + 4, 4), v(vWo), m * 2048 + 1024))
    A('s_waitcnt vmcnt(0) lgkmcnt(0)')
    A('s_barrier')
    if stamps:
        for i in range(16):
            A('s_mov_b32 %s, 0' % s(sST + 4 + i))
        A('s_memrealtime %s' % s(sST, 2))
        A('s_waitcnt lgkmcnt(0)')
        A('s_mov_b32 %s, %s' % (s(sST + 4 + 11), s(sST)))
        A('s_sub_u32 %s, %s, %s' % (s(sST + 4 + 10), s(sST), s(sST + 22)))
        A('s_memtime %s' % s(sST, 2))
        A('s_waitcnt lgkmcnt(0)')
    A('s_lshr_b32 %s, %s, 16' % (s(sT0), s(sT0)))
    A('s_cmp_lg_u32 %s, 0' % s(sT0))
    A('s_cbranch_scc1 R_loop_slow')
    gen_loop(A, opt, 'fast')
    gen_loop(A, opt, 'slow')


def gen_loop(A, opt, mode):
    stamps = opt.get('stamps', False)
    stsel = opt.get('stsel', list(range(8)))
    sc = ' sc1' if mode == 'slow' else ''
    L = lambda n: 'R_%s_%s' % (n, mode)
    WS = s(SRD_WS, 4)
    NFIRST = opt.get('nfirst', 4)

    def stamp(i):
        if not stamps or i not in stsel:
            return
        A('s_memtime %s' % s(sST + 2, 2))
        A('s_waitcnt lgkmcnt(0)')
        A('s_sub_u32 %s, %s, %s' % (s(sT3), s(sST + 2), s(sST)))
        A('s_add_u32 %s, %s, %s' % (s(sST + 4 + i), s(sST + 4 + i), s(sT3)))
        A('s_mov_b32 %s, %s' % (s(sST), s(sST + 2)))

    def smf(d, aa, b):
        A('v_smfmac_f32_16x16x64_bf16 %s, %s, %s, %s' % (v(d, 4), v(aa, 4), b, v(vIdx)))

    def vs(m, t):
        smf(AV[t], M[m], wv(m, t))

    def mload(m):
        A('buffer_load_dwordx4 %s, %s, %s, %s offen offset:%d sc1' % (
            v(M[m], 4), v(vL16), WS, s([sMRd, sMRd1, sMRd2][m >> 2]), 1024 * (m & 3)))

    def check_a(m):
        A('v_cmp_eq_u32 vcc, -1, v%d' % M[m])
        A('v_cmp_eq_u32 %s, -1, v%d' % (s(sCHK, 2), M[m] + 2))

    def check_b(m):
        A('s_or_b64 %s, vcc, %s' % (s(sCHK, 2), s(sCHK, 2)))

    def ldsfrag(dst, slot):
        A('ds_read_b128 %s, %s offset:%d' % (v(dst, 4), v(vWo), slot * 2048))
        A('ds_read_b128 %s, %s offset:%d' % (v(dst + 4, 4), v(vWo), slot * 2048 + 1024))

    ring = lambda m: RB if m % 2 == 0 else RA

    A('.p2align 6')
    A.label(L('loop'))
    for m in range(NFIRST):
        mload(m)
    A.label(L('mpoll'))
    A('s_waitcnt vmcnt(%d)' % (NFIRST - 1))
    check_a(0)
    check_b(0)
    A('s_cbranch_scc1 %s' % L('retry0'))
    A.label(L('mok0'))
    stamp(0)
    for m in range(9):
        smf(AQ[0], M[m], wqk(m, 0))
        if m == 0:
            for mm in range(NFIRST, 9):
                mload(mm)
        if m < 8:
            A('s_waitcnt vmcnt(%d)' % (8 - (m + 1)))
            check_a(m + 1)
        else:
            A('v_mov_b64 %s, 0' % v(RA, 2))
            A('v_mov_b64 %s, 0' % v(RA + 2, 2))
        smf(AQ[1], M[m], wqk(m, 1))
        if m < 8:
            check_b(m + 1)
        else:
            A('v_mov_b64 %s, 0' % v(RA + 4, 2))
            A('v_mov_b64 %s, 0' % v(RA + 6, 2))
        smf(AQ[2], M[m], wqk(m, 2))
        if m >= 2:
            A('s_waitcnt lgkmcnt(%d)' % (2 if m < 8 else 0))
        smf(AQ[3], M[m], v(ring(m), 8))
        if m + 2 < 9:
            ldsfrag(ring(m), m + 2)
        if m < 8:
            A('s_cbranch_scc1 %s' % L('retry%d' % (m + 1)))
            A.label(L('mok%d' % (m + 1)))
    vKT = M[0]
    T = RB
    vs(0, 0)
    A('s_lshl_b32 %s, s4, 11' % s(sT0))
    A('s_add_u32 %s, %s, %s' % (s(sT0), s(sT0), s(sKV)))
    vs(0, 1)
    A('v_add_u32 v%d, %d, %s' % (vKT, L_KT, v(vL16)))
    A('s_add_u32 %s, %s, 16384' % (s(sT0), s(sT0)))
    vs(1, 0)
    for t in range(2):
        A('v_add_f32 v%d, v%d, v%d' % (AQ[t], AQ[t], AQ[t] + 1))
        A('v_add_f32 v%d, v%d, v%d' % (AQ[t] + 1, AQ[t] + 2, AQ[t] + 3))
    A('v_cvt_pk_bf16_f32 v%d, v%d, v%d' % (T, AQ[0], AQ[1]))
    A('v_cvt_pk_bf16_f32 v%d, v%d, v%d' % (T + 2, AQ[0] + 1, AQ[1] + 1))
    vs(1, 1)
    for t in range(2, 4):
        A('v_add_f32 v%d, v%d, v%d' % (AQ[t], AQ[t], AQ[t] + 1))
        A('v_add_f32 v%d, v%d, v%d' % (AQ[t] + 1, AQ[t] + 2, AQ[t] + 3))
    A('v_cvt_pk_bf16_f32 v%d, v%d, v%d' % (T + 1, AQ[2], AQ[3]))
    A('v_cvt_pk_bf16_f32 v%d, v%d, v%d' % (T + 3, AQ[2] + 1, AQ[3] + 1))
    A('ds_write_b64 %s, %s' % (v(vXW), v(T, 2)))
    A('ds_write_b64 %s, %s offset:272' % (v(vXW), v(T + 2, 2)))
    stamp(1)
    KT = {(0, 0): AQ[0], (0, 1): AQ[1], (1, 0): AQ[2], (1, 1): AQ[3], (2, 0): M[4], (2, 1): M[5], (3, 0): AQ[0], (3, 1): AQ[1]}
    VT = [RB, RB + 4]

    def ktread(m, aa, base=None):
        A('ds_read_b128 %s, v%d offset:%d' % (v(KT[(m, aa)], 4), vKT if base is None else base, (2 * m + aa) * 1024))
    vs(2, 0)
    ktread(0, 0)
    ktread(0, 1)
    vs(2, 1)
    ktread(1, 0)
    ktread(1, 1)
    vs(3, 0)
    A('buffer_store_dwordx4 %s, %s, %s, %s offen sc1' % (v(T, 4), v(vL16), WS, s(sKVM)))
    vs(3, 1)
    A('v_mov_b32 v%d, v%d' % (VP, vKT))
    A('s_waitcnt lgkmcnt(4)')
    A('s_barrier')
    for m in range(4):
        A('ds_read_b128 %s, %s offset:%d' % (v(M[m], 4), v(vXR), 64 * m))
    vs(4, 0)
    A('buffer_load_dwordx4 %s, %s, %s, %s offen sc1' % (v(VT[0], 4), v(vL16), WS, s(sT0)))
    vs(4, 1)
    ktread(2, 0, VP)
    vs(5, 0)
    A('buffer_load_dwordx4 %s, %s, %s, %s offen offset:1024 sc1' % (v(VT[1], 4), v(vL16), WS, s(sT0)))
    vs(5, 1)
    ktread(2, 1, VP)
    vs(6, 0)
    A('s_add_u32 %s, %s, %d' % (s(sKV), s(sKV), NH * QKV_BLK))
    A('s_lshl_b32 %s, s4, 12' % s(sT1))
    A('s_add_u32 %s, %s, %s' % (s(sT1), s(sT1), s(sKV)))
    vs(6, 1)
    A('s_add_u32 %s, %s, %d' % (s(sT1), s(sT1), 8192 + opt.get('pf_ahead', 1) * NH * QKV_BLK))
    A('s_cmp_lt_u32 %s, %d' % (s(sStep), NSEG - 1 - opt.get('pf_ahead', 1)))
    A('s_cselect_b32 %s, %s, 0x%x' % (s(sT1), s(sT1), OOB))
    A('v_lshlrev_b32 v%d, 2, %s' % (VP + 1, v(vL16)))
    A('s_lshl_b32 %s, s4, 8' % s(sT2))
    A('s_add_u32 m0, %s, %d' % (s(sT2), L_MISC))
    vs(7, 0)
    A('buffer_load_dword v%d, %s, %s offen sc1 lds' % (VP + 1, WS, s(sT1)))
    vs(7, 1)
    vs(8, 0)
    vs(8, 1)
    stamp(2)
    S0, S1, SM = M[6], M[7], M[8]
    F = [M[0], M[2], AQ[0], RB]
    order = [8, 0, 1, 2, 3, 4, 5, 6, 7]

    def fread(i):
        ldsfrag(F[i & 3], 9 + order[i])

    waits = {0: 5, 1: 6, 2: 2, 3: 2}
    for m in range(4):
        A('s_waitcnt lgkmcnt(%d)' % waits[m])
        c = lambda d: '0' if m == 0 else v(d, 4)
        A('v_mfma_f32_16x16x32_bf16 %s, %s, %s, %s' % (v(S0, 4), v(KT[(m, 0)], 4), v(M[m], 4), c(S0)))
        if m == 0:
            ktread(3, 0, VP)
        if m == 2:
            A('v_add_f32 v64, v64, v65')
            A('v_add_f32 v65, v66, v67')
        A('v_mfma_f32_16x16x32_bf16 %s, %s, %s, %s' % (v(S1, 4), v(KT[(m, 1)], 4), v(M[m], 4), c(S1)))
        if m == 0:
            ktread(3, 1, VP)
        if m == 2:
            A('v_add_f32 v68, v68, v69')
            A('v_add_f32 v69, v70, v71')
        A('v_mfma_f32_16x16x32_bf16 %s, %s, %s, %s' % (v(SM, 4), v(M[m], 4), v(M[m], 4), c(SM)))
        if m == 2:
            fread(0)
        if m == 3:
            A('v_cvt_pk_bf16_f32 v%d, v64, v65' % VP)
            A('v_cvt_pk_bf16_f32 v%d, v68, v69' % (VP + 1))
    fread(1)
    A('buffer_store_dwordx2 %s, %s, %s, %s offen offset:1024 sc1' % (v(VP, 2), v(vL16), WS, s(sKVM)))
    A('s_cmp_eq_u32 %s, %d' % (s(sStep), NSEG - 1))
    A('s_cbranch_scc1 %s' % L('done'))
    sv = [S0, S0 + 1, S0 + 2, S0 + 3, S1, S1 + 1, S1 + 2, S1 + 3, SM, SM + 1]
    mx, t = SM + 2, SM + 3
    P, PM = M[4], M[5]
    A('v_max3_f32 v%d, v%d, v%d, v%d' % (68, sv[0], sv[1], sv[2]))
    A('v_max3_f32 v%d, v%d, v%d, v%d' % (69, sv[3], sv[4], sv[5]))
    A('v_max3_f32 v%d, v%d, v%d, v%d' % (68, 68, sv[6], sv[7]))
    A('v_max3_f32 v%d, v%d, v%d, v%d' % (69, 69, sv[8], sv[9]))
    A('v_max_f32 v%d, v68, v69' % mx)
    A('v_max_f32 v%d, v68, v69' % t)
    A('v_mov_b32 v%d, 0' % (PM + 1))
    A('v_mov_b32 v%d, 0' % (PM + 2))
    A('v_permlane16_swap_b32 v%d, v%d' % (mx, t))
    A('v_max_f32 v68, v%d, v%d' % (mx, t))
    A('v_max_f32 v69, v%d, v%d' % (mx, t))
    fread(2)
    A('v_permlane32_swap_b32 v68, v69')
    A('v_max_f32 v%d, v68, v69' % mx)
    A('v_mul_f32 v%d, %s, v%d' % (mx, s(sC), mx))
    for x in sv:
        A('v_fma_f32 v%d, v%d, %s, -v%d' % (x, x, s(sC), mx))
    for x in sv:
        A('v_exp_f32 v%d, v%d' % (x, x))
    for i in range(4):
        A('v_cvt_pk_bf16_f32 v%d, v%d, v%d' % (P + i, sv[2 * i], sv[2 * i + 1]))
    A('v_cvt_pk_bf16_f32 v%d, v%d, v%d' % (PM, sv[8], sv[9]))
    A('v_cvt_pk_bf16_f32 v%d, v%d, v%d' % (PM + 3, sv[8], sv[9]))
    stamp(3)
    O = [AQ[2], AQ[3]]
    A('s_waitcnt vmcnt(2)')
    A('v_mfma_f32_16x16x32_bf16 %s, %s, %s, 0' % (v(O[0], 4), v(VT[0], 4), v(P, 4)))
    A('v_add_f32 v68, v%d, v%d' % (sv[0], sv[1]))
    A('v_add_f32 v69, v%d, v%d' % (sv[2], sv[3]))
    A('v_mfma_f32_16x16x32_bf16 %s, %s, %s, 0' % (v(O[1], 4), v(VT[1], 4), v(P, 4)))
    A('v_add_f32 v70, v%d, v%d' % (sv[4], sv[5]))
    A('v_add_f32 v71, v%d, v%d' % (sv[6], sv[7]))
    A('v_mfma_f32_16x16x16_bf16 %s, %s, %s, %s' % (v(O[0], 4), v(VP, 2), v(PM, 2), v(O[0], 4)))
    A('v_add_f32 v%d, v%d, v%d' % (mx, sv[8], sv[9]))
    A('v_add_f32 v68, v68, v69')
    A('v_mfma_f32_16x16x16_bf16 %s, %s, %s, %s' % (v(O[1], 4), v(VP, 2), v(PM + 2, 2), v(O[1], 4)))
    A('v_add_f32 v70, v70, v71')
    A('v_add_f32 v68, v68, v%d' % mx)
    A('v_add_f32 v%d, v68, v70' % mx)
    A('v_add_f32 v%d, v68, v70' % t)
    fread(3)
    A('v_permlane16_swap_b32 v%d, v%d' % (mx, t))
    A('v_add_f32 v68, v%d, v%d' % (mx, t))
    A('v_add_f32 v69, v%d, v%d' % (mx, t))
    ACC = [M[5], M[6], M[7], M[8], M[4]]
    A('v_mov_b64 %s, 0' % v(ACC[1], 2))
    A('v_mov_b64 %s, 0' % v(ACC[1] + 2, 2))
    A('v_permlane32_swap_b32 v68, v69')
    A('v_add_f32 v68, v68, v69')
    A('v_rcp_f32 v68, v68')
    A('s_mov_b64 exec, %s' % s(sQMASK, 2))
    for i in range(4):
        for tt in range(2):
            A('v_mul_f32 v%d, v%d, v68' % (O[tt] + i, O[tt] + i))
    for i in range(4):
        A('v_cvt_pk_bf16_f32 v%d, v%d, v%d' % (P + i, O[0] + i, O[1] + i))
    A('ds_write_b128 %s, %s' % (v(vOW), v(P, 4)))
    A('s_mov_b64 exec, -1')
    for k in (0, 2, 3):
        A('v_mov_b64 %s, 0' % v(ACC[k], 2))
        A('v_mov_b64 %s, 0' % v(ACC[k] + 2, 2))
    A('s_lshl_b32 %s, s4, 11' % s(sT1))
    A('s_add_u32 m0, %s, %d' % (s(sT1), L_KT))
    A('s_add_u32 %s, %s, %s' % (s(sT1), s(sT1), s(sKV)))
    A('s_add_u32 %s, %s, 8192' % (s(sT1), s(sT1)))
    A('s_add_u32 %s, %s, %d' % (s(sKVM), s(sKVM), NH * KVM_BLK))
    if 'wait_kv_loop' in opt:
        opt['wait_kv_loop'](A)
    A('s_waitcnt lgkmcnt(0)')
    A('s_barrier')
    OA = [64, 68]
    A('ds_read_b128 %s, %s' % (v(OA[0], 4), v(vOR)))
    A('ds_read_b128 %s, %s offset:128' % (v(OA[1], 4), v(vOR)))
    A('v_mov_b64 %s, 0' % v(ACC[4], 2))
    A('v_mov_b64 %s, 0' % v(ACC[4] + 2, 2))
    A('buffer_load_dwordx4 %s, %s, %s offen sc1 lds' % (v(vL16), WS, s(sT1)))
    A('buffer_load_dwordx4 %s, %s, %s offen offset:1024 sc1 lds' % (v(vL16), WS, s(sT1)))
    stamp(4)
    OUT0, OUT1 = AQ[2], AQ[3]
    pending = ['OA0', 'OA1']

    def waitfor(tag):
        if tag in pending:
            k = pending.index(tag)
            rest = len(pending) - 1 - k
            A('s_waitcnt lgkmcnt(%d)' % rest)
            del pending[:k + 1]

    def drain_a(ti):
        acc = ACC[ti % 5]
        A('v_add_f32 v%d, v%d, v%d' % (acc, acc, acc + 1))
        A('v_add_f32 v%d, v%d, v%d' % (acc + 1, acc + 2, acc + 3))

    def drain_b(ti):
        acc = ACC[ti % 5]
        j = order[ti]
        if j == 8:
            A('v_cvt_pk_bf16_f32 v%d, v%d, v%d' % (acc + 2, acc, acc + 1))
            A('v_and_b32 v%d, 0xfffefffe, v%d' % (acc + 2, acc + 2))
            A('v_or_b32 v%d, %s, v%d' % (VP, s(sTag2), acc + 2))
            A('buffer_store_short v%d, %s, %s, %s offen%s' % (VP, v(vPart8), WS, s(sPB), sc))
            A('buffer_store_short_d16_hi v%d, %s, %s, %s offen%s' % (VP, v(vPart8), WS, s(sPW1), sc))
        elif j & 1:
            prev = ACC[(ti - 1) % 5]
            A('v_cvt_pk_bf16_f32 v%d, v%d, v%d' % (OUT0 + (j >> 1), prev, acc))
            A('v_cvt_pk_bf16_f32 v%d, v%d, v%d' % (OUT1 + (j >> 1), prev + 1, acc + 1))
        if j == 2:
            A('v_bfi_b32 v%d, 1, %s, v%d' % (OUT0, s(sTag), OUT0))
            A('v_bfi_b32 v%d, 1, %s, v%d' % (OUT1, s(sTag), OUT1))

    def rezero(ti):
        acc = ACC[ti % 5]
        A('v_mov_b64 %s, 0' % v(acc, 2))
        A('v_mov_b64 %s, 0' % v(acc + 2, 2))

    for ti in range(9):
        waitfor('OA0')
        smf(ACC[ti % 5], OA[0], wfrag(f_wo(order[ti])))
        if ti >= 2:
            drain_a(ti - 2)
        if ti == 5:
            rezero(2)
        waitfor('OA1')
        waitfor('F%d' % ti)
        smf(ACC[ti % 5], OA[1], v(F[ti & 3], 8))
        if ti + 4 < 9:
            fread(ti + 4)
            pending += ['F%d_lo' % (ti + 4), 'F%d' % (ti + 4)]
        if ti >= 2:
            drain_b(ti - 2)
            if ti == 3:
                rezero(0)
            if ti == 4:
                rezero(1)
            if ti == 6:
                rezero(3)
    drain_a(7)
    ldsfrag(RB, 0)
    ldsfrag(RA, 1)
    drain_a(8)
    drain_b(8)
    A('buffer_store_dwordx4 %s, %s, %s, %s offen%s' % (v(OUT0, 4), v(vPartOff), WS, s(sPB), sc))
    A('buffer_store_dwordx4 %s, %s, %s, %s offen%s' % (v(OUT1, 4), v(vPartOff), WS, s(sPW1), sc))
    stamp(5)
    SEL, RD = M[6], M[7]
    for i in range(48, 56, 2):
        A('v_mov_b64 %s, 0' % v(i, 2))
    A('s_mov_b32 %s, %s' % (s(sT0), s(sMRd)))
    A('s_mov_b32 %s, %s' % (s(sMRd), s(sMWr)))
    A('s_mov_b32 %s, %s' % (s(sMWr), s(sMPrev)))
    A('s_mov_b32 %s, %s' % (s(sMPrev), s(sT0)))
    A('s_add_u32 %s, %s, 4096' % (s(sMRd1), s(sMRd)))
    A('s_add_u32 %s, %s, 8192' % (s(sMRd2), s(sMRd)))
    A('s_add_u32 %s, %s, 1' % (s(sStep), s(sStep)))
    for i in range(56, 64, 2):
        A('v_mov_b64 %s, 0' % v(i, 2))
    A('s_cmp_ge_u32 %s, 72' % s(sUnit))
    A('s_cbranch_scc1 %s' % L('nored'))
    A('v_and_b32 v%d, 16, %s' % (M[8] + 1, v(vL16)))
    A('v_mov_b32 v%d, 0x3f80' % (M[8] + 2))
    A('v_lshlrev_b32 v%d, v%d, v%d' % (M[8] + 1, M[8] + 1, M[8] + 2))
    for q in range(4):
        A('v_cndmask_b32 v%d, 0, v%d, %s' % (SEL + q, M[8] + 1, s(sSEL + 2 * q, 2)))
    A('v_mov_b64 %s, -1' % v(VP, 2))
    A('s_waitcnt vmcnt(%d)' % opt.get('pre_poll_vm', 0))
    A.label(L('rpoll'))
    for i in range(4):
        A('buffer_load_dwordx4 %s, %s, %s, %s offen offset:%d sc1' % (v(M[i], 4), v(vL16), WS, s(sPR), 1024 * i))
    for i in range(4):
        A('s_waitcnt vmcnt(%d)' % (3 - i))
        A('v_mfma_f32_16x16x32_bf16 %s, %s, %s, %s' % (v(RD, 4), v(SEL, 4), v(M[i], 4), '0' if i == 0 else v(RD, 4)))
        if i == 1:
            A('v_bitop3_b32 v%d, v%d, v%d, %s bitop3:0x7e' % (M[8], M[0], M[1], s(sTag)))
    A('v_bitop3_b32 v%d, v%d, v%d, %s bitop3:0x7e' % (M[8] + 1, M[2], M[3], s(sTag)))
    A('v_or_b32 v%d, v%d, v%d' % (M[8], M[8], M[8] + 1))
    A('v_and_b32 v%d, 1, v%d' % (M[8], M[8]))
    A('v_cmp_ne_u32 vcc, 0, v%d' % M[8])
    A('s_cbranch_vccnz %s' % L('rretry'))
    A.label(L('rok'))
    for i in range(4):
        A('v_add_f32_dpp v%d, v%d, v%d row_ror:8 row_mask:0xf bank_mask:0xf' % (M[4] + i, RD + i, RD + i))
    A('v_cvt_pk_bf16_f32 v%d, v%d, v%d' % (M[5], M[4], M[4] + 1))
    A('v_cvt_pk_bf16_f32 v%d, v%d, v%d' % (M[5] + 1, M[4] + 2, M[4] + 3))
    A('buffer_store_dwordx2 %s, %s, %s, %s offen%s' % (v(M[5], 2), v(vPub), WS, s(sMRd), sc))
    A('buffer_store_dwordx2 %s, %s, %s, %s offen%s' % (v(VP, 2), v(vPub), WS, s(sMPrev), sc))
    A.label(L('nored'))
    stamp(6)
    A('s_xor_b32 %s, %s, 1' % (s(sTag), s(sTag)))
    A('s_xor_b32 %s, %s, 0x10001' % (s(sTag2), s(sTag2)))
    A('s_waitcnt vmcnt(%d) lgkmcnt(0)' % opt.get('pre_mem_vm', 0))
    A('s_barrier')
    stamp(7)
    A('s_branch %s' % L('loop'))

    A.label(L('retry0'))
    if stamps:
        A('s_add_u32 %s, %s, 1' % (s(sST + 4 + 8), s(sST + 4 + 8)))
    A('s_sub_u32 %s, %s, 1' % (s(sSpin), s(sSpin)))
    A('s_cmp_gt_i32 %s, 0' % s(sSpin))
    A('s_cbranch_scc0 %s' % L('mok0'))
    for m in range(NFIRST):
        mload(m)
    A('s_branch %s' % L('mpoll'))
    for m in range(1, 9):
        A.label(L('retry%d' % m))
        if stamps:
            A('s_add_u32 %s, %s, 0x10000' % (s(sST + 4 + 8), s(sST + 4 + 8)))
        A('s_sub_u32 %s, %s, 1' % (s(sSpin), s(sSpin)))
        A('s_cmp_gt_i32 %s, 0' % s(sSpin))
        A('s_cbranch_scc0 %s' % L('mok%d' % m))
        mload(m)
        A('s_waitcnt vmcnt(0)')
        check_a(m)
        check_b(m)
        A('s_cbranch_scc1 %s' % L('retry%d' % m))
        A('s_branch %s' % L('mok%d' % m))
    A.label(L('rretry'))
    if stamps:
        A('s_add_u32 %s, %s, 1' % (s(sST + 4 + 9), s(sST + 4 + 9)))
    A('s_sub_u32 %s, %s, 1' % (s(sSpin), s(sSpin)))
    A('s_cmp_gt_i32 %s, 0' % s(sSpin))
    A('s_cbranch_scc0 %s' % L('rok'))
    A('s_branch %s' % L('rpoll'))

    A.label(L('done'))
    if 'done' in opt:
        opt['done'](A)
    if stamps:
        A('s_memrealtime %s' % s(sST + 2, 2))
        A('s_waitcnt lgkmcnt(0)')
        A('s_sub_u32 %s, %s, %s' % (s(sST + 4 + 11), s(sST + 2), s(sST + 4 + 11)))
        A('s_lshl_b32 %s, %s, 2' % (s(sT0), s(sH)))
        A('s_add_u32 %s, %s, s4' % (s(sT0), s(sT0)))
        A('s_lshl_b32 %s, %s, 6' % (s(sT0), s(sT0)))
        A('s_add_u32 %s, %s, 0x%x' % (s(sT0), s(sT0), STAMP_OFF))
        A('s_mov_b64 exec, 1')
        for i in range(12):
            A('v_mov_b32 v20, %s' % s(sST + 4 + i))
            A('buffer_store_dword v20, off, %s, %s offset:%d' % (WS, s(sT0), 4 * i))
            A('s_nop 1')
    A('s_waitcnt vmcnt(0)')
    A('s_endpgm')
```

```python
import math
from asmlib import v, a, s
from layout import *
from role_r import Stream, srd, f2u, SRD_WS, SRD_DBG, SRD_A, SRD_B, SRD_C

WS = s(SRD_WS, 4)
sID, sItem, sSrc, sDst, sFlag, sSpin, sPLO, sPHI = range(28, 36)
sT0, sT1, sT2, sT3 = 36, 37, 38, 39
sBuf, sNeed, sFl2, sSrc2, sC, sHI = 40, 41, 42, 43, 44, 45
sMASK = 46
XBUF = 36864


def wf4(f):
    return ('a', 4 * f) if f < 64 else ('v', 80 + 4 * (f - 64))


def rg(t, n=1, off=0):
    return a(t[1] + off, n) if t[0] == 'a' else v(t[1] + off, n)


def put(A, dst, src):
    A('%s %s, v%d' % ('v_accvgpr_write_b32' if dst[0] == 'a' else 'v_mov_b32', dst, src))


def lane_consts(A):
    A('v_and_b32 v20, 63, v0')
    A('v_and_b32 v21, 15, v20')
    A('v_lshrrev_b32 v22, 4, v20')
    A('v_lshlrev_b32 v1, 4, v20')
    A('s_mov_b32 %s, 0x05040100' % s(sPLO))
    A('s_mov_b32 %s, 0x07060302' % s(sPHI))
    A('s_mov_b32 %s, 0xffff0000' % s(sHI))
    A('s_mov_b32 %s, %d' % (s(sSpin), 400000))


def stage_consts(A, vsrc, vxa0, vxa1):
    A('v_lshrrev_b32 v23, 3, v20')
    A('s_lshl_b32 %s, s4, 3' % s(sT0))
    A('v_add_u32 v23, %s, v23' % s(sT0))
    A('v_bfe_u32 v24, v23, 1, 3')
    A('v_and_b32 v25, 7, v20')
    A('v_xor_b32 v24, v24, v25')
    A('v_mul_u32_u24 v23, 1152, v23')
    A('v_lshl_add_u32 v%d, v24, 4, v23' % vsrc)
    A('v_lshrrev_b32 v23, 3, v21')
    A('v_lshlrev_b32 v23, 10, v23')
    A('v_and_b32 v24, 7, v21')
    A('v_lshl_add_u32 v23, v24, 7, v23')
    A('v_bfe_u32 v24, v21, 1, 3')
    A('v_xor_b32 v24, v24, v22')
    A('v_lshl_add_u32 v%d, v24, 4, v23' % vxa0)
    A('v_xor_b32 v%d, 64, v%d' % (vxa1, vxa0))


def stage_issue(A, vsrc, ssrc, sbuf):
    A('s_lshl_b32 %s, s4, 10' % s(sT0))
    A('s_add_u32 m0, %s, %s' % (s(sT0), s(sbuf)))
    for cb in range(9):
        if cb:
            A('s_add_u32 m0, m0, %d' % (4096 - 128))
        A('buffer_load_dwordx4 v%d, %s, %s offen offset:%d sc1 lds' % (vsrc, WS, s(ssrc), 128 * cb))


def poll(A, sflagoff, nlanes, sneed, vt, enable=True):
    if not enable:
        return
    l0, l1 = A.newlabel('poll'), A.newlabel('pollok')
    A('v_lshrrev_b32 v%d, 2, v1' % (vt + 1))
    m = (1 << nlanes) - 1
    A('s_mov_b32 exec_lo, 0x%x' % (m & 0xffffffff))
    A('s_mov_b32 exec_hi, 0x%x' % (m >> 32))
    A.label(l0)
    A('buffer_load_dword v%d, v%d, %s, %s offen sc1' % (vt, vt + 1, WS, s(sflagoff)))
    A('s_waitcnt vmcnt(0)')
    A('v_cmp_gt_u32 vcc, %s, v%d' % (s(sneed), vt))
    A('s_cbranch_vccz %s' % l1)
    A('s_sleep 2')
    A('s_sub_u32 %s, %s, 1' % (s(sSpin), s(sSpin)))
    A('s_cmp_gt_i32 %s, 0' % s(sSpin))
    A('s_cbranch_scc1 %s' % l0)
    A.label(l1)
    A('s_mov_b64 exec, -1')


def signal(A, sflagoff, sval, vt):
    A('s_waitcnt vmcnt(0)')
    A('s_barrier')
    l = A.newlabel('nosig')
    A('s_cmp_lg_u32 s4, 0')
    A('s_cbranch_scc1 %s' % l)
    A('v_mov_b32 v%d, %s' % (vt, s(sval)))
    A('s_mov_b64 exec, 1')
    A('buffer_store_dword v%d, off, %s, %s sc1' % (vt, WS, s(sflagoff)))
    A('s_mov_b64 exec, -1')
    A.label(l)


def mfma(A, d, x, y, c):
    A('v_mfma_f32_16x16x32_bf16 %s, %s, %s, %s' % (d, x, y, c))


def load_cols2(A, st, srdreg, voff, stride, frag, nks, raw, nt):
    def issue(ks):
        for j in range(8):
            A('s_mov_b32 %s, %d' % (s(sT0), (32 * ks + j) * stride))
            A('buffer_load_dword v%d, v%d, %s, %s offen%s' % (raw(ks) + j, voff, s(srdreg, 4), s(sT0), nt))

    def consume(ks):
        for t in range(2):
            for r in range(4):
                d = frag(ks, t)
                if d[0] == 'a':
                    tmp = 24 + 4 * t + r
                    A('v_perm_b32 v%d, v%d, v%d, %s' % (tmp, raw(ks) + 2 * r + 1, raw(ks) + 2 * r, s(sPHI if t else sPLO)))
                    put(A, rg(d, 1, r), tmp)
                else:
                    A('v_perm_b32 %s, v%d, v%d, %s' % (rg(d, 1, r), raw(ks) + 2 * r + 1, raw(ks) + 2 * r, s(sPHI if t else sPLO)))
    for ks in range(nks):
        st.add(8, lambda ks=ks: issue(ks), lambda ks=ks: consume(ks), range(raw(ks), raw(ks) + 8))


def load_cols4(A, st, srdreg, voff, stride, frag, nks, raw, nt):
    def issue(ks):
        for j in range(8):
            A('s_mov_b32 %s, %d' % (s(sT0), (32 * ks + j) * stride))
            A('buffer_load_dwordx2 %s, v%d, %s, %s offen%s' % (v(raw(ks) + 2 * j, 2), voff, s(srdreg, 4), s(sT0), nt))

    def consume(ks):
        for t in range(4):
            for r in range(4):
                d = frag(ks, t)
                lo, hi = raw(ks) + 4 * r + (t >> 1), raw(ks) + 4 * r + 2 + (t >> 1)
                sel = s(sPHI if t & 1 else sPLO)
                if d[0] == 'a':
                    tmp = 24 + 4 * (t & 1) + r
                    A('v_perm_b32 v%d, v%d, v%d, %s' % (tmp, hi, lo, sel))
                    put(A, rg(d, 1, r), tmp)
                else:
                    A('v_perm_b32 %s, v%d, v%d, %s' % (rg(d, 1, r), hi, lo, sel))
    for ks in range(nks):
        st.add(8, lambda ks=ks: issue(ks), lambda ks=ks: consume(ks), range(raw(ks), raw(ks) + 16))


def load_out(A, st, srdreg, voff16, voff2, frag, nks, raw, nt):
    def issue(ks):
        for h in range(2):
            A('s_mov_b32 %s, %d' % (s(sT0), (32 * ks + 4 * h) * ROWB))
            for j in range(4):
                A('buffer_load_dwordx4 %s, v%d, %s, %s offen offset:%d%s' % (
                    v(raw(ks) + 4 * (4 * h + j), 4), voff16, s(srdreg, 4), s(sT0), j * ROWB, nt))
            for j in range(4):
                A('buffer_load_ushort v%d, v%d, %s, %s offen offset:%d%s' % (
                    raw(ks) + 32 + 4 * h + j, voff2, s(srdreg, 4), s(sT0), j * ROWB, nt))

    def consume(ks):
        for j in range(9):
            for r in range(4):
                d = frag(ks, j)
                tmp = 24 + 4 * (j & 1) + r
                dst = 'v%d' % tmp if d[0] == 'a' else rg(d, 1, r)
                if j < 8:
                    A('v_perm_b32 %s, v%d, v%d, %s' % (dst, raw(ks) + 8 * r + 4 + (j >> 1), raw(ks) + 8 * r + (j >> 1),
                                                      s(sPHI if j & 1 else sPLO)))
                else:
                    A('v_lshl_or_b32 %s, v%d, 16, v%d' % (dst, raw(ks) + 32 + 2 * r + 1, raw(ks) + 32 + 2 * r))
                if d[0] == 'a':
                    put(A, rg(d, 1, r), tmp)
    for ks in range(nks):
        st.add(16, lambda ks=ks: issue(ks), lambda ks=ks: consume(ks), range(raw(ks), raw(ks) + 40))


def out_consts(A, srow0, v16, v2):
    A('v_lshlrev_b32 v23, 3, v22')
    A('v_add_u32 v23, %s, v23' % s(srow0))
    A('s_mov_b32 %s, 1152' % s(sT1))
    A('v_mul_lo_u32 v23, v23, %s' % s(sT1))
    A('s_lshl_b32 %s, s4, 8' % s(sT0))
    A('v_lshl_add_u32 v24, v21, 4, v23')
    A('v_add_u32 v%d, %s, v24' % (v16, s(sT0)))
    A('s_lshl_b32 %s, s4, 5' % s(sT0))
    A('s_add_u32 %s, %s, 1024' % (s(sT0), s(sT0)))
    A('v_lshl_add_u32 v24, v21, 1, v23')
    A('v_add_u32 v%d, %s, v24' % (v2, s(sT0)))


def pstore_consts(A, tokstride, vp, vp8):
    A('s_mov_b32 %s, %d' % (s(sT1), 4 * tokstride))
    A('v_mul_lo_u32 v23, v22, %s' % s(sT1))
    A('v_lshl_add_u32 v23, v21, 4, v23')
    A('s_lshl_b32 %s, s4, 8' % s(sT0))
    A('v_add_u32 v%d, %s, v23' % (vp, s(sT0)))
    A('s_mov_b32 %s, %d' % (s(sT1), tokstride))
    A('v_mul_lo_u32 v23, v21, %s' % s(sT1))
    A('v_lshl_add_u32 v23, v22, 3, v23')
    A('s_lshl_b32 %s, s4, 5' % s(sT0))
    A('s_add_u32 %s, %s, 1024' % (s(sT0), s(sT0)))
    A('v_add_u32 v%d, %s, v23' % (vp8, s(sT0)))


def out_gemm(A, nks, frag, vla, ldsoff, XF, ACC, OUT, vp, vp8, sdst, tokstride):
    for aa in range(2):
        for ks in range(nks):
            A('ds_read_b128 %s, v%d offset:%d' % (v(XF + 4 * ks, 4), vla, ldsoff + (2 * ks + aa) * 1024))
        for ks in range(nks):
            A('s_waitcnt lgkmcnt(%d)' % (nks - 1 - ks))
            for j in range(9):
                c = '0' if ks == 0 else v(ACC + 4 * j, 4)
                if j < 8:
                    mfma(A, v(ACC + 4 * j, 4), v(XF + 4 * ks, 4), rg(frag(ks, j), 4), c)
                else:
                    mfma(A, v(ACC + 4 * j, 4), rg(frag(ks, j), 4), v(XF + 4 * ks, 4), c)
        for i in range(4):
            o = OUT + 4 * (i & 1)
            for q in range(4):
                A('v_cvt_pk_bf16_f32 v%d, v%d, v%d' % (o + q, ACC + 8 * q + i, ACC + 8 * q + 4 + i))
            A('s_add_u32 %s, %s, %d' % (s(sT0), s(sdst), (16 * aa + i) * tokstride))
            A('buffer_store_dwordx4 %s, v%d, %s, %s offen sc1' % (v(o, 4), vp, WS, s(sT0)))
        A('v_cvt_pk_bf16_f32 v%d, v%d, v%d' % (ACC + 32, ACC + 32, ACC + 33))
        A('v_cvt_pk_bf16_f32 v%d, v%d, v%d' % (ACC + 33, ACC + 34, ACC + 35))
        A('s_add_u32 %s, %s, %d' % (s(sT0), s(sdst), 16 * aa * tokstride))
        A('buffer_store_dwordx2 %s, v%d, %s, %s offen sc1' % (v(ACC + 32, 2), vp8, WS, s(sT0)))


def xloop(A, vxa0, vxa1, XF, body):
    def rd(ks):
        b = XF + 8 * (ks & 1)
        for aa in range(2):
            A('ds_read_b128 %s, v%d offset:%d' % (v(b + 4 * aa, 4), vxa1 if ks & 1 else vxa0, (ks >> 1) * 4096 + aa * 2048))
    rd(0)
    rd(1)
    for ks in range(18):
        A('s_waitcnt lgkmcnt(%d)' % (2 if ks < 17 else 0))
        b = XF + 8 * (ks & 1)
        body(ks, b, b + 4)
        if ks + 2 < 18:
            rd(ks + 2)


def gen_A1(A, opt):
    nt = ' nt' if opt.get('nt', True) else ''
    flags = opt.get('flags', True)
    A.label('A1_entry')
    vSrc, vXA0, vXA1, vQK = 2, 3, 4, 5
    lane_consts(A)
    stage_consts(A, vSrc, vXA0, vXA1)
    sH, sP = sFl2, sSrc2
    A('s_and_b32 %s, %s, 31' % (s(sH), s(sID)))
    A('s_lshr_b32 %s, %s, 5' % (s(sP), s(sID)))
    A('s_load_dwordx2 %s, s[0:1], %d' % (s(SRD_B, 2), K_WQ))
    A('s_load_dwordx2 %s, s[0:1], %d' % (s(sT2, 2), K_WK))
    A('s_mov_b32 %s, 0x%x' % (s(SRD_B + 2), 576 * 8192))
    A('s_mov_b32 %s, 0x20000' % s(SRD_B + 3))
    srd(A, SRD_C, K_WV, 576 * 8192)
    A('v_lshlrev_b32 v23, 16, v22')
    A('s_lshl_b32 %s, %s, 8' % (s(sT0), s(sH)))
    A('v_add_u32 v23, %s, v23' % s(sT0))
    A('s_and_b32 %s, s4, 1' % s(sT0))
    A('s_lshl_b32 %s, %s, 7' % (s(sT0), s(sT0)))
    A('v_lshl_add_u32 v24, v21, 3, v23')
    A('v_add_u32 v6, %s, v24' % s(sT0))
    A('s_lshl_b32 %s, s4, 6' % s(sT0))
    A('v_lshl_add_u32 v24, v21, 2, v23')
    A('v_add_u32 v7, %s, v24' % s(sT0))
    A('v_lshrrev_b32 v23, 1, v22')
    A('v_lshlrev_b32 v23, 11, v23')
    A('v_and_b32 v24, 1, v22')
    A('v_lshl_add_u32 v23, v24, 9, v23')
    A('v_lshl_add_u32 v23, v21, 4, v23')
    A('s_lshl_b32 %s, s4, 12' % s(sT0))
    A('v_add_u32 v%d, %s, v23' % (vQK, s(sT0)))
    A('s_waitcnt lgkmcnt(0)')
    A('s_cmp_lt_u32 s4, 2')
    A('s_cselect_b32 %s, %s, %s' % (s(SRD_B), s(SRD_B), s(sT2)))
    A('s_cselect_b32 %s, %s, %s' % (s(SRD_B + 1), s(SRD_B + 1), s(sT2 + 1)))
    fqk = lambda ks, t: wf4(4 * ks + t)
    fv = lambda ks, t: wf4(72 + 2 * ks + t)
    st = Stream(A, 60)
    load_cols4(A, st, SRD_B, 6, 8192, fqk, 18, lambda ks: 128 + 16 * (ks % 8), nt)
    load_cols2(A, st, SRD_C, 7, 8192, fv, 18, lambda ks: 32 + 8 * (ks % 6), nt)
    st.run()
    A('s_mov_b32 %s, 0' % s(sItem))
    A('s_mul_i32 %s, %s, %d' % (s(sSrc), s(sP), 32 * ROWB))
    A('s_add_u32 %s, %s, 0x%x' % (s(sSrc), s(sSrc), H1_OFF))
    A('s_lshl_b32 %s, %s, 5' % (s(sT0), s(sP)))
    A('s_add_u32 %s, %s, %s' % (s(sT0), s(sT0), s(sH)))
    A('s_mul_i32 %s, %s, %d' % (s(sDst), s(sT0), QKV_BLK))
    A('s_add_u32 %s, %s, 0x%x' % (s(sDst), s(sDst), QKV_OFF))
    A('s_lshl_b32 %s, %s, 3' % (s(sFlag), s(sH)))
    A('s_lshl_b32 %s, %s, 2' % (s(sT0), s(sP)))
    A('s_add_u32 %s, %s, %s' % (s(sFlag), s(sFlag), s(sT0)))
    A('s_add_u32 %s, %s, 0x%x' % (s(sFlag), s(sFlag), FLAG_OFF + F_A1))
    A('s_mov_b32 %s, 0' % s(sBuf))
    if 'wait_h1' in opt:
        opt['wait_h1'](A)
    stage_issue(A, vSrc, sSrc, sBuf)
    A('s_waitcnt vmcnt(0)')
    A('s_barrier')
    XF, ACC = 8, 24
    A.label('A1_loop')
    A('s_xor_b32 %s, %s, %d' % (s(sBuf), s(sBuf), XBUF))
    A('s_add_u32 %s, %s, %d' % (s(sSrc), s(sSrc), 64 * ROWB))
    A('s_cmp_lt_u32 %s, 31' % s(sItem))
    A('s_cselect_b32 %s, %s, 0x%x' % (s(sT1), s(sSrc), OOB))
    stage_issue(A, vSrc, sT1, sBuf)

    def body(ks, f0, f1):
        for aa, f in enumerate((f0, f1)):
            for t in range(4):
                d = v(ACC + 4 * (4 * aa + t), 4)
                mfma(A, d, rg(fqk(ks, t), 4), v(f, 4), '0' if ks == 0 else d)
            for t in range(2):
                d = v(ACC + 32 + 4 * (2 * t + aa), 4)
                mfma(A, d, v(f, 4), rg(fv(ks, t), 4), '0' if ks == 0 else d)
    xloop(A, vXA0, vXA1, XF, body)
    A('s_lshl_b32 %s, %s, 1' % (s(sT0), s(sBuf)))
    A('s_sub_u32 %s, %s, %d' % (s(sT0), s(sT0), XBUF))
    A('v_add_u32 v%d, %s, v%d' % (vXA0, s(sT0), vXA0))
    A('v_add_u32 v%d, %s, v%d' % (vXA1, s(sT0), vXA1))
    k = 0
    for aa in range(2):
        T = [ACC + 4 * (4 * aa + t) for t in range(4)]
        for c in range(2):
            o = 72 + 4 * (k & 1)
            k += 1
            for ii in range(2):
                i = 2 * c + ii
                A('v_cvt_pk_bf16_f32 v%d, v%d, v%d' % (o + 2 * ii, T[0] + i, T[1] + i))
                A('v_cvt_pk_bf16_f32 v%d, v%d, v%d' % (o + 2 * ii + 1, T[2] + i, T[3] + i))
            A('buffer_store_dwordx4 %s, v%d, %s, %s offen offset:%d sc1' % (v(o, 4), vQK, WS, s(sDst), aa * 1024 + c * 256))
    A('s_lshl_b32 %s, s4, 11' % s(sT0))
    A('s_add_u32 %s, %s, %s' % (s(sT0), s(sT0), s(sDst)))
    A('s_add_u32 %s, %s, 16384' % (s(sT0), s(sT0)))
    for t in range(2):
        o = 72 + 4 * (k & 1)
        k += 1
        b = ACC + 32 + 8 * t
        for q in range(4):
            A('v_cvt_pk_bf16_f32 v%d, v%d, v%d' % (o + q, b + 2 * q, b + 2 * q + 1))
        A('buffer_store_dwordx4 %s, v1, %s, %s offen offset:%d sc1' % (v(o, 4), WS, s(sT0), t * 1024))
    A('s_add_u32 %s, %s, 1' % (s(sItem), s(sItem)))
    A('s_add_u32 %s, %s, %d' % (s(sDst), s(sDst), 2 * NH * QKV_BLK))
    signal(A, sFlag, sItem, 8)
    A('s_cmp_lt_u32 %s, 32' % s(sItem))
    A('s_cbranch_scc1 A1_loop')
    A('s_waitcnt vmcnt(0)')
    A('s_endpgm')


def round_pair(A, x, y, t):
    A('v_cvt_pk_bf16_f32 v%d, v%d, v%d' % (t, x, y))
    A('v_lshlrev_b32 v%d, 16, v%d' % (x, t))
    A('v_and_b32 v%d, %s, v%d' % (y, s(sHI), t))


def gen_A2(A, opt):
    nt = ' nt' if opt.get('nt', True) else ''
    flags = opt.get('flags', True)
    A.label('A2_entry')
    vP, vP8, vKM, vVM, vMask = 2, 3, 4, 5, 6
    TOK = 16 * ROWB
    lane_consts(A)
    sHP, sP = 48, 49
    A('s_and_b32 %s, %s, 15' % (s(sHP), s(sID)))
    A('s_lshr_b32 %s, %s, 4' % (s(sP), s(sID)))
    srd(A, SRD_A, K_WO, 4096 * ROWB)
    A('s_lshl_b32 %s, %s, 8' % (s(sT2), s(sHP)))
    out_consts(A, sT2, 8, 9)
    pstore_consts(A, TOK, vP, vP8)
    A('v_lshrrev_b32 v23, 2, v21')
    A('v_lshlrev_b32 v23, 8, v23')
    A('v_lshl_add_u32 v23, v22, 5, v23')
    A('v_and_b32 v24, 1, v21')
    A('v_lshl_add_u32 v%d, v24, 3, v23' % vKM)
    A('s_and_b32 %s, s4, 1' % s(sT0))
    A('s_lshl_b32 %s, %s, 4' % (s(sT0), s(sT0)))
    A('v_lshlrev_b32 v23, 2, v22')
    A('v_sub_u32 v23, v21, v23')
    A('v_add_u32 v%d, %s, v23' % (vMask, s(sT0)))
    A('s_waitcnt lgkmcnt(0)')
    fo = lambda ks, j: wf4(9 * ks + j)
    st = Stream(A, 60)
    load_out(A, st, SRD_A, 8, 9, fo, 8, lambda ks: 112 + 40 * (ks % 3), nt)
    st.run()
    CM = 112
    A('v_mov_b32 v23, 0xff800000')
    for ap in range(2):
        for i in range(4):
            A('v_cmp_gt_i32 vcc, %d, v%d' % (16 * ap + i, vMask))
            A('v_cndmask_b32 v%d, 0, v23, vcc' % (CM + 4 * ap + i))
    A('s_mov_b32 %s, 0x%x' % (s(sC), f2u(math.log2(math.e))))
    sScale = 50
    A('s_mov_b32 %s, 0x%x' % (s(sScale), f2u(128 ** -0.5)))
    A('s_mov_b32 %s, 0' % s(sItem))
    A('s_lshr_b32 %s, s4, 1' % s(sT0))
    A('s_lshl_b32 %s, %s, 1' % (s(sT1), s(sHP)))
    A('s_add_u32 %s, %s, %s' % (s(sT1), s(sT1), s(sT0)))
    A('s_lshl_b32 %s, %s, 5' % (s(sT0), s(sP)))
    A('s_add_u32 %s, %s, %s' % (s(sT0), s(sT0), s(sT1)))
    A('s_mul_i32 %s, %s, %d' % (s(sSrc), s(sT0), QKV_BLK))
    A('s_add_u32 %s, %s, 0x%x' % (s(sSrc), s(sSrc), QKV_OFF))
    A('s_lshl_b32 %s, %s, 13' % (s(sSrc2), s(sT0)))
    A('s_add_u32 %s, %s, 0x%x' % (s(sSrc2), s(sSrc2), KVM_OFF))
    sFA1, sFR = 51, 52
    A('s_lshl_b32 %s, %s, 3' % (s(sFA1), s(sT1)))
    A('s_lshl_b32 %s, %s, 2' % (s(sT0), s(sP)))
    A('s_add_u32 %s, %s, %s' % (s(sFA1), s(sFA1), s(sT0)))
    A('s_add_u32 %s, %s, 0x%x' % (s(sFA1), s(sFA1), FLAG_OFF + F_A1))
    A('s_lshl_b32 %s, %s, 2' % (s(sFR), s(sT1)))
    A('s_add_u32 %s, %s, 0x%x' % (s(sFR), s(sFR), FLAG_OFF + F_R))
    A('s_mul_i32 %s, %s, %d' % (s(sDst), s(sP), 32 * TOK))
    A('s_mul_i32 %s, %s, %d' % (s(sT0), s(sHP), ROWB))
    A('s_add_u32 %s, %s, %s' % (s(sDst), s(sDst), s(sT0)))
    A('s_add_u32 %s, %s, 0x%x' % (s(sDst), s(sDst), P2_OFF))
    A('s_lshl_b32 %s, %s, 2' % (s(sFlag), s(sID)))
    A('s_add_u32 %s, %s, 0x%x' % (s(sFlag), s(sFlag), FLAG_OFF + F_A2))
    Q, K, V, KM, VM = 120, 136, 168, 200, 216
    S, P, O = 224, 236, 8
    A.label('A2_loop')
    A('s_add_u32 %s, %s, 1' % (s(sNeed), s(sItem)))
    poll(A, sFA1, 1, sNeed, 40, flags)
    A('s_and_b32 %s, s4, 1' % s(sT0))
    A('s_lshl_b32 %s, %s, 10' % (s(sT0), s(sT0)))
    A('s_add_u32 %s, %s, %s' % (s(sT0), s(sT0), s(sSrc)))
    A('s_add_u32 %s, %s, 4096' % (s(sT1), s(sT0)))
    for m in range(4):
        A('buffer_load_dwordx4 %s, v1, %s, %s offen offset:%d sc1' % (v(Q + 4 * m, 4), WS, s(sT1 if m >= 2 else sT0), 2048 * (m & 1)))
    for blk in range(4):
        A('s_add_u32 %s, %s, %d' % (s(sT0), s(sSrc), 8192 + 4096 * blk))
        for i in range(4):
            A('buffer_load_dwordx4 %s, v1, %s, %s offen offset:%d sc1' % (v(K + 16 * blk + 4 * i, 4), WS, s(sT0), 1024 * i))
    A('s_waitcnt vmcnt(8)')
    for m in range(4):
        for ap in range(2):
            d = v(S + 4 * ap, 4)
            mfma(A, d, v(K + 8 * m + 4 * ap, 4), v(Q + 4 * m, 4), v(CM + 4 * ap, 4) if m == 0 else d)
    A('s_lshl_b32 %s, %s, 1' % (s(sNeed), s(sItem)))
    A('s_add_u32 %s, %s, %s' % (s(sNeed), s(sNeed), s(sP)))
    A('s_add_u32 %s, %s, 1' % (s(sNeed), s(sNeed)))
    poll(A, sFR, 1, sNeed, 40, flags)
    A('s_add_u32 %s, %s, 4096' % (s(sT0), s(sSrc2)))
    for m in range(4):
        for c in range(2):
            A('buffer_load_dwordx2 %s, v%d, %s, %s offen offset:%d sc1' % (
                v(KM + 4 * m + 2 * c, 2), vKM, WS, s(sT0), (m >> 1) * 2048 + (8 * (m & 1) + c) * 16))
    for w in range(4):
        A('buffer_load_dwordx2 %s, v1, %s, %s offen offset:%d sc1' % (
            v(VM + 2 * w, 2), WS, s(sT0 if w >= 2 else sSrc2), (w & 1) * 2048 + 1024))
    A('s_waitcnt vmcnt(4)')
    for m in range(4):
        d = v(S + 8, 4)
        mfma(A, d, v(KM + 4 * m, 4), v(Q + 4 * m, 4), '0' if m == 0 else d)
    sv = [S + i for i in range(10)]
    for i in range(0, 10, 2):
        round_pair(A, sv[i], sv[i + 1], 40 + i // 2)
    for x in sv:
        A('v_mul_f32 v%d, %s, v%d' % (x, s(sScale), x))
    for i in range(0, 10, 2):
        round_pair(A, sv[i], sv[i + 1], 40 + i // 2)
    A('v_max3_f32 v40, v%d, v%d, v%d' % tuple(sv[0:3]))
    A('v_max3_f32 v41, v%d, v%d, v%d' % tuple(sv[3:6]))
    A('v_max3_f32 v40, v40, v%d, v%d' % tuple(sv[6:8]))
    A('v_max3_f32 v41, v41, v%d, v%d' % tuple(sv[8:10]))
    A('v_max_f32 v42, v40, v41')
    A('v_max_f32 v43, v40, v41')
    A('v_permlane16_swap_b32 v42, v43')
    A('v_max_f32 v40, v42, v43')
    A('v_max_f32 v41, v42, v43')
    A('v_permlane32_swap_b32 v40, v41')
    A('v_max_f32 v42, v40, v41')
    for x in sv:
        A('v_sub_f32 v%d, v%d, v42' % (x, x))
    for x in sv:
        A('v_mul_f32 v%d, %s, v%d' % (x, s(sC), x))
    for x in sv:
        A('v_exp_f32 v%d, v%d' % (x, x))
    A('v_add_f32 v40, v%d, v%d' % (sv[0], sv[1]))
    A('v_add_f32 v41, v%d, v%d' % (sv[2], sv[3]))
    for i in range(4, 10, 2):
        A('v_add_f32 v40, v40, v%d' % sv[i])
        A('v_add_f32 v41, v41, v%d' % sv[i + 1])
    A('v_add_f32 v42, v40, v41')
    A('v_add_f32 v43, v40, v41')
    A('v_permlane16_swap_b32 v42, v43')
    A('v_add_f32 v40, v42, v43')
    A('v_add_f32 v41, v42, v43')
    A('v_permlane32_swap_b32 v40, v41')
    A('v_add_f32 v42, v40, v41')
    A('v_rcp_f32 v42, v42')
    for x in sv:
        A('v_mul_f32 v%d, v%d, v42' % (x, x))
    for i in range(4):
        A('v_cvt_pk_bf16_f32 v%d, v%d, v%d' % (P + i, sv[2 * i], sv[2 * i + 1]))
    A('v_cvt_pk_bf16_f32 v%d, v%d, v%d' % (P + 4, sv[8], sv[9]))
    A('v_mov_b32 v%d, 0' % (P + 5))
    A('v_mov_b32 v%d, 0' % (P + 6))
    A('v_mov_b32 v%d, v%d' % (P + 7, P + 4))
    A('s_waitcnt vmcnt(0)')
    for tl in range(8):
        mfma(A, v(O + 4 * tl, 4), v(V + 4 * tl, 4), v(P, 4), '0')
    for tl in range(8):
        A('v_mfma_f32_16x16x16_bf16 %s, %s, %s, %s' % (v(O + 4 * tl, 4), v(VM + 2 * (tl >> 1), 2), v(P + 4 + 2 * (tl & 1), 2), v(O + 4 * tl, 4)))
    A('s_lshr_b32 %s, s4, 1' % s(sT0))
    A('s_lshl_b32 %s, %s, 13' % (s(sT0), s(sT0)))
    A('s_and_b32 %s, s4, 1' % s(sT1))
    A('s_lshl_b32 %s, %s, 10' % (s(sT1), s(sT1)))
    A('s_add_u32 %s, %s, %s' % (s(sT0), s(sT0), s(sT1)))
    A('v_add_u32 v40, %s, v1' % s(sT0))
    for w in range(4):
        o = 44 + 4 * w
        for i in range(4):
            A('v_cvt_pk_bf16_f32 v%d, v%d, v%d' % (o + i, O + 8 * w + i, O + 8 * w + 4 + i))
        A('ds_write_b128 v40, %s offset:%d' % (v(o, 4), 2048 * w))
    A('s_waitcnt lgkmcnt(0)')
    A('s_barrier')
    out_gemm(A, 8, fo, 1, 0, K, 8, 44, vP, vP8, sDst, TOK)
    A('s_add_u32 %s, %s, 1' % (s(sItem), s(sItem)))
    A('s_add_u32 %s, %s, %d' % (s(sSrc), s(sSrc), 2 * NH * QKV_BLK))
    A('s_add_u32 %s, %s, %d' % (s(sSrc2), s(sSrc2), 2 * NH * KVM_BLK))
    A('s_add_u32 %s, %s, %d' % (s(sDst), s(sDst), 64 * TOK))
    signal(A, sFlag, sItem, 40)
    A('s_cmp_lt_u32 %s, 32' % s(sItem))
    A('s_cbranch_scc1 A2_loop')
    A('s_waitcnt vmcnt(0)')
    A('s_endpgm')


def gen_DE(A, opt):
    nt = ' nt' if opt.get('nt', True) else ''
    flags = opt.get('flags', True)
    A.label('DE_entry')
    vSrc, vXA0, vXA1, vP, vP8, vHW = 2, 3, 4, 5, 6, 7
    TOK = 36 * ROWB
    L_H = XBUF
    lane_consts(A)
    stage_consts(A, vSrc, vXA0, vXA1)
    sF, sP = 48, 49
    A('s_cmp_ge_u32 %s, 36' % s(sID))
    A('s_cselect_b32 %s, 1, 0' % s(sP))
    A('s_mul_i32 %s, %s, 36' % (s(sT0), s(sP)))
    A('s_sub_u32 %s, %s, %s' % (s(sF), s(sID), s(sT0)))
    srd(A, SRD_A, K_WD, 4608 * ROWB)
    srd(A, SRD_B, K_WG, 576 * 9216)
    srd(A, SRD_C, K_WU, 576 * 9216)
    A('s_lshl_b32 %s, %s, 7' % (s(sT2), s(sF)))
    out_consts(A, sT2, 8, 9)
    pstore_consts(A, TOK, vP, vP8)
    A('s_mov_b32 %s, %d' % (s(sT1), 8 * 9216))
    A('v_mul_lo_u32 v23, v22, %s' % s(sT1))
    A('v_lshl_add_u32 v23, v21, 2, v23')
    A('s_lshl_b32 %s, %s, 8' % (s(sT0), s(sF)))
    A('s_lshl_b32 %s, s4, 6' % s(sT1))
    A('s_add_u32 %s, %s, %s' % (s(sT0), s(sT0), s(sT1)))
    A('v_add_u32 v10, %s, v23' % s(sT0))
    A('s_lshl_b32 %s, s4, 11' % s(sT0))
    A('s_add_u32 %s, %s, %d' % (s(sT0), s(sT0), L_H))
    A('v_add_u32 v%d, %s, v1' % (vHW, s(sT0)))
    A('s_waitcnt lgkmcnt(0)')
    if 'pre_weights' in opt:
        opt['pre_weights'](A)
    fd = lambda ks, j: wf4(9 * ks + j)
    fg = lambda ks, t: wf4(36 + 2 * ks + t)
    fu = lambda ks, t: wf4(72 + 2 * ks + t)
    st = Stream(A, 60)
    load_out(A, st, SRD_A, 8, 9, fd, 4, lambda ks: 112 + 40 * (ks % 3), nt)
    load_cols2(A, st, SRD_B, 10, 9216, fg, 18, lambda ks: 32 + 8 * (ks % 6), nt)
    load_cols2(A, st, SRD_C, 10, 9216, fu, 18, lambda ks: 32 + 8 * (ks % 6), nt)
    st.run()
    A('s_mov_b32 %s, 0' % s(sItem))
    A('s_mul_i32 %s, %s, %d' % (s(sSrc), s(sP), 32 * ROWB))
    A('s_add_u32 %s, %s, 0x%x' % (s(sSrc), s(sSrc), H2_OFF))
    A('s_mul_i32 %s, %s, %d' % (s(sDst), s(sP), 32 * TOK))
    A('s_mul_i32 %s, %s, %d' % (s(sT0), s(sF), ROWB))
    A('s_add_u32 %s, %s, %s' % (s(sDst), s(sDst), s(sT0)))
    A('s_add_u32 %s, %s, 0x%x' % (s(sDst), s(sDst), P3_OFF))
    A('s_lshl_b32 %s, %s, 8' % (s(sFlag), s(sP)))
    A('s_lshl_b32 %s, %s, 2' % (s(sT0), s(sF)))
    A('s_add_u32 %s, %s, %s' % (s(sFlag), s(sFlag), s(sT0)))
    A('s_add_u32 %s, %s, 0x%x' % (s(sFlag), s(sFlag), FLAG_OFF + F_DE))
    A('s_mov_b32 %s, 0x%x' % (s(sFl2), FLAG_OFF + F_C))
    A('s_mov_b32 %s, 0' % s(sBuf))
    XF, ACC = 8, 24
    A.label('DE_loop')
    A('s_lshl_b32 %s, %s, 1' % (s(sNeed), s(sItem)))
    A('s_add_u32 %s, %s, %s' % (s(sNeed), s(sNeed), s(sP)))
    A('s_add_u32 %s, %s, 1' % (s(sNeed), s(sNeed)))
    poll(A, sFl2, 32, sNeed, 8, flags)
    stage_issue(A, vSrc, sSrc, sBuf)
    A('s_waitcnt vmcnt(0)')
    A('s_barrier')

    def body(ks, f0, f1):
        for aa, f in enumerate((f0, f1)):
            for mt, fr in enumerate((fg, fu)):
                for t in range(2):
                    d = v(ACC + 4 * (4 * aa + 2 * mt + t), 4)
                    mfma(A, d, rg(fr(ks, t), 4), v(f, 4), '0' if ks == 0 else d)
    xloop(A, vXA0, vXA1, XF, body)
    for aa in range(2):
        G0, G1, U0, U1 = [ACC + 16 * aa + 4 * q for q in range(4)]
        for i in range(4):
            round_pair(A, G0 + i, G1 + i, 56 + i)
            round_pair(A, U0 + i, U1 + i, 60 + i)
        for i in range(4):
            A('v_mul_f32 v%d, v%d, v%d' % (G0 + i, G0 + i, U0 + i))
            A('v_mul_f32 v%d, v%d, v%d' % (G1 + i, G1 + i, U1 + i))
        for i in range(4):
            A('v_cvt_pk_bf16_f32 v%d, v%d, v%d' % (64 + 4 * aa + i, G0 + i, G1 + i))
        A('ds_write_b128 v%d, %s offset:%d' % (vHW, v(64 + 4 * aa, 4), 1024 * aa))
    A('s_waitcnt lgkmcnt(0)')
    A('s_barrier')
    out_gemm(A, 4, fd, 1, L_H, XF, ACC, 60, vP, vP8, sDst, TOK)
    A('s_add_u32 %s, %s, 1' % (s(sItem), s(sItem)))
    A('s_add_u32 %s, %s, %d' % (s(sSrc), s(sSrc), 64 * ROWB))
    A('s_add_u32 %s, %s, %d' % (s(sDst), s(sDst), 64 * TOK))
    signal(A, sFlag, sItem, 8)
    A('s_cmp_lt_u32 %s, 32' % s(sItem))
    A('s_cbranch_scc1 DE_loop')
    A('s_waitcnt vmcnt(0)')
    A('s_endpgm')


def wave_sum(A, x, t):
    for r in (8, 4, 2, 1):
        A('v_add_f32_dpp v%d, v%d, v%d row_ror:%d row_mask:0xf bank_mask:0xf' % (x, x, x, r))
    A('v_mov_b32 v%d, v%d' % (t, x))
    A('v_permlane16_swap_b32 v%d, v%d' % (x, t))
    A('v_add_f32 v%d, v%d, v%d' % (x, x, t))
    A('v_mov_b32 v%d, v%d' % (t, x))
    A('v_permlane32_swap_b32 v%d, v%d' % (x, t))
    A('v_add_f32 v%d, v%d, v%d' % (x, x, t))


def round1(A, x):
    A('v_cvt_pk_bf16_f32 v%d, v%d, v%d' % (x, x, x))
    A('v_lshlrev_b32 v%d, 16, v%d' % (x, x))


def ln_mod(A, X, n, SC, SH, OUTP, T, total):
    acc, mean, tmp, pk, Dv = T, T + 1, T + 2, T + 3, T + 4
    A('v_add_f32 v%d, v%d, v%d' % (acc, X, X + 1))
    for i in range(2, n):
        A('v_add_f32 v%d, v%d, v%d' % (acc, acc, X + i))
    total(acc, 0)
    A('v_mul_f32 v%d, 0x%x, v%d' % (mean, f2u(1.0 / 576), acc))
    for i in range(n):
        A('v_sub_f32 v%d, v%d, v%d' % (Dv + i, X + i, mean))
    A('v_mul_f32 v%d, v%d, v%d' % (acc, Dv, Dv))
    for i in range(1, n):
        A('v_fmac_f32 v%d, v%d, v%d' % (acc, Dv + i, Dv + i))
    total(acc, 1)
    round1(A, mean)
    for i in range(n):
        A('v_sub_f32 v%d, v%d, v%d' % (Dv + i, X + i, mean))
    A('v_mul_f32 v%d, 0x%x, v%d' % (acc, f2u(1.0 / 576), acc))
    round1(A, acc)
    A('v_add_f32 v%d, 0x%x, v%d' % (acc, f2u(1e-5), acc))
    round1(A, acc)
    A('v_sqrt_f32 v%d, v%d' % (acc, acc))
    round1(A, acc)
    A('v_rcp_f32 v%d, v%d' % (acc, acc))
    for i in range(0, n, 2):
        round_pair(A, Dv + i, Dv + i + 1, pk)
    for i in range(n):
        A('v_mul_f32 v%d, v%d, v%d' % (Dv + i, Dv + i, acc))
    for i in range(0, n, 2):
        round_pair(A, Dv + i, Dv + i + 1, pk)
    for i in range(n):
        A('v_mul_f32 v%d, v%d, v%d' % (Dv + i, Dv + i, SC + i))
    for i in range(0, n, 2):
        round_pair(A, Dv + i, Dv + i + 1, pk)
    for i in range(n):
        A('v_add_f32 v%d, v%d, v%d' % (Dv + i, Dv + i, SH + i))
    for i in range(0, n, 2):
        A('v_cvt_pk_bf16_f32 v%d, v%d, v%d' % (OUTP + i // 2, Dv + i, Dv + i + 1))


def gen_CF(A, opt):
    flags = opt.get('flags', True)
    LAG = opt.get('lag', 2)
    only = opt.get('cf_only')
    A.label('CF_entry')
    vAC, vAF, vBF, vLW, vLR, vCol, vRing = 2, 3, 4, 5, 6, 7, 8
    SEL, GA, CB, SB, GB = 12, 16, 20 + 8, 32, 36
    L_RC, L_RF, L_ST, L_RING = 0, 10240, 20480, 20544
    TOK2, TOK3 = 16 * ROWB, 36 * ROWB
    lane_consts(A)
    srd(A, SRD_A, K_X, 2048 * ROWB)
    srd(A, SRD_B, K_OUT, 2048 * ROWB)
    A('s_mov_b32 %s, 1152' % s(sT1))
    for reg, ppw in ((vAC, 4), (vAF, 9)):
        A('s_mul_i32 %s, s4, %d' % (s(sT0), ppw))
        A('v_add_u32 v23, %s, v22' % s(sT0))
        A('v_mul_lo_u32 v23, v23, %s' % s(sT1))
        A('v_lshl_add_u32 v%d, v21, 4, v23' % reg)
    A('v_mov_b32 v24, 0x%x' % OOB)
    A('v_cmp_eq_u32 vcc, 0, v22')
    A('v_cndmask_b32 v%d, v24, v%d, vcc' % (vBF, vAF))
    A('s_mul_i32 %s, s4, 2560' % s(sT0))
    A('v_lshlrev_b32 v23, 5, v21')
    A('v_lshl_add_u32 v23, v22, 4, v23')
    A('v_add_u32 v%d, %s, v23' % (vLW, s(sT0)))
    A('s_mul_i32 %s, s4, 576' % s(sT0))
    A('v_min_u32 v23, 35, v20')
    A('v_lshlrev_b32 v23, 4, v23')
    A('v_add_u32 v%d, %s, v23' % (vLR, s(sT0)))
    A('v_lshrrev_b32 v23, 1, v%d' % vLR)
    A('v_add_u32 v%d, %d, v23' % (vRing, L_RING))
    A('v_mov_b32 v9, v23')
    A('v_cmp_gt_u32 %s, 36, v20' % s(sMASK, 2))
    A('v_cndmask_b32 v%d, v24, v23, %s' % (vCol, s(sMASK, 2)))
    A('v_and_b32 v23, 16, v1')
    A('v_mov_b32 v24, 0x3f80')
    A('v_lshlrev_b32 v23, v23, v24')
    A('v_lshrrev_b32 v24, 1, v21')
    for q in range(4):
        A('v_cmp_eq_u32 vcc, %d, v24' % q)
        A('v_cndmask_b32 v%d, 0, v23, vcc' % (SEL + q))
    if 'wait_mod' in opt:
        opt['wait_mod'](A)
    for reg, idx in ((GA, 2), (SB, 3), (CB, 4), (GB, 5)):
        A('s_mov_b32 %s, 0x%x' % (s(sT0), MOD_OFF + idx * 2304))
        A('buffer_load_dwordx4 %s, v%d, %s, %s offen sc1' % (v(reg, 4), vLR, WS, s(sT0)))
    A('s_waitcnt vmcnt(0) lgkmcnt(0)')
    for i in range(4):
        A('v_add_f32 v%d, 1.0, v%d' % (CB + i, CB + i))
    for i in range(0, 4, 2):
        round_pair(A, CB + i, CB + i + 1, 23)
    sP2, sP3, sRowC, sRowF, sIt = 48, 49, 50, 51, 52
    A('s_mul_i32 %s, %s, %d' % (s(sP2), s(sID), TOK2))
    A('s_add_u32 %s, %s, 0x%x' % (s(sP2), s(sP2), P2_OFF))
    A('s_mul_i32 %s, %s, %d' % (s(sP3), s(sID), TOK3))
    A('s_add_u32 %s, %s, 0x%x' % (s(sP3), s(sP3), P3_OFF))
    A('s_mul_i32 %s, %s, %d' % (s(sRowC), s(sID), ROWB))
    A('s_mov_b32 %s, %s' % (s(sRowF), s(sRowC)))
    A('s_lshl_b32 %s, %s, 2' % (s(sFlag), s(sID)))
    A('s_add_u32 %s, %s, 0x%x' % (s(sFlag), s(sFlag), FLAG_OFF + F_C))
    A('s_mov_b32 %s, 0' % s(sIt))
    LD, D, X, T = 64, 40, 60, 128

    def reduce(nl, sbase, voffs, lds):
        for L in range(nl):
            A('s_add_u32 %s, %s, %d' % (s(sT0), s(sbase), 4 * ROWB * L))
            for cb in range(5):
                A('buffer_load_dwordx4 %s, v%d, %s, %s offen offset:%d sc1' % (
                    v(LD + 4 * (5 * L + cb), 4), voffs[L], WS, s(sT0), 256 * cb))
        for L in range(nl):
            for cb in range(5):
                A('s_waitcnt vmcnt(%d)' % (5 * nl - 1 - (5 * L + cb)))
                d = v(D + 4 * cb, 4)
                mfma(A, d, v(SEL, 4), v(LD + 4 * (5 * L + cb), 4), '0' if L == 0 else d)
        A('s_mov_b32 exec_hi, 0')
        for cb in range(5):
            A('ds_write_b128 v%d, %s offset:%d' % (vLW, v(D + 4 * cb, 4), lds + 512 * cb))
        A('s_mov_b32 exec_hi, -1')
        A('s_waitcnt lgkmcnt(0)')
        A('s_barrier')
        for w in range(4):
            A('ds_read_b128 %s, v%d offset:%d' % (v(D + 4 * w, 4), vLR, lds + 2560 * w))
        A('s_waitcnt lgkmcnt(0)')
        for i in range(4):
            A('v_add_f32 v%d, v%d, v%d' % (D + i, D + i, D + 4 + i))
            A('v_add_f32 v%d, v%d, v%d' % (D + 8 + i, D + 8 + i, D + 12 + i))
        for i in range(4):
            A('v_add_f32 v%d, v%d, v%d' % (D + i, D + i, D + 8 + i))
        for i in range(0, 4, 2):
            round_pair(A, D + i, D + i + 1, D + 4)

    def gate_add(G, src):
        for i in range(4):
            A('v_mul_f32 v%d, v%d, v%d' % (D + i, D + i, G + i))
        for i in range(0, 4, 2):
            round_pair(A, D + i, D + i + 1, D + 4)
        for i in range(2):
            A('v_lshlrev_b32 v%d, 16, v%d' % (X + 2 * i, src + i))
            A('v_and_b32 v%d, %s, v%d' % (X + 2 * i + 1, s(sHI), src + i))
        for i in range(4):
            A('v_add_f32 v%d, v%d, v%d' % (X + i, X + i, D + i))
        for i in range(0, 4, 2):
            round_pair(A, X + i, X + i + 1, D + 6 + i // 2)

    def total(reg, which):
        A('v_cndmask_b32 v%d, 0, v%d, %s' % (reg, reg, s(sMASK, 2)))
        wave_sum(A, reg, 10)
        A('s_lshl_b32 %s, s4, 2' % s(sT0))
        A('s_add_u32 %s, %s, %d' % (s(sT0), s(sT0), L_ST + 16 * which))
        A('v_mov_b32 v10, %s' % s(sT0))
        A('ds_write_b32 v10, v%d' % reg)
        A('v_mov_b32 v10, %d' % (L_ST + 16 * which))
        A('s_waitcnt lgkmcnt(0)')
        A('s_barrier')
        A('ds_read_b128 %s, v10' % v(D + 12, 4))
        A('s_waitcnt lgkmcnt(0)')
        A('v_add_f32 v%d, v%d, v%d' % (D + 12, D + 12, D + 13))
        A('v_add_f32 v%d, v%d, v%d' % (D + 14, D + 14, D + 15))
        A('v_add_f32 v%d, v%d, v%d' % (reg, D + 12, D + 14))

    A.label('CF_loop')
    A('s_cmp_ge_u32 %s, 64' % s(sIt))
    A('s_cbranch_scc1 CF_skipC')
    A('buffer_load_dwordx2 v[26:27], v9, %s, %s offen' % (s(SRD_A, 4), s(sRowC)))
    A('s_lshr_b32 %s, %s, 1' % (s(sNeed), s(sIt)))
    A('s_add_u32 %s, %s, 1' % (s(sNeed), s(sNeed)))
    A('s_and_b32 %s, %s, 1' % (s(sFl2), s(sIt)))
    A('s_lshl_b32 %s, %s, 6' % (s(sFl2), s(sFl2)))
    A('s_add_u32 %s, %s, 0x%x' % (s(sFl2), s(sFl2), FLAG_OFF + F_A2))
    poll(A, sFl2, 16, sNeed, 10, flags)
    reduce(1, sP2, [vAC], L_RC)
    gate_add(GA, 26)
    A('s_and_b32 %s, %s, 63' % (s(sT0), s(sIt)))
    A('s_mul_i32 %s, %s, %d' % (s(sT0), s(sT0), ROWB))
    A('v_add_u32 v10, %s, v%d' % (s(sT0), vRing))
    A('ds_write_b64 v10, %s' % v(D + 6, 2))
    ln_mod(A, X, 4, CB, SB, 24, T, total)
    A('s_add_u32 %s, %s, 0x%x' % (s(sT0), s(sRowC), H2_OFF))
    A('buffer_store_dwordx2 v[24:25], v%d, %s, %s offen sc1' % (vCol, WS, s(sT0)))
    A('s_add_u32 %s, %s, %d' % (s(sRowC), s(sRowC), 32 * ROWB))
    A('s_add_u32 %s, %s, %d' % (s(sP2), s(sP2), 32 * TOK2))
    A('s_add_u32 %s, %s, 1' % (s(sNeed), s(sIt)))
    signal(A, sFlag, sNeed, 10)
    A.label('CF_skipC')
    A('s_cmp_lt_u32 %s, %d' % (s(sIt), LAG))
    A('s_cbranch_scc1 CF_skipF')
    if only != 'C':
        A('s_sub_u32 %s, %s, %d' % (s(sItem), s(sIt), LAG))
        A('s_mul_i32 %s, %s, %d' % (s(sT0), s(sItem), ROWB))
        A('v_add_u32 v10, %s, v%d' % (s(sT0), vRing))
        A('ds_read_b64 v[26:27], v10')
        A('s_lshr_b32 %s, %s, 1' % (s(sNeed), s(sItem)))
        A('s_add_u32 %s, %s, 1' % (s(sNeed), s(sNeed)))
        A('s_and_b32 %s, %s, 1' % (s(sFl2), s(sItem)))
        A('s_lshl_b32 %s, %s, 8' % (s(sFl2), s(sFl2)))
        A('s_add_u32 %s, %s, 0x%x' % (s(sFl2), s(sFl2), FLAG_OFF + F_DE))
        poll(A, sFl2, 36, sNeed, 10, flags)
        reduce(3, sP3, [vAF, vAF, vBF], L_RF)
        gate_add(GB, 26)
        A('buffer_store_dwordx2 %s, v%d, %s, %s offen' % (v(D + 6, 2), vCol, s(SRD_B, 4), s(sRowF)))
        A('s_add_u32 %s, %s, %d' % (s(sRowF), s(sRowF), 32 * ROWB))
        A('s_add_u32 %s, %s, %d' % (s(sP3), s(sP3), 32 * TOK3))
        A('s_barrier')
    A.label('CF_skipF')
    A('s_add_u32 %s, %s, 1' % (s(sIt), s(sIt)))
    A('s_cmp_lt_u32 %s, %d' % (s(sIt), 64 + LAG))
    A('s_cbranch_scc1 CF_loop')
    A('s_waitcnt vmcnt(0)')
    A('s_endpgm')


def gen_mod(A):
    A('s_cmp_ge_u32 s2, 54')
    A('s_cbranch_scc1 MOD_exit')
    srd(A, SRD_WS, K_WS, WS_SIZE)
    srd(A, SRD_A, K_WMOD, 576 * 6912)
    srd(A, SRD_B, K_C, 1152)
    A('s_mov_b32 %s, 0xffff0000' % s(sHI))
    A('v_lshrrev_b32 v1, 3, v0')
    A('v_and_b32 v2, 7, v0')
    A('v_mul_u32_u24 v3, 6912, v1')
    A('v_lshl_add_u32 v3, v2, 4, v3')
    A('s_lshl_b32 %s, s2, 7' % s(sT1))
    A('v_add_u32 v3, %s, v3' % s(sT1))
    A('v_lshlrev_b32 v4, 1, v1')
    A('s_waitcnt lgkmcnt(0)')
    for i in range(18):
        A('buffer_load_ushort v%d, v4, %s, 0 offen offset:%d' % (8 + i, s(SRD_B, 4), 64 * i))
    for i in range(18):
        A('s_mov_b32 %s, %d' % (s(sT0), 32 * 6912 * i))
        A('buffer_load_dwordx4 %s, v3, %s, %s offen' % (v(40 + 4 * i, 4), s(SRD_A, 4), s(sT0)))
    A('v_mov_b64 v[6:7], 0')
    A('v_lshlrev_b32 v5, 3, v0')
    A('s_cmp_eq_u32 s2, 0')
    A('s_cselect_b32 %s, 0x%x, 0x%x' % (s(sT0), FLAG_OFF, OOB) if False else 's_mov_b32 %s, 0x%x' % (s(sT2), FLAG_OFF))
    A('s_cselect_b32 %s, %s, 0x%x' % (s(sT0), s(sT2), OOB))
    A('buffer_store_dwordx2 v[6:7], v5, %s, %s offen' % (WS, s(sT0)))
    A('s_waitcnt vmcnt(19)')
    for i in range(18):
        x = 8 + i
        A('v_lshlrev_b32 v%d, 16, v%d' % (x, x))
        A('v_mul_f32 v26, 0x%x, v%d' % (f2u(-math.log2(math.e)), x))
        A('v_exp_f32 v26, v26')
        A('v_add_f32 v26, 1.0, v26')
        A('v_rcp_f32 v26, v26')
        A('v_mul_f32 v%d, v%d, v26' % (x, x))
        round1(A, x)
    for j in range(8):
        A('v_mov_b32 v%d, 0' % (28 + j))
    for i in range(18):
        A('s_waitcnt vmcnt(%d)' % (18 - i))
        for q in range(4):
            w = 40 + 4 * i + q
            A('v_lshlrev_b32 v26, 16, v%d' % w)
            A('v_and_b32 v27, %s, v%d' % (s(sHI), w))
            A('v_fmac_f32 v%d, v26, v%d' % (28 + 2 * q, 8 + i))
            A('v_fmac_f32 v%d, v27, v%d' % (28 + 2 * q + 1, 8 + i))
    A('v_mul_u32_u24 v5, 272, v1')
    A('v_lshl_add_u32 v5, v2, 5, v5')
    A('ds_write_b128 v5, v[28:31]')
    A('ds_write_b128 v5, v[32:35] offset:16')
    A('s_waitcnt lgkmcnt(0)')
    A('s_barrier')
    A('v_cmp_gt_u32 vcc, 64, v0')
    A('s_and_saveexec_b64 s[50:51], vcc')
    A('s_cbranch_execz MOD_exit')
    A('v_lshlrev_b32 v5, 2, v0')
    for r in range(32):
        A('ds_read_b32 v%d, v5 offset:%d' % (40 + r, 272 * r))
    A('s_waitcnt lgkmcnt(0)')
    for stp in (16, 8, 4, 2, 1):
        for r in range(stp):
            A('v_add_f32 v%d, v%d, v%d' % (40 + r, 40 + r, 40 + r + stp))
    round1(A, 40)
    A('s_lshl_b32 %s, s2, 8' % s(sT0))
    A('s_add_u32 %s, %s, 0x%x' % (s(sT0), s(sT0), MOD_OFF))
    A('buffer_store_dword v40, v5, %s, %s offen' % (WS, s(sT0)))
    A('s_waitcnt vmcnt(0)')
    A.label('MOD_exit')
    A('s_endpgm')


def gen_ln1(A):
    A('s_cmp_ge_u32 s2, 512')
    A('s_cbranch_scc1 LN1_exit')
    srd(A, SRD_WS, K_WS, WS_SIZE)
    srd(A, SRD_A, K_X, 2048 * ROWB)
    A('s_mov_b32 %s, 0xffff0000' % s(sHI))
    A('v_and_b32 v1, 63, v0')
    A('v_lshrrev_b32 v2, 6, v0')
    A('s_lshl_b32 %s, s2, 2' % s(sT0))
    A('v_add_u32 v2, %s, v2' % s(sT0))
    A('v_mul_u32_u24 v2, 1152, v2')
    A('v_mul_u32_u24 v3, 24, v1')
    A('v_add_u32 v2, v2, v3')
    A('v_lshlrev_b32 v3, 1, v3')
    A('v_mov_b32 v4, 0x%x' % OOB)
    A('v_cmp_gt_u32 %s, 48, v1' % s(sMASK, 2))
    A('v_cndmask_b32 v2, v4, v2, %s' % s(sMASK, 2))
    A('v_cndmask_b32 v3, v4, v3, %s' % s(sMASK, 2))
    A('s_waitcnt lgkmcnt(0)')
    RAW, X, SC, SH, T = 8, 16, 28, 40, 52
    A('buffer_load_dwordx2 %s, v2, %s, 0 offen' % (v(RAW, 2), s(SRD_A, 4)))
    A('buffer_load_dwordx2 %s, v2, %s, 0 offen offset:8' % (v(RAW + 2, 2), s(SRD_A, 4)))
    A('buffer_load_dwordx2 %s, v2, %s, 0 offen offset:16' % (v(RAW + 4, 2), s(SRD_A, 4)))
    A('s_mov_b32 %s, 0x%x' % (s(sT0), MOD_OFF))
    for q in range(3):
        A('buffer_load_dwordx4 %s, v3, %s, %s offen offset:%d' % (v(SH + 4 * q, 4), WS, s(sT0), 16 * q))
        A('buffer_load_dwordx4 %s, v3, %s, %s offen offset:%d' % (v(SC + 4 * q, 4), WS, s(sT0), 2304 + 16 * q))
    A('s_waitcnt vmcnt(0)')
    for i in range(6):
        A('v_lshlrev_b32 v%d, 16, v%d' % (X + 2 * i, RAW + i))
        A('v_and_b32 v%d, %s, v%d' % (X + 2 * i + 1, s(sHI), RAW + i))
    for i in range(12):
        A('v_add_f32 v%d, 1.0, v%d' % (SC + i, SC + i))
    for i in range(0, 12, 2):
        round_pair(A, SC + i, SC + i + 1, 5)

    def total(reg, which):
        A('v_cndmask_b32 v%d, 0, v%d, %s' % (reg, reg, s(sMASK, 2)))
        wave_sum(A, reg, 5)
    ln_mod(A, X, 12, SC, SH, RAW, T, total)
    A('s_mov_b32 %s, 0x%x' % (s(sT0), H1_OFF))
    for q in range(3):
        A('buffer_store_dwordx2 %s, v2, %s, %s offen offset:%d' % (v(RAW + 2 * q, 2), WS, s(sT0), 8 * q))
    A('s_waitcnt vmcnt(0)')
    A.label('LN1_exit')
    A('s_endpgm')
```

```python
import sys, json
from asmlib import Asm, v, a, s
from layout import *
import role_r
import roles

NAME = 'adaLN_cond__memory_aug_recurrent_mem_tr__glu_gated_bilinear__prompt'

def header(launches):
    ref = open('cdna_kernels/%s.s.ref' % NAME).read().split('\n')
    out = []
    for ln in ref:
        if not ln.startswith(';'):
            break
        if '@launch' in ln or 'Override launch' in ln or 'grid=ceil' in ln:
            continue
        out.append(ln)
    out += launches
    out.append('.amdgcn_target "amdgcn-amd-amdhsa--gfx950"')
    out.append('.text')
    return '\n'.join(out) + '\n'

def kernel_open(name):
    return '.globl %s\n.p2align 8\n.type %s,@function\n%s:\n' % (name, name, name)

def descriptor(name, vgpr=512, accum=256, sgpr=102):
    return ('.amdhsa_kernel %s\n  .amdhsa_next_free_vgpr %d\n  .amdhsa_next_free_sgpr %d\n  .amdhsa_accum_offset %d\n'
            '  .amdhsa_group_segment_fixed_size 0\n  .amdhsa_kernarg_size 128\n  .amdhsa_user_sgpr_count 2\n'
            '  .amdhsa_user_sgpr_kernarg_segment_ptr 1\n  .amdhsa_system_sgpr_workgroup_id_x 1\n'
            '  .amdhsa_float_denorm_mode_32 3\n'
            '.end_amdhsa_kernel\n' % (name, vgpr, sgpr, accum))

def common_prologue(A, nwg=256):
    A('s_cmp_ge_u32 s2, %d' % nwg)
    A('s_cbranch_scc1 L_exit')
    A('s_load_dwordx2 s[8:9], s[0:1], %d' % K_WS)
    A('s_load_dwordx2 s[12:13], s[0:1], %d' % K_DBG)
    A('s_mov_b32 s10, 0x%x' % WS_SIZE)
    A('s_mov_b32 s11, 0x20000')
    A('s_mov_b32 s14, 256')
    A('s_mov_b32 s15, 0x20000')
    A('s_getreg_b32 s5, hwreg(HW_REG_XCC_ID)')
    A('s_and_b32 s5, s5, 15')
    A('v_lshrrev_b32 v1, 6, v0')
    A('v_readfirstlane_b32 s4, v1')
    A('v_mov_b32 v2, 0')
    A('s_waitcnt lgkmcnt(0)')
    A('s_cmp_lg_u32 s4, 0')
    A('s_cbranch_scc1 L_tk_wait')
    A('s_mov_b64 exec, 1')
    A('s_cmp_eq_u32 s5, 0')
    A('s_cselect_b32 s6, 0, 4')
    A('s_cselect_b32 s7, 32, 224')
    A('v_mov_b32 v1, 1')
    A('buffer_atomic_add v1, off, s[12:15], s6 sc0')
    A('s_waitcnt vmcnt(0)')
    A('v_readfirstlane_b32 s3, v1')
    A('s_cmp_lt_u32 s3, s7')
    A('s_cbranch_scc1 L_tk_have')
    A('s_xor_b32 s6, s6, 4')
    A('v_mov_b32 v1, 1')
    A('buffer_atomic_add v1, off, s[12:15], s6 sc0')
    A('s_waitcnt vmcnt(0)')
    A('v_readfirstlane_b32 s3, v1')
    A.label('L_tk_have')
    A('s_lshl_b32 s6, s6, 3')
    A('s_add_u32 s3, s3, s6')
    A('v_mov_b32 v1, s3')
    A('ds_write_b32 v2, v1')
    A('s_waitcnt lgkmcnt(0)')
    A('s_mov_b64 exec, -1')
    A.label('L_tk_wait')
    A('s_barrier')
    A('ds_read_b32 v1, v2')
    A('s_waitcnt lgkmcnt(0)')
    A('v_readfirstlane_b32 s3, v1')
    A('s_barrier')

def small_prologue(A, n, exit_label):
    A('s_cmp_ge_u32 s2, %d' % n)
    A('s_cbranch_scc1 %s' % exit_label)
    A('s_load_dwordx2 s[8:9], s[0:1], %d' % K_WS)
    A('s_mov_b32 s10, 0x%x' % WS_SIZE)
    A('s_mov_b32 s11, 0x20000')
    A('v_lshrrev_b32 v1, 6, v0')
    A('v_readfirstlane_b32 s4, v1')
    A('s_mov_b32 %s, s2' % s(roles.sID))
    A('s_waitcnt lgkmcnt(0)')


def build_r_only(opt):
    A = Asm()
    common_prologue(A)
    A('s_cmp_lt_u32 s3, 32')
    A('s_cbranch_scc1 R_entry')
    A.label('L_exit')
    A('s_endpgm')
    role_r.gen_R(A, opt)
    body = A.finish()
    k = NAME + '_kernel'
    txt = header(['; @launch grid=(256,1,1) block=(256,1,1) lds=163840'])
    txt += kernel_open(k) + body
    txt += '.section .rodata,"a"\n.p2align 6\n' + descriptor(k)
    return txt


def pre_kernels():
    out, desc = '', ''
    A = Asm(); A.uid = 9000
    roles.gen_mod(A)
    out += kernel_open('mod_kernel') + A.finish()
    desc += descriptor('mod_kernel', 112, 112)
    A = Asm(); A.uid = 9500
    roles.gen_ln1(A)
    out += kernel_open('ln1_kernel') + A.finish()
    desc += '.p2align 6\n' + descriptor('ln1_kernel', 72, 72)
    return out, desc


def build_seq(opt):
    opt = dict(opt, flags=False)
    code, desc = pre_kernels()
    L = ['; @launch kernel=mod_kernel grid=(54,1,1) block=(256,1,1) lds=8704',
         '; @launch kernel=ln1_kernel grid=(512,1,1) block=(256,1,1) lds=0']
    uid = 0
    for name, n, fn in (('a1', 64, roles.gen_A1), ('a2', 32, roles.gen_A2), ('cf', 32, roles.gen_CF), ('de', 72, roles.gen_DE)):
        A = Asm(); uid += 1000; A.uid = uid
        small_prologue(A, n, name + '_exit')
        fn(A, opt)
        A.label(name + '_exit')
        A('s_endpgm')
        code += kernel_open(name + '_kernel') + A.finish()
        desc += '.p2align 6\n' + descriptor(name + '_kernel')
    A = Asm()
    common_prologue(A)
    A('s_cmp_lt_u32 s3, 32')
    A('s_cbranch_scc1 R_entry')
    A.label('L_exit')
    A('s_endpgm')
    role_r.gen_R(A, opt)
    code += kernel_open('r_kernel') + A.finish()
    desc += '.p2align 6\n' + descriptor('r_kernel')
    for name, n in (('a1', 64), ('r', 256), ('a2', 32), ('cf', 32), ('de', 72), ('cf', 32)):
        L.append('; @launch kernel=%s_kernel grid=(%d,1,1) block=(256,1,1) lds=163840' % (name, n))
    return header(L) + code + '.section .rodata,"a"\n.p2align 6\n' + desc


if __name__ == '__main__':
    opt = json.loads(sys.argv[2]) if len(sys.argv) > 2 else {}
    mode = opt.get('mode', 'r')
    fn = {'r': build_r_only, 'seq': build_seq}.get(mode) or globals()['build_' + mode]
    open(sys.argv[1], 'w').write(fn(opt))
```

```python
NSEG = 64
NH = 32
D = 576
ROWB = 1152

WS_SIZE = 0x10000000
OOB = 0x20000000

PART_OFF = 0x0
PART_BUF = 72 * 4096
MEMR_OFF = 0x100000
MEMR_STRIDE = 0x4000
FLAG_OFF = 0x150000
STAMP_OFF = 0x130000
MOD_OFF = 0x140000
H1_OFF = 0x200000
H2_OFF = 0x500000
KVM_OFF = 0x800000
KVM_BLK = 8192
QKV_OFF = 0x1800000
QKV_BLK = 24576
P2_OFF = 0x4800000
P3_OFF = 0x7000000

K_X, K_MEM0, K_WQ, K_WK, K_WV, K_WO, K_SEG, K_BX, K_WG, K_WU, K_WD, K_C, K_WMOD, K_OUT, K_DBG, K_WS = \
    [8 * i for i in range(16)]

F_A1 = 0x000
F_R = 0x1000
F_A2 = 0x2000
F_C = 0x22000
F_DE = 0x62000
FLAG_BYTES = 0xAA000
STAMP2_OFF = 0x110000
```

```python
import math
import struct
from asmlib import v, a, s
from layout import *


def f2u(x):
    return struct.unpack('<I', struct.pack('<f', x))[0]


SRD_WS, SRD_DBG, SRD_A, SRD_B, SRD_C = 8, 12, 16, 20, 24
sH, sStep, sPW0, sPW1, sPR, sPRst, sMRd, sMWr, sMPrev, sKV, sKVM, sC, sUnit, sSpin = range(28, 42)
sSelBit = 90
sPF, sM0K, sM0P = 96, 97, 98
sNeedKV = 91
sFA1 = 92
sC2 = 94
sQMASK = 42
sSEL = 44
sPLO, sPHI = 52, 53
sT0, sT1, sT2, sT3 = 54, 55, 56, 57
sPB = 58
sUOFF = 59
sA1 = 60
sFLAGO = 61
sKVMP = 62
sMRd1, sMRd2 = 63, 6
sST = 64

vIdx, vL16, vPartOff, vPart8, vPub, vXW, vXR, vOW, vOR, vWo = range(0, 10)
VP = 10
M = [12 + 4 * m for m in range(9)]
AQ = [48 + 4 * t for t in range(4)]
RA, RB = 64, 72
AV = [64, 68]
SP0, SP1 = 72, 76
sTag, sTag2 = 33, 7
sCK = 40

L_WO = 0
L_KT = 147456
L_X = L_KT + 8192
L_O = L_X + 16 * 272
L_MISC = L_O + 8 * 272


KORD = [8, 0, 2, 4, 6, 1, 3, 5, 7]


def wfrag(f):
    return a(8 * f, 8) if f < 32 else v(80 + 8 * (f - 32), 8)


def wfreg(f, r):
    return a(8 * f + r) if f < 32 else v(80 + 8 * (f - 32) + r)


def f_qk(m, t):
    return 3 * m + t


def f_wo(j):
    return 27 + j


def wqk(m, t):
    return wfrag(f_qk(m, t))


def wv(m, t):
    return v(112 + 16 * m + 8 * t, 8)


def rowadd(r, b):
    return 32 * (r >> 2) + 8 * (r & 1) + 2 * ((r >> 1) & 1) + b


class Stream:
    def __init__(self, A, window):
        self.A, self.window, self.batches = A, window, []

    def add(self, n, issue, consume, regs=()):
        self.batches.append((n, issue, consume, set(regs)))

    def run(self):
        A = self.A
        q, out, i = [], 0, 0
        B = self.batches
        while i < len(B) or q:
            while i < len(B) and out + B[i][0] <= self.window and not any(B[i][3] & x[3] for x in q):
                B[i][1]()
                q.append(B[i])
                out += B[i][0]
                i += 1
            n, _, consume, _ = q.pop(0)
            out -= n
            A('s_waitcnt vmcnt(%d)' % out)
            consume()


def srd(A, reg, karg, size):
    A('s_load_dwordx2 %s, s[0:1], %d' % (s(reg, 2), karg))
    A('s_mov_b32 %s, 0x%x' % (s(reg + 2), size))
    A('s_mov_b32 %s, 0x20000' % s(reg + 3))


def wait_kv(A, vt):
    l0, l1 = A.newlabel('R_kv'), A.newlabel('R_kvok')
    A.label(l0)
    A('v_lshrrev_b32 v%d, 2, %s' % (vt, v(vL16)))
    A('v_and_b32 v%d, 4, v%d' % (vt, vt))
    A('buffer_load_dword v%d, v%d, %s, %s offen sc1' % (vt, vt, s(SRD_WS, 4), s(sFA1)))
    A('s_waitcnt vmcnt(0)')
    A('v_readlane_b32 %s, v%d, 0' % (s(sA1), vt))
    A('v_readlane_b32 %s, v%d, 1' % (s(sT3), vt))
    A('s_lshl_b32 %s, %s, 1' % (s(sA1), s(sA1)))
    A('s_lshl_b32 %s, %s, 1' % (s(sT3), s(sT3)))
    A('s_add_u32 %s, %s, 1' % (s(sT3), s(sT3)))
    A('s_min_u32 %s, %s, %s' % (s(sA1), s(sA1), s(sT3)))
    A('s_cmp_gt_u32 %s, %s' % (s(sA1), s(sNeedKV)))
    A('s_cbranch_scc1 %s' % l1)
    A('s_sleep 1')
    A('s_sub_u32 %s, %s, 1' % (s(sSpin), s(sSpin)))
    A('s_cmp_gt_i32 %s, 0' % s(sSpin))
    A('s_cbranch_scc1 %s' % l0)
    A.label(l1)


def gen_R(A, opt):
    stamps = opt.get('stamps', False)
    flags = opt.get('flags', True)
    nsteps = NSEG
    A.label('R_entry')
    if stamps:
        A('s_memrealtime %s' % s(sST + 22, 2))
    A('s_mov_b32 %s, s3' % s(sH))
    A('v_and_b32 v20, 63, v0')
    A('v_and_b32 v21, 15, v20')
    A('v_lshrrev_b32 v22, 4, v20')
    A('v_lshlrev_b32 %s, 4, v20' % v(vL16))
    A('v_lshrrev_b32 v23, 2, v21')
    A('v_and_b32 v24, 1, v21')
    A('v_lshl_add_u32 v23, v23, 1, v24')
    A('v_mov_b32 v26, 0x4444')
    A('v_mov_b32 v27, 0xeeee')
    A('v_cmp_eq_u32 vcc, 1, v24')
    A('v_cndmask_b32 %s, v26, v27, vcc' % v(vIdx))
    A('v_lshlrev_b32 v27, 5, v22')
    A('v_lshl_add_u32 v27, v24, 4, v27')
    A('v_lshrrev_b32 v25, 1, v21')
    A('v_mul_u32_u24 v26, 272, v25')
    A('v_add_u32 v28, v26, v27')
    A('v_add_u32 %s, %d, v28' % (v(vOR), L_O))
    A('v_mul_u32_u24 v26, 272, v23')
    A('s_lshl_b32 %s, s4, 6' % s(sT0))
    A('v_lshl_add_u32 v28, v22, 4, v26')
    A('v_add_u32 v28, %s, v28' % s(sT0))
    A('v_add_u32 %s, %d, v28' % (v(vOW), L_O))
    A('v_mul_u32_u24 v26, 272, v21')
    A('v_lshl_add_u32 v26, v22, 4, v26')
    A('v_add_u32 %s, %d, v26' % (v(vXR), L_X))
    A('s_cmp_lt_u32 s4, 2')
    A('s_cselect_b32 %s, 544, 0' % s(sT0))
    A('s_and_b32 %s, s4, 1' % s(sT1))
    A('s_lshl_b32 %s, %s, 7' % (s(sT1), s(sT1)))
    A('s_add_u32 %s, %s, %s' % (s(sT0), s(sT0), s(sT1)))
    A('s_add_u32 %s, %s, %d' % (s(sT0), s(sT0), L_X))
    A('v_mul_u32_u24 v26, 1088, v22')
    A('v_lshl_add_u32 v26, v21, 3, v26')
    A('v_add_u32 %s, %s, v26' % (v(vXW), s(sT0)))
    A('s_mul_i32 %s, s4, 36864' % s(sT0))
    A('v_add_u32 %s, %s, %s' % (v(vWo), s(sT0), v(vL16)))
    A('v_lshrrev_b32 v27, 3, v21')
    A('v_lshl_add_u32 v27, v22, 1, v27')
    A('s_lshl_b32 %s, s4, 4' % s(sT0))
    A('v_add_u32 v27, %s, v27' % s(sT0))
    A('v_lshlrev_b32 v27, 12, v27')
    A('v_and_b32 v28, 7, v21')
    A('v_lshl_add_u32 v27, v28, 4, v27')
    A('s_lshl_b32 %s, %s, 7' % (s(sT0), s(sH)))
    A('v_add_u32 %s, %s, v27' % (v(vPartOff), s(sT0)))
    A('s_lshr_b32 %s, s4, 1' % s(sT1))
    A('s_add_u32 %s, %s, 64' % (s(sT1), s(sT1)))
    A('s_lshl_b32 %s, %s, 12' % (s(sT1), s(sT1)))
    A('s_add_u32 %s, %s, %s' % (s(sT0), s(sT0), s(sT1)))
    A('s_and_b32 %s, s4, 1' % s(sT1))
    A('s_lshl_b32 %s, %s, 6' % (s(sT1), s(sT1)))
    A('s_add_u32 %s, %s, %s' % (s(sT0), s(sT0), s(sT1)))
    A('v_lshlrev_b32 v26, 13, v22')
    A('v_lshl_add_u32 v26, v21, 2, v26')
    A('v_add_u32 %s, %s, v26' % (v(vPart8), s(sT0)))
    A('s_lshl_b32 %s, s4, 5' % s(sUnit))
    A('s_add_u32 %s, %s, %s' % (s(sUnit), s(sUnit), s(sH)))
    A('s_lshl_b32 %s, %s, 12' % (s(sT0), s(sUnit)))
    A('s_lshr_b32 %s, %s, 3' % (s(sT1), s(sUnit)))
    A('s_lshl_b32 %s, %s, 7' % (s(sT3), s(sT1)))
    A('s_and_b32 %s, %s, 1' % (s(sT2), s(sT1)))
    A('s_lshl_b32 %s, %s, 2' % (s(sT2), s(sT2)))
    A('s_lshr_b32 %s, %s, 1' % (s(sPB), s(sT1)))
    A('s_add_u32 %s, %s, %s' % (s(sT2), s(sT2), s(sPB)))
    A('s_add_u32 %s, %s, 1' % (s(sT2), s(sT2)))
    A('s_cmp_eq_u32 %s, 8' % s(sT1))
    A('s_cselect_b32 %s, 0, %s' % (s(sT1), s(sT2)))
    A('s_lshl_b32 %s, %s, 10' % (s(sT1), s(sT1)))
    A('s_and_b32 %s, %s, 1' % (s(sT2), s(sUnit)))
    A('s_lshl_b32 %s, %s, 9' % (s(sPB), s(sT2)))
    A('s_add_u32 %s, %s, %s' % (s(sT1), s(sT1), s(sPB)))
    A('s_lshl_b32 %s, %s, 6' % (s(sPB), s(sT2)))
    A('s_add_u32 %s, %s, %s' % (s(sT3), s(sT3), s(sPB)))
    A('s_and_b32 %s, %s, 6' % (s(sT2), s(sUnit)))
    A('s_lshl_b32 %s, %s, 5' % (s(sPB), s(sT2)))
    A('s_add_u32 %s, %s, %s' % (s(sT1), s(sT1), s(sPB)))
    A('s_mul_i32 %s, %s, 1152' % (s(sPB), s(sT2)))
    A('s_add_u32 %s, %s, %s' % (s(sT3), s(sT3), s(sPB)))
    A('s_cmp_lt_u32 %s, 72' % s(sUnit))
    A('s_cselect_b32 %s, %s, 0x%x' % (s(sUOFF), s(sT0), OOB))
    A('s_cselect_b32 %s, %s, 0x%x' % (s(sT1), s(sT1), OOB))
    A('v_lshrrev_b32 v26, 2, v21')
    A('v_lshlrev_b32 v26, 8, v26')
    A('v_lshl_add_u32 v26, v22, 5, v26')
    A('v_and_b32 v27, 3, v21')
    A('v_lshl_add_u32 v26, v27, 3, v26')
    A('v_add_u32 v26, %s, v26' % s(sT1))
    A('v_mov_b32 v27, 0x%x' % OOB)
    A('v_and_b32 v28, 0x28, v20')
    A('v_cmp_eq_u32 vcc, 0, v28')
    A('v_cndmask_b32 %s, v27, v26, vcc' % v(vPub))
    A('v_mul_u32_u24 v29, 1152, v22')
    A('v_lshl_add_u32 v29, v21, 3, v29')
    A('v_add_u32 v29, %s, v29' % s(sT3))
    srd(A, SRD_A, K_MEM0, 8 * ROWB)
    A('s_mov_b32 %s, 0xcccccccc' % s(sQMASK))
    A('s_mov_b32 %s, 0xcccccccc' % s(sQMASK + 1))
    A('s_cmp_lt_u32 %s, 64' % s(sUnit))
    A('s_cselect_b32 %s, 4, 6' % s(sSelBit))
    for q in range(4):
        A('s_mov_b32 %s, 0x%x' % (s(sT0), 0x00110011 << q))
        A('s_cselect_b32 %s, 0x%x, %s' % (s(sSEL + 2 * q), 0x00030003 << (2 * q), s(sT0)))
        A('s_mov_b32 %s, %s' % (s(sSEL + 2 * q + 1), s(sSEL + 2 * q)))
    A('s_mov_b32 %s, 0x05040100' % s(sPLO))
    A('s_mov_b32 %s, 0x07060302' % s(sPHI))
    A('s_mov_b32 %s, 0x%x' % (s(sC), f2u(128 ** -0.5 * math.log2(math.e))))
    A('s_mov_b32 %s, %d' % (s(sSpin), opt.get('spin', 200000)))

    for i in range(4):
        A('v_mov_b32 v%d, -1' % (SP1 + i))
    A('s_add_u32 %s, %s, %d' % (s(sPR), s(sUOFF), PART_OFF))
    for i in range(4):
        A('buffer_store_dwordx4 %s, %s, %s, %s offen offset:%d sc1' % (v(SP1, 4), v(vL16), s(SRD_WS, 4), s(sPR), 1024 * i))
    for i in range(1, 3):
        A('s_mov_b32 %s, 0x%x' % (s(sT0), MEMR_OFF + i * MEMR_STRIDE))
        A('buffer_store_dwordx2 %s, %s, %s, %s offen sc1' % (v(SP1, 2), v(vPub), s(SRD_WS, 4), s(sT0)))
    A('s_waitcnt lgkmcnt(0)')
    A('buffer_load_dwordx2 v[30:31], v29, %s, 0 offen' % s(SRD_A, 4))
    A('s_mov_b32 %s, 0x%x' % (s(sT0), MEMR_OFF))
    A('s_waitcnt vmcnt(0)')
    A('buffer_store_dwordx2 v[30:31], %s, %s, %s offen sc1' % (v(vPub), s(SRD_WS, 4), s(sT0)))
    A('s_waitcnt vmcnt(0)')
    A('s_barrier')
    lab = A.newlabel('R_noarrive')
    A('s_cmp_lg_u32 s4, 0')
    A('s_cbranch_scc1 %s' % lab)
    A('s_cmp_eq_u32 s5, 0')
    A('s_cselect_b32 %s, 1, 0x10001' % s(sT0))
    if opt.get('force_slow'):
        A('s_mov_b32 %s, 0x10001' % s(sT0))
    A('v_mov_b32 v26, %s' % s(sT0))
    A('s_mov_b64 exec, 1')
    A('buffer_atomic_add v26, off, %s, 0 offset:8' % s(SRD_DBG, 4))
    A('s_mov_b64 exec, -1')
    A.label(lab)

    srd(A, SRD_A, K_WO, 4096 * ROWB)
    A('s_load_dwordx2 %s, s[0:1], %d' % (s(SRD_B, 2), K_WQ))
    A('s_load_dwordx2 %s, s[0:1], %d' % (s(sT2, 2), K_WK))
    A('s_mov_b32 %s, 0x%x' % (s(SRD_B + 2), 576 * 8192))
    A('s_mov_b32 %s, 0x20000' % s(SRD_B + 3))
    srd(A, SRD_C, K_WV, 576 * 8192)
    A('v_lshrrev_b32 v26, 1, v22')
    A('v_lshlrev_b32 v26, 4, v26')
    A('v_and_b32 v27, 1, v22')
    A('v_lshl_add_u32 v26, v27, 2, v26')
    A('s_lshl_b32 %s, %s, 7' % (s(sT0), s(sH)))
    A('v_add_u32 v27, %s, v26' % s(sT0))
    A('v_mul_u32_u24 v27, 1152, v27')
    A('s_lshl_b32 %s, s4, 8' % s(sT0))
    A('v_lshl_add_u32 v28, v21, 3, v27')
    A('v_add_u32 v12, %s, v28' % s(sT0))
    A('s_lshl_b32 %s, s4, 5' % s(sT0))
    A('s_add_u32 %s, %s, 1024' % (s(sT0), s(sT0)))
    A('v_lshl_add_u32 v28, v21, 1, v27')
    A('v_add_u32 v13, %s, v28' % s(sT0))
    A('v_lshlrev_b32 v27, 13, v26')
    A('s_lshl_b32 %s, %s, 8' % (s(sT0), s(sH)))
    A('v_add_u32 v27, %s, v27' % s(sT0))
    A('s_and_b32 %s, s4, 1' % s(sT0))
    A('s_lshl_b32 %s, %s, 7' % (s(sT0), s(sT0)))
    A('v_lshl_add_u32 v28, v21, 3, v27')
    A('v_add_u32 v14, %s, v28' % s(sT0))
    A('s_lshl_b32 %s, s4, 6' % s(sT0))
    A('v_lshl_add_u32 v28, v21, 2, v27')
    A('v_add_u32 v15, %s, v28' % s(sT0))
    A('s_waitcnt lgkmcnt(0)')
    A('s_cmp_lt_u32 s4, 2')
    A('s_cselect_b32 %s, %s, %s' % (s(SRD_B), s(SRD_B), s(sT2)))
    A('s_cselect_b32 %s, %s, %s' % (s(SRD_B + 1), s(SRD_B + 1), s(sT2 + 1)))
    nt = ' nt' if opt.get('nt', True) else ''

    st = Stream(A, 60)
    TMP = [48, 52, 56, 60]

    def wo_issue(m, rh):
        base = 128 + 32 * (2 * m + rh)
        for r1 in range(2):
            A('s_mov_b32 %s, %d' % (s(sT0), (64 * m + 32 * rh + 8 * r1) * ROWB))
            for r2 in range(2):
                for b in range(2):
                    r = 2 * r2 + r1
                    for i in range(2):
                        A('buffer_load_dwordx2 %s, v12, %s, %s offen offset:%d%s' % (
                            v(base + 8 * r + 4 * b + 2 * i, 2), s(SRD_A, 4), s(sT0), (2 * r2 + b) * ROWB + 128 * i, nt))

    def put(f, r, src):
        if f < 32:
            A('v_accvgpr_write_b32 %s, v%d' % (wfreg(f, r), src))
        else:
            A('v_mov_b32 %s, v%d' % (wfreg(f, r), src))

    def wo_consume(m, rh):
        base = 128 + 32 * (2 * m + rh)
        for j in range(8):
            o = TMP[j & 3]
            for r in range(4):
                A('v_perm_b32 v%d, v%d, v%d, %s' % (o + r, base + 8 * r + 4 + (j >> 1), base + 8 * r + (j >> 1),
                                                   s(sPHI if j & 1 else sPLO)))
            if m == 1:
                A('ds_write_b128 %s, %s offset:%d' % (v(vWo), v(o, 4), (9 + j) * 2048 + rh * 1024))
            else:
                for r in range(4):
                    put(f_wo(j), 4 * rh + r, o + r)

    def wo8_issue(m):
        for r in range(8):
            if (r >> 1) & 1 == 0:
                pass
            A('s_mov_b32 %s, %d' % (s(sT0), (64 * m + rowadd(r, 0)) * ROWB))
            for b in range(2):
                A('buffer_load_ushort v%d, v13, %s, %s offen offset:%d%s' % (
                    16 + 16 * m + 2 * r + b, s(SRD_A, 4), s(sT0), b * ROWB, nt))

    def wo8_consume(m):
        for rh in range(2):
            o = TMP[rh]
            for r in range(4):
                rr = 16 + 16 * m + 2 * (4 * rh + r)
                A('v_lshl_or_b32 v%d, v%d, 16, v%d' % (o + r, rr + 1, rr))
            if m == 1:
                A('ds_write_b128 %s, %s offset:%d' % (v(vWo), v(o, 4), (9 + 8) * 2048 + rh * 1024))
            else:
                for r in range(4):
                    put(f_wo(8), 4 * rh + r, o + r)

    for m in range(2):
        for rh in range(2):
            st.add(16, lambda m=m, rh=rh: wo_issue(m, rh), lambda m=m, rh=rh: wo_consume(m, rh),
                   range(128 + 32 * (2 * m + rh), 160 + 32 * (2 * m + rh)))
    for m in range(2):
        st.add(16, lambda m=m: wo8_issue(m), lambda m=m: wo8_consume(m))

    def qk_raw(m, i, n=1):
        return v(128 + 32 * (m & 3) + i, n)

    def qk_issue(m):
        for r in range(8):
            for b in range(2):
                A('s_mov_b32 %s, %d' % (s(sT0), (64 * m + rowadd(r, b)) * 8192))
                A('buffer_load_dwordx2 %s, v14, %s, %s offen%s' % (qk_raw(m, 4 * r + 2 * b, 2), s(SRD_B, 4), s(sT0), nt))

    def qk_consume(m):
        base = 128 + 32 * (m & 3)
        for t in range(4):
            for r in range(8):
                lo, hi = base + 4 * r + (t >> 1), base + 4 * r + 2 + (t >> 1)
                sel = s(sPHI if t & 1 else sPLO)
                tmp = 48 + 8 * (t & 1) + r
                A('v_perm_b32 v%d, v%d, v%d, %s' % (tmp, hi, lo, sel))
                if t < 3:
                    put(f_qk(m, t), r, tmp)
            if t == 3:
                A('ds_write_b128 %s, %s offset:%d' % (v(vWo), v(56, 4), m * 2048))
                A('ds_write_b128 %s, %s offset:%d' % (v(vWo), v(60, 4), m * 2048 + 1024))

    for m in range(9):
        st.add(16, lambda m=m: qk_issue(m), lambda m=m: qk_consume(m), range(128 + 32 * (m & 3), 160 + 32 * (m & 3)))

    def v_issue(m):
        for r in range(8):
            for b in range(2):
                A('s_mov_b32 %s, %d' % (s(sT0), (64 * m + rowadd(r, b)) * 8192))
                A('buffer_load_dword v%d, v15, %s, %s offen%s' % (112 + 16 * m + 8 * b + r, s(SRD_C, 4), s(sT0), nt))

    def v_consume(m):
        for r in range(8):
            t0, t1 = 112 + 16 * m + r, 112 + 16 * m + 8 + r
            tmp = 16 + (r & 7)
            A('v_perm_b32 v%d, v%d, v%d, %s' % (tmp, t1, t0, s(sPLO)))
            A('v_perm_b32 v%d, v%d, v%d, %s' % (t1, t1, t0, s(sPHI)))
            A('v_mov_b32 v%d, v%d' % (t0, tmp))

    for m in (0, 3, 4, 5, 6, 7, 8, 1, 2):
        st.add(16, lambda m=m: v_issue(m), lambda m=m: v_consume(m), range(112 + 16 * m, 128 + 16 * m))
    st.run()

    A('s_mov_b32 %s, 0' % s(sStep))
    A('s_mov_b32 %s, 0x%x' % (s(sMRd), MEMR_OFF))
    A('s_mov_b32 %s, 0' % s(sTag))
    A('s_mov_b32 %s, 0' % s(sTag2))
    A('s_mov_b32 %s, %d' % (s(sPW1), PART_OFF + 32768))
    A('s_mov_b32 %s, %s' % (s(sC2), s(sC)))
    A('s_mov_b32 %s, %s' % (s(sC2 + 1), s(sC)))
    A('s_mov_b32 %s, 0x%x' % (s(sMRd1), MEMR_OFF + 4096))
    A('s_mov_b32 %s, 0x%x' % (s(sMRd2), MEMR_OFF + 8192))
    A('s_mov_b32 %s, 0x%x' % (s(sMWr), MEMR_OFF + MEMR_STRIDE))
    A('s_mov_b32 %s, 0x%x' % (s(sMPrev), MEMR_OFF + 2 * MEMR_STRIDE))
    A('s_mov_b32 %s, %d' % (s(sPB), PART_OFF))
    A('s_mul_i32 %s, %s, %d' % (s(sKV), s(sH), QKV_BLK))
    A('s_add_u32 %s, %s, 0x%x' % (s(sKV), s(sKV), QKV_OFF))
    A('s_lshl_b32 %s, %s, 13' % (s(sKVM), s(sH)))
    A('s_add_u32 %s, %s, 0x%x' % (s(sKVM), s(sKVM), KVM_OFF))
    A('s_lshl_b32 %s, s4, 11' % s(sT0))
    A('s_add_u32 %s, %s, %s' % (s(sKVM), s(sKVM), s(sT0)))
    lw, lw2 = A.newlabel('R_team'), A.newlabel('R_teamok')
    A.label(lw)
    A('buffer_load_dword v26, off, %s, 0 offset:8 sc1' % s(SRD_DBG, 4))
    A('s_waitcnt vmcnt(0) lgkmcnt(0)')
    A('v_readfirstlane_b32 %s, v26' % s(sT0))
    A('s_and_b32 %s, %s, 0xffff' % (s(sT1), s(sT0)))
    A('s_cmp_ge_u32 %s, 32' % s(sT1))
    A('s_cbranch_scc1 %s' % lw2)
    A('s_sub_u32 %s, %s, 1' % (s(sSpin), s(sSpin)))
    A('s_cmp_gt_i32 %s, 0' % s(sSpin))
    A('s_cbranch_scc1 %s' % lw)
    A.label(lw2)
    A('s_lshl_b32 %s, %s, 3' % (s(sFA1), s(sH)))
    A('s_add_u32 %s, %s, 0x%x' % (s(sFA1), s(sFA1), FLAG_OFF + F_A1))
    A('s_lshl_b32 %s, %s, 7' % (s(sFLAGO), s(sH)))
    A('s_add_u32 %s, %s, 0x%x' % (s(sFLAGO), s(sFLAGO), FLAG_OFF + F_R))
    A('s_cmp_eq_u32 s4, 3')
    A('s_cselect_b32 %s, %s, 0x%x' % (s(sFLAGO), s(sFLAGO), OOB))
    A('s_mov_b32 %s, %d' % (s(sA1), 0 if flags else 64))
    A('s_mov_b32 %s, 1' % s(sNeedKV))
    if flags:
        import roles
        roles.dbg_wait(A, roles.D_RDY, roles.NAUX, 26, sT1, sSpin)
        wait_kv(A, 26)
    A('s_lshl_b32 %s, s4, 11' % s(sT1))
    A('s_add_u32 %s, %s, %d' % (s(sM0K), s(sT1), L_KT))
    A('s_mov_b32 m0, %s' % s(sM0K))
    A('s_lshl_b32 %s, s4, 8' % s(sM0P))
    A('s_add_u32 %s, %s, %d' % (s(sM0P), s(sM0P), L_MISC))
    A('s_lshl_b32 %s, s4, 12' % s(sPF))
    A('s_add_u32 %s, %s, %s' % (s(sPF), s(sPF), s(sKV)))
    A('s_add_u32 %s, %s, %d' % (s(sPF), s(sPF), 2 * NH * QKV_BLK + 8192))
    A('s_add_u32 %s, %s, %s' % (s(sKV), s(sKV), s(sT1)))
    A('s_add_u32 %s, %s, 16384' % (s(sKV), s(sKV)))
    A('s_sub_u32 %s, %s, 8192' % (s(sT1), s(sKV)))
    A('buffer_load_dwordx4 %s, %s, %s offen sc1 lds' % (v(vL16), s(SRD_WS, 4), s(sT1)))
    A('buffer_load_dwordx4 %s, %s, %s offen offset:1024 sc1 lds' % (v(vL16), s(SRD_WS, 4), s(sT1)))
    for i in range(48, 64, 2):
        A('v_mov_b64 %s, 0' % v(i, 2))
    A('s_waitcnt lgkmcnt(0)')
    for q in range(2):
        ring = RB if q % 2 == 0 else RA
        A('ds_read_b128 %s, %s offset:%d' % (v(ring, 4), v(vWo), KORD[q] * 2048))
        A('ds_read_b128 %s, %s offset:%d' % (v(ring + 4, 4), v(vWo), KORD[q] * 2048 + 1024))
    A('s_waitcnt vmcnt(0) lgkmcnt(0)')
    A('s_barrier')
    if stamps:
        for i in range(16):
            A('s_mov_b32 %s, 0' % s(sST + 4 + i))
        A('s_memrealtime %s' % s(sST, 2))
        A('s_waitcnt lgkmcnt(0)')
        A('s_mov_b32 %s, %s' % (s(sST + 4 + 11), s(sST)))
        A('s_sub_u32 %s, %s, %s' % (s(sST + 4 + 10), s(sST), s(sST + 22)))
        A('s_memtime %s' % s(sST, 2))
        A('s_waitcnt lgkmcnt(0)')
    A('s_lshr_b32 %s, %s, 16' % (s(sT0), s(sT0)))
    A('s_cmp_lg_u32 %s, 0' % s(sT0))
    A('s_cbranch_scc1 R_loop_slow')
    gen_loop(A, opt, 'fast')
    gen_loop(A, opt, 'slow')


def gen_loop(A, opt, mode):
    stamps = opt.get('stamps', False)
    stsel = opt.get('stsel', list(range(8)))
    flags = opt.get('flags', True)
    sc = ' sc1' if mode == 'slow' else ''
    L = lambda n: 'R_%s_%s' % (n, mode)
    WS = s(SRD_WS, 4)
    NFIRST = opt.get('nfirst', 4)
    BLK = NH * QKV_BLK

    def stamp(i):
        if not stamps or i not in stsel:
            return
        A('s_memtime %s' % s(sST + 2, 2))
        A('s_waitcnt lgkmcnt(0)')
        A('s_sub_u32 %s, %s, %s' % (s(sT3), s(sST + 2), s(sST)))
        A('s_add_u32 %s, %s, %s' % (s(sST + 4 + i), s(sST + 4 + i), s(sT3)))
        A('s_mov_b32 %s, %s' % (s(sST), s(sST + 2)))

    def smf(d, aa, b):
        A('v_smfmac_f32_16x16x64_bf16 %s, %s, %s, %s' % (v(d, 4), v(aa, 4), b, v(vIdx)))

    def vs(q, t):
        smf(AV[t], M[q], wv(KORD[q], t))

    def mload(q):
        A('buffer_load_dwordx4 %s, %s, %s, %s offen offset:%d sc1' % (
            v(M[q], 4), v(vL16), WS, s([sMRd, sMRd1, sMRd2][q >> 2]), 1024 * (q & 3)))

    def check(q):
        A('v_cmp_u_f32 vcc, v%d, v%d' % (M[q], M[q] + 2))

    def ldshalf(dst, slot, h):
        A('ds_read_b128 %s, %s offset:%d' % (v(dst + 4 * h, 4), v(vWo), slot * 2048 + 1024 * h))

    def ldsfrag(dst, slot):
        ldshalf(dst, slot, 0)
        ldshalf(dst, slot, 1)

    def z2(r):
        A('v_mov_b64 %s, 0' % v(r, 2))

    ring = lambda q: RB if q % 2 == 0 else RA

    A('.p2align 6')
    A.label(L('loop'))
    for q in range(NFIRST):
        mload(q)
    A.label(L('mpoll'))
    A('s_waitcnt vmcnt(%d)' % (NFIRST - 1))
    check(0)
    A('s_cbranch_vccnz %s' % L('retry0'))
    A.label(L('mok0'))
    stamp(0)
    issued = NFIRST
    extra = 0
    burst = opt.get('burst', 2)
    for q in range(9):
        m = KORD[q]
        smf(AQ[0], M[q], wqk(m, 0))
        if issued < 9 and burst >= 2:
            mload(issued)
            issued += 1
        if q < 8:
            A('s_waitcnt vmcnt(%d)' % (issued - 1 - (q + 1) + extra))
            check(q + 1)
        else:
            z2(RA)
        smf(AQ[1], M[q], wqk(m, 1))
        if issued < 9:
            mload(issued)
            issued += 1
        if q == 8:
            z2(RA + 2)
        smf(AQ[2], M[q], wqk(m, 2))
        if q >= 2:
            A('s_waitcnt lgkmcnt(%d)' % (2 if q < 8 else 0))
        if q < 8:
            A('s_cbranch_vccnz %s' % L('retry%d' % (q + 1)))
            A.label(L('mok%d' % (q + 1)))
        else:
            z2(RA + 4)
        smf(AQ[3], M[q], v(ring(q), 8))
        if q + 2 < 9:
            ldsfrag(ring(q), KORD[q + 2])
        if q == 8:
            z2(RA + 6)
    assert issued == 9
    T = M[0]
    VT = [RB, RB + 4]
    vs(0, 0)
    A('buffer_load_dwordx4 %s, %s, %s, %s offen sc1' % (v(VT[0], 4), v(vL16), WS, s(sKV)))
    A('v_add_u32 v%d, %d, %s' % (VP, L_KT, v(vL16)))
    vs(0, 1)
    A('buffer_load_dwordx4 %s, %s, %s, %s offen offset:1024 sc1' % (v(VT[1], 4), v(vL16), WS, s(sKV)))
    for t in range(4):
        A('v_add_f32 v%d, v%d, v%d' % (AQ[t], AQ[t], AQ[t] + 1))
        A('v_add_f32 v%d, v%d, v%d' % (AQ[t] + 1, AQ[t] + 2, AQ[t] + 3))
    A('v_cvt_pk_bf16_f32 v%d, v%d, v%d' % (T, AQ[0], AQ[1]))
    A('v_cvt_pk_bf16_f32 v%d, v%d, v%d' % (T + 1, AQ[2], AQ[3]))
    A('v_cvt_pk_bf16_f32 v%d, v%d, v%d' % (T + 2, AQ[0] + 1, AQ[1] + 1))
    A('v_cvt_pk_bf16_f32 v%d, v%d, v%d' % (T + 3, AQ[2] + 1, AQ[3] + 1))
    vs(1, 0)
    A('ds_write2_b64 %s, %s, %s offset0:0 offset1:34' % (v(vXW), v(T, 2), v(T + 2, 2)))
    stamp(1)
    KT = {(0, 0): AQ[0], (0, 1): AQ[1], (1, 0): AQ[2], (1, 1): AQ[3], (2, 0): M[4], (2, 1): M[5], (3, 0): AQ[0], (3, 1): AQ[1]}

    def ktread(m, aa):
        A('ds_read_b128 %s, v%d offset:%d' % (v(KT[(m, aa)], 4), VP, (2 * m + aa) * 1024))
    vs(1, 1)
    ktread(0, 0)
    ktread(0, 1)
    vs(2, 0)
    ktread(1, 0)
    ktread(1, 1)
    vs(2, 1)
    A('buffer_store_dwordx4 %s, %s, %s, %s offen sc1' % (v(T, 4), v(vL16), WS, s(sKVM)))
    vs(3, 0)
    A('s_add_u32 %s, %s, 2' % (s(sNeedKV), s(sStep)))
    A('s_min_u32 %s, %s, %d' % (s(sNeedKV), s(sNeedKV), NSEG - 1))
    A('s_cmp_gt_u32 %s, %s' % (s(sA1), s(sNeedKV)))
    vs(3, 1)
    A('s_waitcnt lgkmcnt(4)')
    A('s_barrier')
    A('ds_read_b128 %s, %s' % (v(M[0], 4), v(vXR)))
    vs(4, 0)
    A('ds_read_b128 %s, %s offset:64' % (v(M[1], 4), v(vXR)))
    A('ds_read_b128 %s, %s offset:128' % (v(M[2], 4), v(vXR)))
    vs(4, 1)
    A('ds_read_b128 %s, %s offset:192' % (v(M[3], 4), v(vXR)))
    ktread(2, 0)
    vs(5, 0)
    if flags:
        A('s_cbranch_scc0 %s' % L('kvwait'))
        A.label(L('kvok'))
    A('v_lshlrev_b32 v%d, 2, %s' % (VP + 1, v(vL16)))
    vs(5, 1)
    A('s_mov_b32 m0, %s' % s(sM0P))
    ktread(2, 1)
    vs(6, 0)
    A('s_cmp_lt_u32 %s, %d' % (s(sStep), NSEG - 2))
    A('s_cselect_b32 %s, %s, 0x%x' % (s(sT1), s(sPF), OOB))
    vs(6, 1)
    A('buffer_load_dword v%d, %s, %s offen sc1 lds' % (VP + 1, WS, s(sT1)))
    A('v_mov_b32 v%d, %s' % (VP + 1, s(sStep)))
    vs(7, 0)
    A('s_add_u32 %s, %s, %d' % (s(sPF), s(sPF), BLK))
    A('s_add_u32 %s, %s, %d' % (s(sKV), s(sKV), BLK))
    vs(7, 1)
    A('s_mov_b64 exec, 1')
    A('buffer_store_dword v%d, off, %s, %s sc1' % (VP + 1, WS, s(sFLAGO)))
    A('s_mov_b64 exec, -1')
    vs(8, 0)
    A('s_mov_b32 m0, %s' % s(sM0K))
    A('s_sub_u32 %s, %s, 8192' % (s(sT1), s(sKV)))
    vs(8, 1)
    stamp(2)
    S0, S1, SM = M[6], M[7], M[8]
    F = [M[0], M[2], AQ[0]]
    order = [8, 0, 1, 2, 3, 4, 5, 6, 7]

    def fread(i):
        ldsfrag(F[i % 3], 9 + order[i])

    waits = {0: 5, 1: 6, 2: 2, 3: 2}
    P, PM = M[4], M[5]
    for m in range(4):
        A('s_waitcnt lgkmcnt(%d)' % waits[m])
        c = lambda d: '0' if m == 0 else v(d, 4)
        A('v_mfma_f32_16x16x32_bf16 %s, %s, %s, %s' % (v(S0, 4), v(KT[(m, 0)], 4), v(M[m], 4), c(S0)))
        if m == 0:
            ktread(3, 0)
        if m == 2:
            A('v_add_f32 v64, v64, v65')
            A('v_add_f32 v65, v66, v67')
        if m == 3:
            A('v_cvt_pk_bf16_f32 v%d, v64, v65' % VP)
            A('v_cvt_pk_bf16_f32 v%d, v68, v69' % (VP + 1))
        A('v_mfma_f32_16x16x32_bf16 %s, %s, %s, %s' % (v(S1, 4), v(KT[(m, 1)], 4), v(M[m], 4), c(S1)))
        if m == 0:
            ktread(3, 1)
        if m == 2:
            A('v_add_f32 v68, v68, v69')
            A('v_add_f32 v69, v70, v71')
        if m == 3:
            A('v_mov_b32 v%d, 0' % (PM + 1))
            A('v_mov_b32 v%d, 0' % (PM + 2))
        A('v_mfma_f32_16x16x32_bf16 %s, %s, %s, %s' % (v(SM, 4), v(M[m], 4), v(M[m], 4), c(SM)))
        if m == 1:
            A('s_cmp_eq_u32 %s, %d' % (s(sStep), NSEG - 1))
        if m == 2:
            fread(0)
    A('buffer_store_dwordx2 %s, %s, %s, %s offen offset:1024 sc1' % (v(VP, 2), v(vL16), WS, s(sKVM)))
    fread(1)
    A('s_cbranch_scc1 %s' % L('done'))
    sv = [S0, S0 + 1, S0 + 2, S0 + 3, S1, S1 + 1, S1 + 2, S1 + 3, SM, SM + 1]
    mx, t = SM + 2, SM + 3
    A('v_max3_f32 v%d, v%d, v%d, v%d' % (68, sv[0], sv[1], sv[2]))
    A('v_max3_f32 v%d, v%d, v%d, v%d' % (69, sv[3], sv[4], sv[5]))
    A('v_max3_f32 v%d, v%d, v%d, v%d' % (68, 68, sv[6], sv[7]))
    A('v_max3_f32 v%d, v%d, v%d, v%d' % (69, 69, sv[8], sv[9]))
    A('v_max_f32 v%d, v68, v69' % mx)
    A('v_max_f32 v%d, v68, v69' % t)
    A('s_add_u32 %s, %s, %d' % (s(sKVM), s(sKVM), NH * KVM_BLK))
    A('s_add_u32 %s, %s, 1' % (s(sStep), s(sStep)))
    A('v_permlane16_swap_b32 v%d, v%d' % (mx, t))
    A('v_max_f32 v68, v%d, v%d' % (mx, t))
    A('v_max_f32 v69, v%d, v%d' % (mx, t))
    A('s_mov_b32 %s, %s' % (s(sT0), s(sMRd)))
    A('s_mov_b32 %s, %s' % (s(sMRd), s(sMWr)))
    A('v_permlane32_swap_b32 v68, v69')
    A('v_max_f32 v%d, v68, v69' % mx)
    A('v_mul_f32 v%d, %s, v%d' % (mx, s(sC), mx))
    for i in range(0, 10, 2):
        A('v_pk_fma_f32 %s, %s, %s, %s op_sel_hi:[1,1,0] neg_lo:[0,0,1] neg_hi:[0,0,1]' % (
            v(sv[i], 2), v(sv[i], 2), s(sC2, 2), v(mx, 2)))
    for x in sv:
        A('v_exp_f32 v%d, v%d' % (x, x))
    for i in range(4):
        A('v_cvt_pk_bf16_f32 v%d, v%d, v%d' % (P + i, sv[2 * i], sv[2 * i + 1]))
    A('v_cvt_pk_bf16_f32 v%d, v%d, v%d' % (PM, sv[8], sv[9]))
    stamp(3)
    O = [AQ[2], AQ[3]]
    A('s_waitcnt vmcnt(4)')
    A('v_mfma_f32_16x16x32_bf16 %s, %s, %s, 0' % (v(O[0], 4), v(VT[0], 4), v(P, 4)))
    A('v_mov_b32 v%d, v%d' % (PM + 3, PM))
    A('v_add_f32 v68, v%d, v%d' % (sv[0], sv[1]))
    A('v_mfma_f32_16x16x32_bf16 %s, %s, %s, 0' % (v(O[1], 4), v(VT[1], 4), v(P, 4)))
    A('v_add_f32 v69, v%d, v%d' % (sv[2], sv[3]))
    A('v_add_f32 v70, v%d, v%d' % (sv[4], sv[5]))
    A('v_mfma_f32_16x16x16_bf16 %s, %s, %s, %s' % (v(O[0], 4), v(VP, 2), v(PM, 2), v(O[0], 4)))
    A('v_add_f32 v71, v%d, v%d' % (sv[6], sv[7]))
    A('v_add3_f32 v68, v68, v%d, v%d' % (sv[8], sv[9]) if False else 'v_add_f32 v%d, v%d, v%d' % (mx, sv[8], sv[9]))
    A('v_mfma_f32_16x16x16_bf16 %s, %s, %s, %s' % (v(O[1], 4), v(VP, 2), v(PM + 2, 2), v(O[1], 4)))
    A('v_add_f32 v68, v68, v69')
    A('v_add_f32 v70, v70, v71')
    A('v_add_f32 v68, v68, v%d' % mx)
    A('v_add_f32 v%d, v68, v70' % mx)
    A('v_add_f32 v%d, v68, v70' % t)
    ACC = [M[6], M[7], M[5], RB, RB + 4, M[8], M[4], AQ[2], AQ[3]]
    z2(ACC[0])
    z2(ACC[0] + 2)
    A('v_permlane16_swap_b32 v%d, v%d' % (mx, t))
    A('v_add_f32 v68, v%d, v%d' % (mx, t))
    A('v_add_f32 v69, v%d, v%d' % (mx, t))
    z2(ACC[1])
    z2(ACC[1] + 2)
    A('v_permlane32_swap_b32 v68, v69')
    A('v_add_f32 v68, v68, v69')
    A('v_rcp_f32 v68, v68')
    A('s_mov_b64 exec, %s' % s(sQMASK, 2))
    for tt in range(2):
        for i in range(0, 4, 2):
            A('v_pk_mul_f32 %s, %s, v[68:69] op_sel_hi:[1,0]' % (v(O[tt] + i, 2), v(O[tt] + i, 2)))
    for i in range(4):
        A('v_cvt_pk_bf16_f32 v%d, v%d, v%d' % (P + i, O[0] + i, O[1] + i))
    A('ds_write_b128 %s, %s' % (v(vOW), v(P, 4)))
    A('s_mov_b64 exec, -1')
    fread(2)
    for k in (2, 3, 4, 5):
        z2(ACC[k])
        z2(ACC[k] + 2)
    A('s_waitcnt lgkmcnt(2)')
    A('s_barrier')
    OA = [64, 68]
    A('ds_read_b128 %s, %s' % (v(OA[0], 4), v(vOR)))
    A('ds_read_b128 %s, %s offset:128' % (v(OA[1], 4), v(vOR)))
    A('buffer_load_dwordx4 %s, %s, %s offen sc1 lds' % (v(vL16), WS, s(sT1)))
    A('buffer_load_dwordx4 %s, %s, %s offen offset:1024 sc1 lds' % (v(vL16), WS, s(sT1)))
    for k in (6, 7, 8):
        z2(ACC[k])
        z2(ACC[k] + 2)
    A('s_mov_b32 %s, %s' % (s(sMWr), s(sMPrev)))
    A('s_mov_b32 %s, %s' % (s(sMPrev), s(sT0)))
    A('s_add_u32 %s, %s, 4096' % (s(sMRd1), s(sMRd)))
    A('s_add_u32 %s, %s, 8192' % (s(sMRd2), s(sMRd)))
    stamp(4)
    pending = ['F2_lo', 'F2', 'OA0', 'OA1']

    def waitfor(tag):
        if tag in pending:
            k = pending.index(tag)
            rest = len(pending) - 1 - k
            A('s_waitcnt lgkmcnt(%d)' % rest)
            del pending[:k + 1]

    work = []
    lo = lambda ti: ACC[ti]
    hi = lambda ti: ACC[ti] + 1

    def fold(ti):
        acc = ACC[ti]
        work.append((ti, 'v_add_f32 v%d, v%d, v%d' % (acc, acc, acc + 1)))
        work.append((ti, 'v_add_f32 v%d, v%d, v%d' % (acc + 1, acc + 2, acc + 3)))
    fold(0)
    work.append((0, 'v_cvt_pk_bf16_f32 v%d, v%d, v%d' % (VP, lo(0), hi(0))))
    work.append((0, 'v_bfi_b32 v%d, 1, %s, v%d' % (VP, s(sTag), VP)))
    work.append((0, 'buffer_store_dword v%d, %s, %s, %s offen%s' % (VP, v(vPart8), WS, s(sPB), sc)))
    for half in range(2):
        b = 1 + 4 * half
        Q = ACC[half]
        for pr in range(2):
            fold(b + 2 * pr)
            fold(b + 2 * pr + 1)
            work.append((b + 2 * pr + 1, 'v_cvt_pk_bf16_f32 v%d, v%d, v%d' % (Q + pr, lo(b + 2 * pr), lo(b + 2 * pr + 1))))
            work.append((b + 2 * pr + 1, 'v_cvt_pk_bf16_f32 v%d, v%d, v%d' % (Q + 2 + pr, hi(b + 2 * pr), hi(b + 2 * pr + 1))))
            if pr == 0:
                work.append((b + 1, 'v_bfi_b32 v%d, 1, %s, v%d' % (Q, s(sTag), Q)))
        work.append((b + 3, 'buffer_store_dwordx4 %s, %s, %s, %s offen%s' % (v(Q, 4), v(vPartOff), WS, s(sPW1 if half else sPB), sc)))
    nv = opt.get('wo_nv', 2)

    def fill(done, n):
        k = 0
        while work and work[0][0] <= done and (k < n or work[0][1].startswith('buffer')):
            it = work.pop(0)[1]
            if it.startswith('buffer'):
                if k:
                    work.insert(0, (done, it))
                    break
                A(it)
            else:
                A(it)
                k += 1

    for ti in range(9):
        waitfor('OA0')
        smf(ACC[ti], OA[0], wfrag(f_wo(order[ti])))
        waitfor('OA1')
        waitfor('F%d' % ti)
        fill(ti - 2, nv)
        smf(ACC[ti], OA[1], v(F[ti % 3], 8))
        if ti + 3 < 9:
            fread(ti + 3)
            pending += ['F%d_lo' % (ti + 3), 'F%d' % (ti + 3)]
            fill(ti - 2, 1)
        else:
            fill(ti - 2 if ti < 8 else ti - 1, nv)
    ldsfrag(RA, KORD[1])
    while work:
        A(work.pop(0)[1])
    stamp(5)
    ldsfrag(RB, KORD[0])
    SEL, RD = M[5], M[8]
    for i in range(48, 64, 2):
        z2(i)
    A('s_cmp_ge_u32 %s, 72' % s(sUnit))
    A('s_cbranch_scc1 %s' % L('nored'))
    A('v_bfe_u32 v%d, %s, %s, 1' % (M[4], v(vL16), s(sSelBit)))
    A('v_lshlrev_b32 v%d, 4, v%d' % (M[4], M[4]))
    A('v_mov_b32 v%d, 0x3f80' % (M[4] + 1))
    A('v_lshlrev_b32 v%d, v%d, v%d' % (M[4], M[4], M[4] + 1))
    for q in range(4):
        A('v_cndmask_b32 v%d, 0, v%d, %s' % (SEL + q, M[4], s(sSEL + 2 * q, 2)))
    A('v_mov_b64 %s, -1' % v(VP, 2))
    A('s_waitcnt vmcnt(%d)' % opt.get('pre_poll_vm', 0))
    A.label(L('rpoll'))
    for i in range(4):
        A('buffer_load_dwordx4 %s, %s, %s, %s offen offset:%d sc1' % (v(M[i], 4), v(vL16), WS, s(sPR), 1024 * i))
    for i in range(4):
        A('s_waitcnt vmcnt(%d)' % (3 - i))
        A('v_mfma_f32_16x16x32_bf16 %s, %s, %s, %s' % (v(RD, 4), v(SEL, 4), v(M[i], 4), '0' if i == 0 else v(RD, 4)))
        if i == 1:
            A('v_bitop3_b32 v%d, v%d, v%d, %s bitop3:0x7e' % (M[6], M[0], M[1], s(sTag)))
    A('v_bitop3_b32 v%d, v%d, v%d, %s bitop3:0x7e' % (M[6] + 1, M[2], M[3], s(sTag)))
    A('v_bitop3_b32 v%d, v%d, v%d, 1 bitop3:0xa8' % (M[6], M[6], M[6] + 1))
    A('v_cmp_ne_u32 vcc, 0, v%d' % M[6])
    A('s_cbranch_vccnz %s' % L('rretry'))
    A.label(L('rok'))
    for i in range(4):
        A('v_add_f32_dpp v%d, v%d, v%d row_ror:8 row_mask:0xf bank_mask:0xf' % (M[4] + i, RD + i, RD + i))
    A('v_cvt_pk_bf16_f32 v%d, v%d, v%d' % (M[7], M[4], M[4] + 1))
    A('v_cvt_pk_bf16_f32 v%d, v%d, v%d' % (M[7] + 1, M[4] + 2, M[4] + 3))
    A('buffer_store_dwordx2 %s, %s, %s, %s offen%s' % (v(M[7], 2), v(vPub), WS, s(sMRd), sc))
    A('buffer_store_dwordx2 %s, %s, %s, %s offen%s' % (v(VP, 2), v(vPub), WS, s(sMPrev), sc))
    A.label(L('nored'))
    stamp(6)
    A('s_xor_b32 %s, %s, 1' % (s(sTag), s(sTag)))
    A('s_waitcnt vmcnt(%d) lgkmcnt(0)' % opt.get('pre_mem_vm', 0))
    A('s_barrier')
    stamp(7)
    A('s_branch %s' % L('loop'))

    A.label(L('retry0'))
    if stamps:
        A('s_add_u32 %s, %s, 1' % (s(sST + 4 + 8), s(sST + 4 + 8)))
    A('s_sub_u32 %s, %s, 1' % (s(sSpin), s(sSpin)))
    A('s_cmp_gt_i32 %s, 0' % s(sSpin))
    A('s_cbranch_scc0 %s' % L('mok0'))
    for q in range(NFIRST):
        mload(q)
    A('s_branch %s' % L('mpoll'))
    for q in range(1, 9):
        A.label(L('retry%d' % q))
        if stamps:
            A('s_add_u32 %s, %s, 0x10000' % (s(sST + 4 + 8), s(sST + 4 + 8)))
        A('s_sub_u32 %s, %s, 1' % (s(sSpin), s(sSpin)))
        A('s_cmp_gt_i32 %s, 0' % s(sSpin))
        A('s_cbranch_scc0 %s' % L('mok%d' % q))
        mload(q)
        A('s_waitcnt vmcnt(0)')
        check(q)
        A('s_cbranch_vccnz %s' % L('retry%d' % q))
        A('s_branch %s' % L('mok%d' % q))
    A.label(L('rretry'))
    if stamps:
        A('s_add_u32 %s, %s, 1' % (s(sST + 4 + 9), s(sST + 4 + 9)))
    A('s_sub_u32 %s, %s, 1' % (s(sSpin), s(sSpin)))
    A('s_cmp_gt_i32 %s, 0' % s(sSpin))
    A('s_cbranch_scc0 %s' % L('rok'))
    A('s_branch %s' % L('rpoll'))
    if flags:
        A.label(L('kvwait'))
        wait_kv(A, VP + 1)
        A('s_branch %s' % L('kvok'))

    A.label(L('done'))
    A('s_waitcnt vmcnt(0)')
    A('s_barrier')
    A('v_mov_b32 v%d, %d' % (VP, NSEG))
    A('s_mov_b64 exec, 1')
    A('buffer_store_dword v%d, off, %s, %s sc1' % (VP, WS, s(sFLAGO)))
    if stamps:
        A('s_memrealtime %s' % s(sST + 2, 2))
        A('s_waitcnt lgkmcnt(0)')
        A('s_sub_u32 %s, %s, %s' % (s(sST + 4 + 11), s(sST + 2), s(sST + 4 + 11)))
        A('s_lshl_b32 %s, %s, 2' % (s(sT0), s(sH)))
        A('s_add_u32 %s, %s, s4' % (s(sT0), s(sT0)))
        A('s_lshl_b32 %s, %s, 6' % (s(sT0), s(sT0)))
        A('s_add_u32 %s, %s, 0x%x' % (s(sT0), s(sT0), STAMP_OFF))
        for i in range(12):
            A('v_mov_b32 v20, %s' % s(sST + 4 + i))
            A('buffer_store_dword v20, off, %s, %s offset:%d' % (WS, s(sT0), 4 * i))
            A('s_nop 1')
    A('s_waitcnt vmcnt(0)')
    A('s_endpgm')
```

```python
import math
from asmlib import v, a, s
from layout import *
from role_r import Stream, srd, f2u, SRD_WS, SRD_DBG, SRD_A, SRD_B, SRD_C

WS = s(SRD_WS, 4)
sID, sItem, sSrc, sDst, sFlag, sSpin, sPLO, sPHI = range(28, 36)
sT0, sT1, sT2, sT3 = 36, 37, 38, 39
sBuf, sNeed, sFl2, sSrc2, sC, sHI = 40, 41, 42, 43, 44, 45
sMASK = 46
XBUF = 36864


def wf4(f):
    return ('a', 4 * f) if f < 64 else ('v', 80 + 4 * (f - 64))


def rg(t, n=1, off=0):
    return a(t[1] + off, n) if t[0] == 'a' else v(t[1] + off, n)


def put(A, dst, src):
    A('%s %s, v%d' % ('v_accvgpr_write_b32' if dst[0] == 'a' else 'v_mov_b32', dst, src))


def lane_consts(A):
    A('v_and_b32 v20, 63, v0')
    A('v_and_b32 v21, 15, v20')
    A('v_lshrrev_b32 v22, 4, v20')
    A('v_lshlrev_b32 v1, 4, v20')
    A('s_mov_b32 %s, 0x05040100' % s(sPLO))
    A('s_mov_b32 %s, 0x07060302' % s(sPHI))
    A('s_mov_b32 %s, 0xffff0000' % s(sHI))
    A('s_mov_b32 %s, %d' % (s(sSpin), 400000))


def stage_consts(A, vsrc, vxa0, vxa1):
    A('v_lshrrev_b32 v23, 3, v20')
    A('s_lshl_b32 %s, s4, 3' % s(sT0))
    A('v_add_u32 v23, %s, v23' % s(sT0))
    A('v_bfe_u32 v24, v23, 1, 3')
    A('v_and_b32 v25, 7, v20')
    A('v_xor_b32 v24, v24, v25')
    A('v_mul_u32_u24 v23, 1152, v23')
    A('v_lshl_add_u32 v%d, v24, 4, v23' % vsrc)
    A('v_lshrrev_b32 v23, 3, v21')
    A('v_lshlrev_b32 v23, 10, v23')
    A('v_and_b32 v24, 7, v21')
    A('v_lshl_add_u32 v23, v24, 7, v23')
    A('v_bfe_u32 v24, v21, 1, 3')
    A('v_xor_b32 v24, v24, v22')
    A('v_lshl_add_u32 v%d, v24, 4, v23' % vxa0)
    A('v_xor_b32 v%d, 64, v%d' % (vxa1, vxa0))


def stage_issue(A, vsrc, ssrc, sbuf):
    A('s_lshl_b32 %s, s4, 10' % s(sT0))
    A('s_add_u32 m0, %s, %s' % (s(sT0), s(sbuf)))
    for cb in range(9):
        if cb:
            A('s_add_u32 m0, m0, %d' % (4096 - 128))
        A('buffer_load_dwordx4 v%d, %s, %s offen offset:%d sc1 lds' % (vsrc, WS, s(ssrc), 128 * cb))


def poll(A, sflagoff, nlanes, sneed, vt, enable=True, first=None, sleep=2, wide=False):
    if not enable:
        if first:
            A('s_waitcnt vmcnt(0)')
            first()
        return
    l0, l1 = A.newlabel('poll'), A.newlabel('pollok')
    m = (1 << nlanes) - 1

    def setexec():
        A('s_mov_b32 exec_lo, 0x%x' % (m & 0xffffffff))
        A('s_mov_b32 exec_hi, 0x%x' % (m >> 32))
    def ld():
        if wide:
            A('buffer_load_dwordx4 %s, v%d, %s, %s offen sc1' % (v(vt, 4), vt + 4, WS, s(sflagoff)))
        else:
            A('buffer_load_dword v%d, v%d, %s, %s offen sc1' % (vt, vt + 1, WS, s(sflagoff)))
    A('v_lshlrev_b32 v%d, 3, v1' % (vt + (4 if wide else 1)))
    setexec()
    if first:
        l2 = A.newlabel('pollchk')
        ld()
        A('s_mov_b64 exec, -1')
        A('s_waitcnt vmcnt(0)')
        first()
        setexec()
        A('s_branch %s' % l2)
    A.label(l0)
    ld()
    A('s_waitcnt vmcnt(0)')
    if first:
        A.label(l2)
    if wide:
        A('v_min3_u32 v%d, v%d, v%d, v%d' % (vt, vt, vt + 1, vt + 2))
        A('v_min_u32 v%d, v%d, v%d' % (vt, vt, vt + 3))
    A('v_cmp_gt_u32 vcc, %s, v%d' % (s(sneed), vt))
    A('s_cbranch_vccz %s' % l1)
    A('s_sleep %d' % sleep)
    A('s_sub_u32 %s, %s, 1' % (s(sSpin), s(sSpin)))
    A('s_cmp_gt_i32 %s, 0' % s(sSpin))
    A('s_cbranch_scc1 %s' % l0)
    A.label(l1)
    A('s_mov_b64 exec, -1')


def signal(A, sflagoff, sval, vt):
    A('s_waitcnt vmcnt(0)')
    A('s_barrier')
    l = A.newlabel('nosig')
    A('s_cmp_lg_u32 s4, 0')
    A('s_cbranch_scc1 %s' % l)
    A('v_mov_b32 v%d, %s' % (vt, s(sval)))
    A('s_mov_b64 exec, 1')
    A('buffer_store_dword v%d, off, %s, %s sc1' % (vt, WS, s(sflagoff)))
    A('s_mov_b64 exec, -1')
    A.label(l)


def wave_signal(A, sflagoff, sval, vt):
    A('v_mov_b32 v%d, %s' % (vt, s(sval)))
    A('s_mov_b64 exec, 1')
    A('buffer_store_dword v%d, off, %s, %s sc1' % (vt, WS, s(sflagoff)))
    A('s_mov_b64 exec, -1')


def role_end(A, opt):
    if opt.get('stamps'):
        A('s_memrealtime s[98:99]')
        A('s_lshl_b32 %s, s3, 4' % s(sT0))
        A('s_add_u32 %s, %s, 0x%x' % (s(sT0), s(sT0), STAMP_OFF + 0x4000))
        A('s_waitcnt lgkmcnt(0)')
        A('v_mov_b32 v8, s100')
        A('v_mov_b32 v9, s98')
        A('v_mov_b32 v10, s96')
        A('v_mov_b32 v11, s97')
        A('s_mov_b64 exec, 1')
        A('buffer_store_dwordx4 v[8:11], off, %s, %s' % (WS, s(sT0)))
        A('s_lshl_b32 %s, s3, 2' % s(sT0))
        A('s_add_u32 %s, %s, s4' % (s(sT0), s(sT0)))
        A('s_lshl_b32 %s, %s, 6' % (s(sT0), s(sT0)))
        A('s_add_u32 %s, %s, 0x%x' % (s(sT0), s(sT0), STAMP2_OFF))
        for i in range(16):
            A('v_mov_b32 v%d, s%d' % (12 + i, 80 + i))
        for i in range(4):
            A('buffer_store_dwordx4 %s, off, %s, %s offset:%d' % (v(12 + 4 * i, 4), WS, s(sT0), 16 * i))
    A('s_waitcnt vmcnt(0)')
    A('s_endpgm')


def lap(A, opt, i):
    if opt.get('stamps'):
        A('s_memrealtime s[98:99]')
        A('s_waitcnt lgkmcnt(0)')
        A('s_sub_u32 s99, s98, s97')
        A('s_add_u32 s%d, s%d, s99' % (80 + i, 80 + i))
        A('s_mov_b32 s97, s98')
        A('s_mov_b32 s%d, s98' % (88 + i))


def mark(A, opt, reg):
    if opt.get('stamps'):
        A('s_memrealtime s[98:99]')
        A('s_waitcnt lgkmcnt(0)')
        A('s_mov_b32 s%d, s98' % reg)
        A('s_mov_b32 s97, s98')
        for i in range(8):
            A('s_mov_b32 s%d, 0' % (80 + i))


def mfma(A, d, x, y, c):
    A('v_mfma_f32_16x16x32_bf16 %s, %s, %s, %s' % (d, x, y, c))


def load_cols2(A, st, srdreg, voff, stride, frag, nks, raw, nt):
    def issue(ks):
        for j in range(8):
            A('s_mov_b32 %s, %d' % (s(sT0), (32 * ks + j) * stride))
            A('buffer_load_dword v%d, v%d, %s, %s offen%s' % (raw(ks) + j, voff, s(srdreg, 4), s(sT0), nt))

    def consume(ks):
        for t in range(2):
            for r in range(4):
                d = frag(ks, t)
                if d[0] == 'a':
                    tmp = 24 + 4 * t + r
                    A('v_perm_b32 v%d, v%d, v%d, %s' % (tmp, raw(ks) + 2 * r + 1, raw(ks) + 2 * r, s(sPHI if t else sPLO)))
                    put(A, rg(d, 1, r), tmp)
                else:
                    A('v_perm_b32 %s, v%d, v%d, %s' % (rg(d, 1, r), raw(ks) + 2 * r + 1, raw(ks) + 2 * r, s(sPHI if t else sPLO)))
    for ks in range(nks):
        st.add(8, lambda ks=ks: issue(ks), lambda ks=ks: consume(ks), range(raw(ks), raw(ks) + 8))


def load_cols4(A, st, srdreg, voff, stride, frag, nks, raw, nt):
    def issue(ks):
        for j in range(8):
            A('s_mov_b32 %s, %d' % (s(sT0), (32 * ks + j) * stride))
            A('buffer_load_dwordx2 %s, v%d, %s, %s offen%s' % (v(raw(ks) + 2 * j, 2), voff, s(srdreg, 4), s(sT0), nt))

    def consume(ks):
        for t in range(4):
            for r in range(4):
                d = frag(ks, t)
                lo, hi = raw(ks) + 4 * r + (t >> 1), raw(ks) + 4 * r + 2 + (t >> 1)
                sel = s(sPHI if t & 1 else sPLO)
                if d[0] == 'a':
                    tmp = 24 + 4 * (t & 1) + r
                    A('v_perm_b32 v%d, v%d, v%d, %s' % (tmp, hi, lo, sel))
                    put(A, rg(d, 1, r), tmp)
                else:
                    A('v_perm_b32 %s, v%d, v%d, %s' % (rg(d, 1, r), hi, lo, sel))
    for ks in range(nks):
        st.add(8, lambda ks=ks: issue(ks), lambda ks=ks: consume(ks), range(raw(ks), raw(ks) + 16))


def load_out(A, st, srdreg, voff16, voff2, frag, nks, raw, nt):
    def issue(ks):
        for h in range(2):
            A('s_mov_b32 %s, %d' % (s(sT0), (32 * ks + 4 * h) * ROWB))
            for j in range(4):
                A('buffer_load_dwordx4 %s, v%d, %s, %s offen offset:%d%s' % (
                    v(raw(ks) + 4 * (4 * h + j), 4), voff16, s(srdreg, 4), s(sT0), j * ROWB, nt))
            for j in range(4):
                A('buffer_load_ushort v%d, v%d, %s, %s offen offset:%d%s' % (
                    raw(ks) + 32 + 4 * h + j, voff2, s(srdreg, 4), s(sT0), j * ROWB, nt))

    def consume(ks):
        for j in range(9):
            for r in range(4):
                d = frag(ks, j)
                tmp = 24 + 4 * (j & 1) + r
                dst = 'v%d' % tmp if d[0] == 'a' else rg(d, 1, r)
                if j < 8:
                    A('v_perm_b32 %s, v%d, v%d, %s' % (dst, raw(ks) + 8 * r + 4 + (j >> 1), raw(ks) + 8 * r + (j >> 1),
                                                      s(sPHI if j & 1 else sPLO)))
                else:
                    A('v_lshl_or_b32 %s, v%d, 16, v%d' % (dst, raw(ks) + 32 + 2 * r + 1, raw(ks) + 32 + 2 * r))
                if d[0] == 'a':
                    put(A, rg(d, 1, r), tmp)
    for ks in range(nks):
        st.add(16, lambda ks=ks: issue(ks), lambda ks=ks: consume(ks), range(raw(ks), raw(ks) + 40))


def out_consts(A, srow0, v16, v2):
    A('v_lshlrev_b32 v23, 3, v22')
    A('v_add_u32 v23, %s, v23' % s(srow0))
    A('s_mov_b32 %s, 1152' % s(sT1))
    A('v_mul_lo_u32 v23, v23, %s' % s(sT1))
    A('s_lshl_b32 %s, s4, 8' % s(sT0))
    A('v_lshl_add_u32 v24, v21, 4, v23')
    A('v_add_u32 v%d, %s, v24' % (v16, s(sT0)))
    A('s_lshl_b32 %s, s4, 5' % s(sT0))
    A('s_add_u32 %s, %s, 1024' % (s(sT0), s(sT0)))
    A('v_lshl_add_u32 v24, v21, 1, v23')
    A('v_add_u32 v%d, %s, v24' % (v2, s(sT0)))


def pstore_consts(A, tokstride, vp, vp8):
    A('s_mov_b32 %s, %d' % (s(sT1), 4 * tokstride))
    A('v_mul_lo_u32 v23, v22, %s' % s(sT1))
    A('v_lshl_add_u32 v23, v21, 4, v23')
    A('s_lshl_b32 %s, s4, 8' % s(sT0))
    A('v_add_u32 v%d, %s, v23' % (vp, s(sT0)))
    A('s_mov_b32 %s, %d' % (s(sT1), tokstride))
    A('v_mul_lo_u32 v23, v21, %s' % s(sT1))
    A('v_lshl_add_u32 v23, v22, 3, v23')
    A('s_lshl_b32 %s, s4, 5' % s(sT0))
    A('s_add_u32 %s, %s, 1024' % (s(sT0), s(sT0)))
    A('v_add_u32 v%d, %s, v23' % (vp8, s(sT0)))


def out_gemm(A, nks, frag, vla, ldsoff, XF, ACC, OUT, vp, vp8, sdst, tokstride):
    for aa in range(2):
        for ks in range(nks):
            A('ds_read_b128 %s, v%d offset:%d' % (v(XF + 4 * ks, 4), vla, ldsoff + (2 * ks + aa) * 1024))
        for ks in range(nks):
            A('s_waitcnt lgkmcnt(%d)' % (nks - 1 - ks))
            for j in range(9):
                c = '0' if ks == 0 else v(ACC + 4 * j, 4)
                if j < 8:
                    mfma(A, v(ACC + 4 * j, 4), v(XF + 4 * ks, 4), rg(frag(ks, j), 4), c)
                else:
                    mfma(A, v(ACC + 4 * j, 4), rg(frag(ks, j), 4), v(XF + 4 * ks, 4), c)
        for i in range(4):
            o = OUT + 4 * (i & 1)
            for q in range(4):
                A('v_cvt_pk_bf16_f32 v%d, v%d, v%d' % (o + q, ACC + 8 * q + i, ACC + 8 * q + 4 + i))
            A('s_add_u32 %s, %s, %d' % (s(sT0), s(sdst), (16 * aa + i) * tokstride))
            A('buffer_store_dwordx4 %s, v%d, %s, %s offen sc1' % (v(o, 4), vp, WS, s(sT0)))
        A('v_cvt_pk_bf16_f32 v%d, v%d, v%d' % (ACC + 32, ACC + 32, ACC + 33))
        A('v_cvt_pk_bf16_f32 v%d, v%d, v%d' % (ACC + 33, ACC + 34, ACC + 35))
        A('s_add_u32 %s, %s, %d' % (s(sT0), s(sdst), 16 * aa * tokstride))
        A('buffer_store_dwordx2 %s, v%d, %s, %s offen sc1' % (v(ACC + 32, 2), vp8, WS, s(sT0)))


def out_gemm2(A, nks, frag, vla, ldsoff, XF, ACC0, ACC1, OUT, vp, vp8, sdst, tokstride, fillers):
    def rd(ks, aa):
        A('ds_read_b128 %s, v%d offset:%d' % (v(XF + 4 * ks, 4), vla, ldsoff + (2 * ks + aa) * 1024))

    def epilogue(aa, ACC):
        out = []
        for i in range(4):
            o = OUT + 4 * (i & 1)
            for q in range(0, 4, 2):
                out.append(lambda o=o, q=q, i=i: (
                    A('v_cvt_pk_bf16_f32 v%d, v%d, v%d' % (o + q, ACC + 8 * q + i, ACC + 8 * q + 4 + i)),
                    A('v_cvt_pk_bf16_f32 v%d, v%d, v%d' % (o + q + 1, ACC + 8 * q + 8 + i, ACC + 8 * q + 12 + i))))
            out.append(lambda o=o, i=i: (
                A('s_add_u32 %s, %s, %d' % (s(sT0), s(sdst), (16 * aa + i) * tokstride)),
                A('buffer_store_dwordx4 %s, v%d, %s, %s offen sc1' % (v(o, 4), vp, WS, s(sT0)))))
        out.append(lambda: (A('v_cvt_pk_bf16_f32 v%d, v%d, v%d' % (ACC + 32, ACC + 32, ACC + 33)),
                            A('v_cvt_pk_bf16_f32 v%d, v%d, v%d' % (ACC + 33, ACC + 34, ACC + 35))))
        out.append(lambda: (A('s_add_u32 %s, %s, %d' % (s(sT0), s(sdst), 16 * aa * tokstride)),
                            A('buffer_store_dwordx2 %s, v%d, %s, %s offen sc1' % (v(ACC + 32, 2), vp8, WS, s(sT0)))))
        return out
    for ks in range(nks):
        rd(ks, 0)
    for aa, ACC in enumerate((ACC0, ACC1)):
        fl = list(fillers) if aa == 0 else epilogue(0, ACC0)
        every = max(1, (9 * nks - 4) // max(1, len(fl)))
        cnt = 0
        for ks in range(nks):
            A('s_waitcnt lgkmcnt(%d)' % (nks - 1 if aa == 0 else nks - 1 - ks))
            for j in range(9):
                c = '0' if ks == 0 else v(ACC + 4 * j, 4)
                if j < 8:
                    mfma(A, v(ACC + 4 * j, 4), v(XF + 4 * ks, 4), rg(frag(ks, j), 4), c)
                else:
                    mfma(A, v(ACC + 4 * j, 4), rg(frag(ks, j), 4), v(XF + 4 * ks, 4), c)
                cnt += 1
                if fl and cnt >= 3 and cnt % every == 0:
                    fl.pop(0)()
            if aa == 0:
                rd(ks, 1)
        for f in fl:
            f()
    for f in epilogue(1, ACC1):
        f()


def xloop(A, vxa0, vxa1, XF, body, hook=None):
    def rd(ks):
        b = XF + 8 * (ks & 1)
        for aa in range(2):
            A('ds_read_b128 %s, v%d offset:%d' % (v(b + 4 * aa, 4), vxa1 if ks & 1 else vxa0, (ks >> 1) * 4096 + aa * 2048))
    rd(0)
    rd(1)
    for ks in range(18):
        A('s_waitcnt lgkmcnt(%d)' % (2 if ks < 17 else 0))
        b = XF + 8 * (ks & 1)
        body(ks, b, b + 4)
        if ks + 2 < 18:
            rd(ks + 2)
        if hook:
            hook(ks)


def gen_A1(A, opt):
    nt = ' nt' if opt.get('nt', True) else ''
    flags = opt.get('flags', True)
    A.label('A1_entry')
    vSrc, vXA0, vXA1, vQK = 2, 3, 4, 5
    lane_consts(A)
    stage_consts(A, vSrc, vXA0, vXA1)
    sH, sP = sFl2, sSrc2
    A('s_and_b32 %s, %s, 31' % (s(sH), s(sID)))
    A('s_lshr_b32 %s, %s, 5' % (s(sP), s(sID)))
    A('s_load_dwordx2 %s, s[0:1], %d' % (s(SRD_B, 2), K_WQ))
    A('s_load_dwordx2 %s, s[0:1], %d' % (s(sT2, 2), K_WK))
    A('s_mov_b32 %s, 0x%x' % (s(SRD_B + 2), 576 * 8192))
    A('s_mov_b32 %s, 0x20000' % s(SRD_B + 3))
    srd(A, SRD_C, K_WV, 576 * 8192)
    A('v_lshlrev_b32 v23, 16, v22')
    A('s_lshl_b32 %s, %s, 8' % (s(sT0), s(sH)))
    A('v_add_u32 v23, %s, v23' % s(sT0))
    A('s_and_b32 %s, s4, 1' % s(sT0))
    A('s_lshl_b32 %s, %s, 7' % (s(sT0), s(sT0)))
    A('v_lshl_add_u32 v24, v21, 3, v23')
    A('v_add_u32 v6, %s, v24' % s(sT0))
    A('s_lshl_b32 %s, s4, 6' % s(sT0))
    A('v_lshl_add_u32 v24, v21, 2, v23')
    A('v_add_u32 v7, %s, v24' % s(sT0))
    A('v_lshrrev_b32 v23, 1, v22')
    A('v_lshlrev_b32 v23, 11, v23')
    A('v_and_b32 v24, 1, v22')
    A('v_lshl_add_u32 v23, v24, 9, v23')
    A('v_lshl_add_u32 v23, v21, 4, v23')
    A('s_lshl_b32 %s, s4, 12' % s(sT0))
    A('v_add_u32 v%d, %s, v23' % (vQK, s(sT0)))
    A('s_waitcnt lgkmcnt(0)')
    A('s_cmp_lt_u32 s4, 2')
    A('s_cselect_b32 %s, %s, %s' % (s(SRD_B), s(SRD_B), s(sT2)))
    A('s_cselect_b32 %s, %s, %s' % (s(SRD_B + 1), s(SRD_B + 1), s(sT2 + 1)))
    fqk = lambda ks, t: wf4(4 * ks + t)
    fv = lambda ks, t: wf4(72 + 2 * ks + t)
    st = Stream(A, 60)
    load_cols4(A, st, SRD_B, 6, 8192, fqk, 18, lambda ks: 128 + 16 * (ks % 8), nt)
    load_cols2(A, st, SRD_C, 7, 8192, fv, 18, lambda ks: 32 + 8 * (ks % 6), nt)
    st.run()
    A('s_mov_b32 %s, 0' % s(sItem))
    A('s_mul_i32 %s, %s, %d' % (s(sSrc), s(sP), 32 * ROWB))
    A('s_add_u32 %s, %s, 0x%x' % (s(sSrc), s(sSrc), H1_OFF))
    A('s_lshl_b32 %s, %s, 5' % (s(sT0), s(sP)))
    A('s_add_u32 %s, %s, %s' % (s(sT0), s(sT0), s(sH)))
    A('s_mul_i32 %s, %s, %d' % (s(sDst), s(sT0), QKV_BLK))
    A('s_add_u32 %s, %s, 0x%x' % (s(sDst), s(sDst), QKV_OFF))
    A('s_lshl_b32 %s, %s, 3' % (s(sFlag), s(sH)))
    A('s_lshl_b32 %s, %s, 2' % (s(sT0), s(sP)))
    A('s_add_u32 %s, %s, %s' % (s(sFlag), s(sFlag), s(sT0)))
    A('s_add_u32 %s, %s, 0x%x' % (s(sFlag), s(sFlag), FLAG_OFF + F_A1))
    A('s_mov_b32 %s, 0' % s(sBuf))
    dbg_wait(A, D_RDY, NAUX, 8, sT0, sSpin)
    stage_issue(A, vSrc, sSrc, sBuf)
    A('s_waitcnt vmcnt(0)')
    A('s_barrier')
    XF, ACC = 8, 24
    mark(A, opt, 96)
    A.label('A1_loop')
    A('s_xor_b32 %s, %s, %d' % (s(sBuf), s(sBuf), XBUF))
    A('s_add_u32 %s, %s, %d' % (s(sSrc), s(sSrc), 64 * ROWB))
    A('s_cmp_lt_u32 %s, 31' % s(sItem))
    A('s_cselect_b32 %s, %s, 0x%x' % (s(sT1), s(sSrc), OOB))
    stage_issue(A, vSrc, sT1, sBuf)

    def body(ks, f0, f1):
        for aa, f in enumerate((f0, f1)):
            for t in range(4):
                d = v(ACC + 4 * (4 * aa + t), 4)
                mfma(A, d, rg(fqk(ks, t), 4), v(f, 4), '0' if ks == 0 else d)
            for t in range(2):
                d = v(ACC + 32 + 4 * (2 * t + aa), 4)
                mfma(A, d, v(f, 4), rg(fv(ks, t), 4), '0' if ks == 0 else d)
    xloop(A, vXA0, vXA1, XF, body)
    A('s_lshl_b32 %s, %s, 1' % (s(sT0), s(sBuf)))
    A('s_sub_u32 %s, %s, %d' % (s(sT0), s(sT0), XBUF))
    A('v_add_u32 v%d, %s, v%d' % (vXA0, s(sT0), vXA0))
    A('v_add_u32 v%d, %s, v%d' % (vXA1, s(sT0), vXA1))
    k = 0
    for aa in range(2):
        T = [ACC + 4 * (4 * aa + t) for t in range(4)]
        for c in range(2):
            o = 72 + 4 * (k & 1)
            k += 1
            for ii in range(2):
                i = 2 * c + ii
                A('v_cvt_pk_bf16_f32 v%d, v%d, v%d' % (o + 2 * ii, T[0] + i, T[1] + i))
                A('v_cvt_pk_bf16_f32 v%d, v%d, v%d' % (o + 2 * ii + 1, T[2] + i, T[3] + i))
            A('buffer_store_dwordx4 %s, v%d, %s, %s offen offset:%d sc1' % (v(o, 4), vQK, WS, s(sDst), aa * 1024 + c * 256))
    A('s_lshl_b32 %s, s4, 11' % s(sT0))
    A('s_add_u32 %s, %s, %s' % (s(sT0), s(sT0), s(sDst)))
    A('s_add_u32 %s, %s, 16384' % (s(sT0), s(sT0)))
    for t in range(2):
        o = 72 + 4 * (k & 1)
        k += 1
        b = ACC + 32 + 8 * t
        for q in range(4):
            A('v_cvt_pk_bf16_f32 v%d, v%d, v%d' % (o + q, b + 2 * q, b + 2 * q + 1))
        A('buffer_store_dwordx4 %s, v1, %s, %s offen offset:%d sc1' % (v(o, 4), WS, s(sT0), t * 1024))
    A('s_add_u32 %s, %s, 1' % (s(sItem), s(sItem)))
    A('s_add_u32 %s, %s, %d' % (s(sDst), s(sDst), 2 * NH * QKV_BLK))
    signal(A, sFlag, sItem, 8)
    A('s_cmp_lt_u32 %s, 32' % s(sItem))
    A('s_cbranch_scc1 A1_loop')
    role_end(A, opt)


def round_pair(A, x, y, t):
    A('v_cvt_pk_bf16_f32 v%d, v%d, v%d' % (t, x, y))
    A('v_lshlrev_b32 v%d, 16, v%d' % (x, t))
    A('v_and_b32 v%d, %s, v%d' % (y, s(sHI), t))


def gen_A2(A, opt):
    nt = ' nt' if opt.get('nt', True) else ''
    flags = opt.get('flags', True)
    NS = opt.get('a2sets', 3)
    A.label('A2_entry')
    vP, vP8, vKM, vVM, vMask = 2, 3, 4, 5, 6
    TOK = 16 * ROWB
    lane_consts(A)
    sHP, sP = 48, 49
    A('s_and_b32 %s, %s, 15' % (s(sHP), s(sID)))
    A('s_lshr_b32 %s, %s, 4' % (s(sP), s(sID)))
    srd(A, SRD_A, K_WO, 4096 * ROWB)
    A('s_lshl_b32 %s, %s, 8' % (s(sT2), s(sHP)))
    out_consts(A, sT2, 8, 9)
    pstore_consts(A, TOK, vP, vP8)
    A('v_lshrrev_b32 v23, 2, v21')
    A('v_lshlrev_b32 v23, 8, v23')
    A('v_lshl_add_u32 v23, v22, 5, v23')
    A('v_and_b32 v24, 1, v21')
    A('v_lshl_add_u32 v%d, v24, 3, v23' % vKM)
    A('s_and_b32 %s, s4, 1' % s(sT0))
    A('s_lshl_b32 %s, %s, 4' % (s(sT0), s(sT0)))
    A('v_lshlrev_b32 v23, 2, v22')
    A('v_sub_u32 v23, v21, v23')
    A('v_add_u32 v%d, %s, v23' % (vMask, s(sT0)))
    A('s_waitcnt lgkmcnt(0)')
    fo = lambda ks, j: wf4(9 * ks + j)
    st = Stream(A, 60)
    load_out(A, st, SRD_A, 8, 9, fo, 8, lambda ks: 112 + 40 * (ks % 3), nt)
    st.run()
    CM = 112
    A('v_mov_b32 v23, 0xff800000')
    for ap in range(2):
        for i in range(4):
            A('v_cmp_gt_i32 vcc, %d, v%d' % (16 * ap + i, vMask))
            A('v_cndmask_b32 v%d, 0, v23, vcc' % (CM + 4 * ap + i))
    A('s_mov_b32 %s, 0x%x' % (s(sC), f2u(math.log2(math.e))))
    sScale = 50
    A('s_mov_b32 %s, 0x%x' % (s(sScale), f2u(128 ** -0.5)))
    A('s_mov_b32 %s, %s' % (s(sItem), s(sP)))
    A('s_lshr_b32 %s, s4, 1' % s(sT0))
    A('s_lshl_b32 %s, %s, 1' % (s(sT1), s(sHP)))
    A('s_add_u32 %s, %s, %s' % (s(sT1), s(sT1), s(sT0)))
    A('s_lshl_b32 %s, %s, 5' % (s(sT0), s(sP)))
    A('s_add_u32 %s, %s, %s' % (s(sT0), s(sT0), s(sT1)))
    A('s_mul_i32 %s, %s, %d' % (s(sSrc), s(sT0), QKV_BLK))
    A('s_add_u32 %s, %s, 0x%x' % (s(sSrc), s(sSrc), QKV_OFF))
    A('s_lshl_b32 %s, %s, 13' % (s(sSrc2), s(sT0)))
    A('s_add_u32 %s, %s, 0x%x' % (s(sSrc2), s(sSrc2), KVM_OFF))
    sFA1, sFR = 51, 52
    A('s_lshl_b32 %s, %s, 3' % (s(sFA1), s(sT1)))
    A('s_add_u32 %s, %s, 0x%x' % (s(sFA1), s(sFA1), FLAG_OFF + F_A1))
    A('s_lshl_b32 %s, %s, 7' % (s(sFR), s(sT1)))
    A('s_add_u32 %s, %s, 0x%x' % (s(sFR), s(sFR), FLAG_OFF + F_R))
    A('s_mul_i32 %s, %s, %d' % (s(sDst), s(sP), 32 * TOK))
    A('s_mul_i32 %s, %s, %d' % (s(sT0), s(sHP), ROWB))
    A('s_add_u32 %s, %s, %s' % (s(sDst), s(sDst), s(sT0)))
    A('s_add_u32 %s, %s, 0x%x' % (s(sDst), s(sDst), P2_OFF))
    sFlStep, sOne = 57, 58
    A('s_lshl_b32 %s, %s, 11' % (s(sFlag), s(sP)))
    A('s_lshl_b32 %s, %s, 7' % (s(sT0), s(sHP)))
    A('s_add_u32 %s, %s, %s' % (s(sFlag), s(sFlag), s(sT0)))
    A('s_add_u32 %s, %s, 0x%x' % (s(sFlag), s(sFlag), FLAG_OFF + F_A2 + OOB))
    A('s_mov_b32 %s, 0x%x' % (s(sFlStep), (-OOB) & 0xffffffff))
    A('s_mov_b32 %s, 1' % s(sOne))
    Q, K, V, KM, VM = 120, 136, 168, 200, 216
    S, P, O = 224, 236, 8
    XF = 200
    sA1seen, sQ0, sQ1, sK0 = 53, 54, 55, 56

    def pf_check():
        l0, l = A.newlabel('A2_a1'), A.newlabel('A2_have')
        if flags:
            A.label(l0)
            A('s_cmp_gt_u32 %s, %s' % (s(sA1seen), s(sNeed)))
            A('s_cbranch_scc1 %s' % l)
            A('buffer_load_dwordx2 v[244:245], off, %s, %s sc1' % (WS, s(sFA1)))
            A('s_waitcnt vmcnt(0)')
            A('v_readfirstlane_b32 %s, v244' % s(sA1seen))
            A('v_readfirstlane_b32 %s, v245' % s(sT0))
            A('s_lshl_b32 %s, %s, 1' % (s(sA1seen), s(sA1seen)))
            A('s_lshl_b32 %s, %s, 1' % (s(sT0), s(sT0)))
            A('s_add_u32 %s, %s, 1' % (s(sT0), s(sT0)))
            A('s_min_u32 %s, %s, %s' % (s(sA1seen), s(sA1seen), s(sT0)))
            A('s_sub_u32 %s, %s, 1' % (s(sSpin), s(sSpin)))
            A('s_cmp_gt_i32 %s, 0' % s(sSpin))
            A('s_cbranch_scc1 %s' % l0)
            A.label(l)
        A('s_and_b32 %s, s4, 1' % s(sQ0))
        A('s_lshl_b32 %s, %s, 10' % (s(sQ0), s(sQ0)))
        A('s_add_u32 %s, %s, %s' % (s(sQ0), s(sQ0), s(sSrc)))
        A('s_add_u32 %s, %s, 4096' % (s(sQ1), s(sQ0)))

    def pf_loads():
        out = []
        for m in range(4):
            out.append(lambda m=m: A('buffer_load_dwordx4 %s, v1, %s, %s offen offset:%d sc1' % (
                v(Q + 4 * m, 4), WS, s(sQ1 if m >= 2 else sQ0), 2048 * (m & 1))))
        for blk in range(4):
            for i in range(4):
                out.append(lambda blk=blk, i=i: (
                    A('s_add_u32 %s, %s, %d' % (s(sK0), s(sSrc), 8192 + 4096 * blk)) if i == 0 else None,
                    A('buffer_load_dwordx4 %s, v1, %s, %s offen offset:%d sc1' % (v(K + 16 * blk + 4 * i, 4), WS, s(sK0), 1024 * i))))
        return out

    def prefetch():
        pf_check()
        for f in pf_loads():
            f()
    A('s_mov_b32 %s, 0' % s(sA1seen))
    dbg_wait(A, D_RDY, NAUX, 244, sT0, sSpin)
    A('s_mov_b32 %s, %s' % (s(sNeed), s(sItem)))
    prefetch()
    A('s_waitcnt vmcnt(0)')
    mark(A, opt, 96)
    A.label('A2_loop')
    A('s_waitcnt vmcnt(10)')
    for m in range(4):
        for ap in range(2):
            d = v(S + 4 * ap, 4)
            mfma(A, d, v(K + 8 * m + 4 * ap, 4), v(Q + 4 * m, 4), v(CM + 4 * ap, 4) if m == 0 else d)
    A('s_add_u32 %s, %s, 1' % (s(sNeed), s(sItem)))
    lap(A, opt, 0)
    poll(A, sFR, 1, sNeed, 40, flags, first=lambda: (lap(A, opt, 1), signal(A, sFlag, sOne, 42)), sleep=1)
    lap(A, opt, 2)
    A('s_add_u32 %s, %s, 4096' % (s(sT0), s(sSrc2)))
    for m in range(4):
        for c in range(2):
            A('buffer_load_dwordx2 %s, v%d, %s, %s offen offset:%d sc1' % (
                v(KM + 4 * m + 2 * c, 2), vKM, WS, s(sT0), (m >> 1) * 2048 + (8 * (m & 1) + c) * 16))
    for w in range(4):
        A('buffer_load_dwordx2 %s, v1, %s, %s offen offset:%d sc1' % (
            v(VM + 2 * w, 2), WS, s(sT0 if w >= 2 else sSrc2), (w & 1) * 2048 + 1024))
    A('s_waitcnt vmcnt(4)')
    for m in range(4):
        d = v(S + 8, 4)
        mfma(A, d, v(KM + 4 * m, 4), v(Q + 4 * m, 4), '0' if m == 0 else d)
    lap(A, opt, 3)
    sv = [S + i for i in range(10)]
    for i in range(0, 10, 2):
        round_pair(A, sv[i], sv[i + 1], 40 + i // 2)
    for x in sv:
        A('v_mul_f32 v%d, %s, v%d' % (x, s(sScale), x))
    for i in range(0, 10, 2):
        round_pair(A, sv[i], sv[i + 1], 40 + i // 2)
    A('v_max3_f32 v40, v%d, v%d, v%d' % tuple(sv[0:3]))
    A('v_max3_f32 v41, v%d, v%d, v%d' % tuple(sv[3:6]))
    A('v_max3_f32 v40, v40, v%d, v%d' % tuple(sv[6:8]))
    A('v_max3_f32 v41, v41, v%d, v%d' % tuple(sv[8:10]))
    A('v_max_f32 v42, v40, v41')
    A('v_max_f32 v43, v40, v41')
    A('v_permlane16_swap_b32 v42, v43')
    A('v_max_f32 v40, v42, v43')
    A('v_max_f32 v41, v42, v43')
    A('v_permlane32_swap_b32 v40, v41')
    A('v_max_f32 v42, v40, v41')
    for x in sv:
        A('v_sub_f32 v%d, v%d, v42' % (x, x))
    for x in sv:
        A('v_mul_f32 v%d, %s, v%d' % (x, s(sC), x))
    for x in sv:
        A('v_exp_f32 v%d, v%d' % (x, x))
    A('v_add_f32 v40, v%d, v%d' % (sv[0], sv[1]))
    A('v_add_f32 v41, v%d, v%d' % (sv[2], sv[3]))
    for i in range(4, 10, 2):
        A('v_add_f32 v40, v40, v%d' % sv[i])
        A('v_add_f32 v41, v41, v%d' % sv[i + 1])
    A('v_add_f32 v42, v40, v41')
    A('v_add_f32 v43, v40, v41')
    A('v_permlane16_swap_b32 v42, v43')
    A('v_add_f32 v40, v42, v43')
    A('v_add_f32 v41, v42, v43')
    A('v_permlane32_swap_b32 v40, v41')
    A('v_add_f32 v42, v40, v41')
    A('v_rcp_f32 v42, v42')
    for x in sv:
        A('v_mul_f32 v%d, v%d, v42' % (x, x))
    for i in range(4):
        A('v_cvt_pk_bf16_f32 v%d, v%d, v%d' % (P + i, sv[2 * i], sv[2 * i + 1]))
    A('v_cvt_pk_bf16_f32 v%d, v%d, v%d' % (P + 4, sv[8], sv[9]))
    A('v_mov_b32 v%d, 0' % (P + 5))
    A('v_mov_b32 v%d, 0' % (P + 6))
    A('v_mov_b32 v%d, v%d' % (P + 7, P + 4))
    A('s_waitcnt vmcnt(0)')
    for tl in range(8):
        mfma(A, v(O + 4 * tl, 4), v(V + 4 * tl, 4), v(P, 4), '0')
    for tl in range(8):
        A('v_mfma_f32_16x16x16_bf16 %s, %s, %s, %s' % (v(O + 4 * tl, 4), v(VM + 2 * (tl >> 1), 2), v(P + 4 + 2 * (tl & 1), 2), v(O + 4 * tl, 4)))
    A('s_lshr_b32 %s, s4, 1' % s(sT0))
    A('s_lshl_b32 %s, %s, 13' % (s(sT0), s(sT0)))
    A('s_and_b32 %s, s4, 1' % s(sT1))
    A('s_lshl_b32 %s, %s, 10' % (s(sT1), s(sT1)))
    A('s_add_u32 %s, %s, %s' % (s(sT0), s(sT0), s(sT1)))
    A('v_add_u32 v40, %s, v1' % s(sT0))
    for w in range(4):
        o = 44 + 4 * w
        for i in range(4):
            A('v_cvt_pk_bf16_f32 v%d, v%d, v%d' % (o + i, O + 8 * w + i, O + 8 * w + 4 + i))
        A('ds_write_b128 v40, %s offset:%d' % (v(o, 4), 2048 * w))
    A('s_add_u32 %s, %s, %d' % (s(sItem), s(sItem), NS))
    A('s_add_u32 %s, %s, %d' % (s(sSrc), s(sSrc), NS * NH * QKV_BLK))
    A('s_add_u32 %s, %s, %d' % (s(sSrc2), s(sSrc2), NS * NH * KVM_BLK))
    A('s_min_u32 %s, %s, 63' % (s(sNeed), s(sItem)))
    A('s_cmp_lt_u32 %s, 64' % s(sItem))
    A('s_cselect_b32 %s, %s, 0x%x' % (s(sSrc), s(sSrc), OOB))
    pf_check()
    A('s_waitcnt lgkmcnt(0)')
    A('s_barrier')
    lap(A, opt, 4)
    out_gemm2(A, 8, fo, 1, 0, XF, 8, 44, 248, vP, vP8, sDst, TOK, pf_loads())
    lap(A, opt, 5)
    A('s_add_u32 %s, %s, %d' % (s(sDst), s(sDst), NS * 32 * TOK))
    A('s_add_u32 %s, %s, %s' % (s(sFlag), s(sFlag), s(sFlStep)))
    A('s_mov_b32 %s, %d' % (s(sFlStep), 2048 * NS))
    A('s_cmp_lt_u32 %s, 64' % s(sItem))
    A('s_cbranch_scc1 A2_loop')
    signal(A, sFlag, sOne, 42)
    role_end(A, opt)


def gen_DE(A, opt):
    nt = ' nt' if opt.get('nt', True) else ''
    flags = opt.get('flags', True)
    A.label('DE_entry')
    vSrc, vXA0, vXA1, vP, vP8, vHW = 2, 3, 4, 5, 6, 7
    TOK = 36 * ROWB
    L_H = 0
    L_XB = 8192
    lane_consts(A)
    stage_consts(A, vSrc, vXA0, vXA1)
    sF, sP = 48, 49
    A('s_cmp_ge_u32 %s, 36' % s(sID))
    A('s_cselect_b32 %s, 1, 0' % s(sP))
    A('s_mul_i32 %s, %s, 36' % (s(sT0), s(sP)))
    A('s_sub_u32 %s, %s, %s' % (s(sF), s(sID), s(sT0)))
    srd(A, SRD_A, K_WD, 4608 * ROWB)
    srd(A, SRD_B, K_WG, 576 * 9216)
    srd(A, SRD_C, K_WU, 576 * 9216)
    A('s_lshl_b32 %s, %s, 7' % (s(sT2), s(sF)))
    out_consts(A, sT2, 8, 9)
    pstore_consts(A, TOK, vP, vP8)
    A('s_mov_b32 %s, %d' % (s(sT1), 8 * 9216))
    A('v_mul_lo_u32 v23, v22, %s' % s(sT1))
    A('v_lshl_add_u32 v23, v21, 2, v23')
    A('s_lshl_b32 %s, %s, 8' % (s(sT0), s(sF)))
    A('s_lshl_b32 %s, s4, 6' % s(sT1))
    A('s_add_u32 %s, %s, %s' % (s(sT0), s(sT0), s(sT1)))
    A('v_add_u32 v10, %s, v23' % s(sT0))
    A('s_lshl_b32 %s, s4, 11' % s(sT0))
    A('s_add_u32 %s, %s, %d' % (s(sT0), s(sT0), L_H))
    A('v_add_u32 v%d, %s, v1' % (vHW, s(sT0)))
    A('s_waitcnt lgkmcnt(0)')
    fd = lambda ks, j: wf4(9 * ks + j)
    fg = lambda ks, t: wf4(36 + 2 * ks + t)
    fu = lambda ks, t: wf4(72 + 2 * ks + t)
    st = Stream(A, 60)
    load_out(A, st, SRD_A, 8, 9, fd, 4, lambda ks: 112 + 40 * (ks % 3), nt)
    load_cols2(A, st, SRD_B, 10, 9216, fg, 18, lambda ks: 32 + 8 * (ks % 6), nt)
    load_cols2(A, st, SRD_C, 10, 9216, fu, 18, lambda ks: 32 + 8 * (ks % 6), nt)
    st.run()
    A('s_mov_b32 %s, 0' % s(sItem))
    A('s_mul_i32 %s, %s, %d' % (s(sSrc), s(sP), 32 * ROWB))
    A('s_add_u32 %s, %s, 0x%x' % (s(sSrc), s(sSrc), H2_OFF))
    A('s_mul_i32 %s, %s, %d' % (s(sDst), s(sP), 32 * TOK))
    A('s_mul_i32 %s, %s, %d' % (s(sT0), s(sF), ROWB))
    A('s_add_u32 %s, %s, %s' % (s(sDst), s(sDst), s(sT0)))
    A('s_add_u32 %s, %s, 0x%x' % (s(sDst), s(sDst), P3_OFF))
    A('s_mul_i32 %s, %s, 4608' % (s(sFlag), s(sP)))
    A('s_lshl_b32 %s, %s, 7' % (s(sT0), s(sF)))
    A('s_add_u32 %s, %s, %s' % (s(sFlag), s(sFlag), s(sT0)))
    A('s_lshl_b32 %s, s4, 2' % s(sT0))
    A('s_add_u32 %s, %s, %s' % (s(sFlag), s(sFlag), s(sT0)))
    sFlStep = 57
    A('s_add_u32 %s, %s, 0x%x' % (s(sFlag), s(sFlag), FLAG_OFF + F_DE + OOB))
    A('s_mov_b32 %s, 0x%x' % (s(sFlStep), (-OOB) & 0xffffffff))
    A('s_lshl_b32 %s, %s, 12' % (s(sFl2), s(sP)))
    A('s_lshl_b32 %s, s4, 10' % s(sT0))
    A('s_add_u32 %s, %s, %s' % (s(sFl2), s(sFl2), s(sT0)))
    A('s_add_u32 %s, %s, 0x%x' % (s(sFl2), s(sFl2), FLAG_OFF + F_C))
    A('s_mov_b32 %s, %d' % (s(sBuf), L_XB))
    A('v_add_u32 v%d, %d, v%d' % (vXA0, L_XB, vXA0))
    A('v_add_u32 v%d, %d, v%d' % (vXA1, L_XB, vXA1))
    A('s_mov_b32 %s, 1' % s(sNeed))
    sHave = 50
    A('s_mov_b32 %s, 0' % s(sHave))
    XF, ACC = 8, 24
    dbg_wait(A, D_RDY, NAUX, 8, sT0, sSpin)
    mark(A, opt, 96)
    A.label('DE_loop')
    A('s_cmp_lg_u32 %s, 0' % s(sHave))
    A('s_cbranch_scc1 DE_have')
    poll(A, sFl2, 8, sNeed, 8, flags, first=lambda: wave_signal(A, sFlag, sNeed, 10), sleep=1)
    lap(A, opt, 0)
    stage_issue(A, vSrc, sSrc, sBuf)
    A('s_waitcnt vmcnt(0)')
    A.label('DE_have')
    A('s_waitcnt vmcnt(10)')
    lap(A, opt, 1)
    A('s_barrier')
    lap(A, opt, 2)
    A('s_add_u32 %s, %s, 8192' % (s(sFl2), s(sFl2)))
    A('s_add_u32 %s, %s, %d' % (s(sSrc), s(sSrc), 64 * ROWB))
    A('s_cmp_lt_u32 %s, 31' % s(sItem))
    A('s_cselect_b32 %s, %s, 0x%x' % (s(sT1), s(sFl2), OOB))
    A('v_lshlrev_b32 v73, 3, v1')
    A('v_and_b32 v73, 0x380, v73')
    A('buffer_load_dword v72, v73, %s, %s offen sc1' % (WS, s(sT1)))

    def hook(ks):
        if ks != opt.get('de_hook', 7):
            return
        lap(A, opt, 3)
        A('s_waitcnt vmcnt(0)')
        lap(A, opt, 4)
        A('s_cmp_lg_u32 %s, 0' % s(sHave))
        A('s_cselect_b32 %s, %s, 0x%x' % (s(sT1), s(sFlag), OOB))
        wave_signal(A, sT1, sNeed, 73)
        A('s_xor_b32 %s, %s, %d' % (s(sBuf), s(sBuf), L_XB ^ (L_XB + XBUF)))
        A('s_mov_b32 %s, 0' % s(sHave))
        if flags:
            A('v_cmp_gt_u32 vcc, %s, v72' % s(sNeed))
            A('s_cbranch_vccnz DE_nopf')
            A('s_mov_b32 %s, 1' % s(sHave))
            stage_issue(A, vSrc, sSrc, sBuf)
            A.label('DE_nopf')

    def body(ks, f0, f1):
        for aa, f in enumerate((f0, f1)):
            for mt, fr in enumerate((fg, fu)):
                for t in range(2):
                    d = v(ACC + 4 * (4 * aa + 2 * mt + t), 4)
                    mfma(A, d, rg(fr(ks, t), 4), v(f, 4), '0' if ks == 0 else d)
    xloop(A, vXA0, vXA1, XF, body, hook)
    A('s_lshl_b32 %s, %s, 1' % (s(sT0), s(sBuf)))
    A('s_sub_u32 %s, %s, %d' % (s(sT0), s(sT0), 2 * L_XB + XBUF))
    A('v_add_u32 v%d, %s, v%d' % (vXA0, s(sT0), vXA0))
    A('v_add_u32 v%d, %s, v%d' % (vXA1, s(sT0), vXA1))
    for aa in range(2):
        G0, G1, U0, U1 = [ACC + 16 * aa + 4 * q for q in range(4)]
        for i in range(4):
            round_pair(A, G0 + i, G1 + i, 56 + i)
            round_pair(A, U0 + i, U1 + i, 60 + i)
        for i in range(4):
            A('v_mul_f32 v%d, v%d, v%d' % (G0 + i, G0 + i, U0 + i))
            A('v_mul_f32 v%d, v%d, v%d' % (G1 + i, G1 + i, U1 + i))
        for i in range(4):
            A('v_cvt_pk_bf16_f32 v%d, v%d, v%d' % (64 + 4 * aa + i, G0 + i, G1 + i))
        A('ds_write_b128 v%d, %s offset:%d' % (vHW, v(64 + 4 * aa, 4), 1024 * aa))
    A('s_waitcnt lgkmcnt(0)')
    A('s_barrier')
    lap(A, opt, 5)
    out_gemm(A, 4, fd, 1, L_H, XF, ACC, 60, vP, vP8, sDst, TOK)
    lap(A, opt, 6)
    A('s_add_u32 %s, %s, 1' % (s(sItem), s(sItem)))
    A('s_add_u32 %s, %s, %d' % (s(sDst), s(sDst), 64 * TOK))
    A('s_add_u32 %s, %s, %s' % (s(sFlag), s(sFlag), s(sFlStep)))
    A('s_mov_b32 %s, 9216' % s(sFlStep))
    A('s_cmp_lt_u32 %s, 32' % s(sItem))
    A('s_cbranch_scc1 DE_loop')
    A('s_waitcnt vmcnt(0)')
    wave_signal(A, sFlag, sNeed, 10)
    role_end(A, opt)


def wave_sum(A, x, t):
    for r in (8, 4, 2, 1):
        A('v_add_f32_dpp v%d, v%d, v%d row_ror:%d row_mask:0xf bank_mask:0xf' % (x, x, x, r))
    A('v_mov_b32 v%d, v%d' % (t, x))
    A('v_permlane16_swap_b32 v%d, v%d' % (x, t))
    A('v_add_f32 v%d, v%d, v%d' % (x, x, t))
    A('v_mov_b32 v%d, v%d' % (t, x))
    A('v_permlane32_swap_b32 v%d, v%d' % (x, t))
    A('v_add_f32 v%d, v%d, v%d' % (x, x, t))


def round1(A, x):
    A('v_cvt_pk_bf16_f32 v%d, v%d, v%d' % (x, x, x))
    A('v_lshlrev_b32 v%d, 16, v%d' % (x, x))


def ln_mod(A, X, n, SC, SH, OUTP, T, total, tailmask=None):
    acc, mean, tmp, pk, Dv = T, T + 1, T + 2, T + 3, T + 4
    A('v_add_f32 v%d, v%d, v%d' % (acc, X, X + 1))
    for i in range(2, n):
        A('v_add_f32 v%d, v%d, v%d' % (acc, acc, X + i))
    total(acc, 0)
    A('v_mul_f32 v%d, 0x%x, v%d' % (mean, f2u(1.0 / 576), acc))
    for i in range(n):
        A('v_sub_f32 v%d, v%d, v%d' % (Dv + i, X + i, mean))
    order = list(range(n - 4, n)) + list(range(n - 4))
    A('v_mul_f32 v%d, v%d, v%d' % (acc, Dv + order[0], Dv + order[0]))
    for k, i in enumerate(order[1:]):
        if k == 3 and tailmask is not None:
            A('v_cndmask_b32 v%d, 0, v%d, %s' % (acc, acc, s(tailmask, 2)))
        A('v_fmac_f32 v%d, v%d, v%d' % (acc, Dv + i, Dv + i))
    total(acc, 1)
    round1(A, mean)
    for i in range(n):
        A('v_sub_f32 v%d, v%d, v%d' % (Dv + i, X + i, mean))
    A('v_mul_f32 v%d, 0x%x, v%d' % (acc, f2u(1.0 / 576), acc))
    round1(A, acc)
    A('v_add_f32 v%d, 0x%x, v%d' % (acc, f2u(1e-5), acc))
    round1(A, acc)
    A('v_sqrt_f32 v%d, v%d' % (acc, acc))
    round1(A, acc)
    A('v_rcp_f32 v%d, v%d' % (acc, acc))
    for i in range(0, n, 2):
        round_pair(A, Dv + i, Dv + i + 1, pk)
    for i in range(n):
        A('v_mul_f32 v%d, v%d, v%d' % (Dv + i, Dv + i, acc))
    for i in range(0, n, 2):
        round_pair(A, Dv + i, Dv + i + 1, pk)
    for i in range(n):
        A('v_mul_f32 v%d, v%d, v%d' % (Dv + i, Dv + i, SC + i))
    for i in range(0, n, 2):
        round_pair(A, Dv + i, Dv + i + 1, pk)
    for i in range(n):
        A('v_add_f32 v%d, v%d, v%d' % (Dv + i, Dv + i, SH + i))
    for i in range(0, n, 2):
        A('v_cvt_pk_bf16_f32 v%d, v%d, v%d' % (OUTP + i // 2, Dv + i, Dv + i + 1))


NCF = 40


def gen_CF(A, opt):
    flags = opt.get('flags', True)
    ncf = opt.get('ncf', NCF)
    A.label('CF_entry')
    vA, vB, vC, vC2 = 2, 3, 4, 5
    SEL, GA, CB, SB, GB, X, XR, D, T, LD = 12, 28, 40, 52, 64, 76, 88, 96, 108, 128
    TOK2, TOK3 = 16 * ROWB, 36 * ROWB
    lane_consts(A)
    srd(A, SRD_A, K_X, 2048 * ROWB)
    srd(A, SRD_B, K_OUT, 2048 * ROWB)
    A('v_and_b32 v23, 1, v22')
    A('v_mul_u32_u24 v24, 1152, v23')
    A('v_lshrrev_b32 v25, 1, v22')
    A('v_lshl_add_u32 v25, v25, 4, v21')
    A('v_lshl_add_u32 v%d, v25, 4, v24' % vA)
    A('v_mov_b32 v24, 0x%x' % OOB)
    A('v_cmp_gt_u32 %s, 8, v25' % s(sMASK, 2))
    A('v_cndmask_b32 v%d, v24, v%d, %s' % (vB, vA, s(sMASK, 2)))
    A('v_lshlrev_b32 v25, 4, v25')
    A('v_lshl_add_u32 v%d, v23, 3, v25' % vC)
    A('v_cndmask_b32 v%d, v24, v%d, %s' % (vC2, vC, s(sMASK, 2)))
    A('v_and_b32 v23, 16, v1')
    A('v_mov_b32 v24, 0x3f80')
    A('v_lshlrev_b32 v23, v23, v24')
    A('v_lshrrev_b32 v24, 1, v21')
    A('v_lshrrev_b32 v25, 1, v22')
    A('v_lshlrev_b32 v25, 2, v25')
    A('v_xor_b32 v24, v24, v25')
    for q in range(4):
        A('v_cmp_eq_u32 vcc, %d, v24' % q)
        A('v_cndmask_b32 v%d, 0, v23, vcc' % (SEL + q))
    dbg_wait(A, D_RDY, NAUX, 23, sT0, sSpin)
    A('v_lshlrev_b32 v23, 1, v%d' % vC)
    A('v_lshlrev_b32 v24, 1, v%d' % vC2)
    for reg, idx in ((GA, 2), (SB, 3), (CB, 4), (GB, 5)):
        A('s_mov_b32 %s, 0x%x' % (s(sT0), MOD_OFF + idx * 2304))
        for c in range(3):
            A('buffer_load_dwordx4 %s, v%d, %s, %s offen offset:%d sc1' % (v(reg + 4 * c, 4), 24 if c == 2 else 23, WS, s(sT0), 1024 * c))
    A('s_waitcnt vmcnt(0) lgkmcnt(0)')
    for i in range(12):
        A('v_add_f32 v%d, 1.0, v%d' % (CB + i, CB + i))
    for i in range(0, 12, 2):
        round_pair(A, CB + i, CB + i + 1, 23)
    sRow, sSeg = 48, 49
    A('s_mul_i32 %s, s4, %d' % (s(sItem), ncf))
    A('s_add_u32 %s, %s, %s' % (s(sItem), s(sItem), s(sID)))
    sPrev, XO = 50, 16
    A('s_mov_b32 %s, -1' % s(sPrev))

    def reduce(np_, tok, off, sit):
        A('s_mul_i32 %s, %s, %d' % (s(sSrc), s(sit), tok))
        A('s_add_u32 %s, %s, 0x%x' % (s(sSrc), s(sSrc), off))
        n = 3 * np_ // 2
        regs = 30
        issued = 0

        def issue(k):
            L, c = divmod(k, 3)
            if c == 0 and L:
                A('s_add_u32 %s, %s, %d' % (s(sSrc), s(sSrc), 2 * ROWB))
            A('buffer_load_dwordx4 %s, v%d, %s, %s offen offset:%d sc1' % (
                v(LD + 4 * (k % regs), 4), vB if c == 2 else vA, WS, s(sSrc), 512 * c))
        while issued < min(n, regs):
            issue(issued)
            issued += 1
        for k in range(n):
            A('s_waitcnt vmcnt(%d)' % (issued - 1 - k))
            d = v(D + 4 * (k % 3), 4)
            mfma(A, d, v(SEL, 4), v(LD + 4 * (k % regs), 4), '0' if k < 3 else d)
            if issued < n:
                issue(issued)
                issued += 1
        for i in range(0, 12, 2):
            round_pair(A, D + i, D + i + 1, T)

    def gate_add(G, XR):
        for i in range(12):
            A('v_mul_f32 v%d, v%d, v%d' % (D + i, D + i, G + i))
        for i in range(0, 12, 2):
            round_pair(A, D + i, D + i + 1, T)
        for i in range(12):
            A('v_add_f32 v%d, v%d, v%d' % (X + i, X + i, D + i))
        for i in range(0, 12, 2):
            round_pair(A, X + i, X + i + 1, XR + i // 2)

    def total(reg, which):
        wave_sum(A, reg, 10)

    def unpack(src):
        for i in range(6):
            A('v_lshlrev_b32 v%d, 16, v%d' % (X + 2 * i, src + i))
            A('v_and_b32 v%d, %s, v%d' % (X + 2 * i + 1, s(sHI), src + i))

    def need_flag(sit, shift, base):
        A('s_lshr_b32 %s, %s, 5' % (s(sSeg), s(sit)))
        A('s_mul_i32 %s, %s, %d' % (s(sFl2), s(sSeg), shift))
        A('s_add_u32 %s, %s, 0x%x' % (s(sFl2), s(sFl2), FLAG_OFF + base))

    A('s_mov_b32 %s, 1' % s(sNeed))
    mark(A, opt, 96)
    A.label('CF_loop')
    A('s_cmp_ge_u32 %s, 2048' % s(sItem))
    A('s_cbranch_scc1 CF_skipC')
    A('s_mul_i32 %s, %s, %d' % (s(sRow), s(sItem), ROWB))
    for c in range(3):
        A('buffer_load_dwordx2 %s, v%d, %s, %s offen offset:%d' % (v(XR + 2 * c, 2), vC2 if c == 2 else vC, s(SRD_A, 4), s(sRow), 512 * c))
    need_flag(sItem, 2048, F_A2)
    A('s_waitcnt vmcnt(0)')
    unpack(XR)
    poll(A, sFl2, 16, sNeed, 10, flags, sleep=opt.get('cf_sleep', 4))
    lap(A, opt, 0)
    reduce(16, TOK2, P2_OFF, sItem)
    lap(A, opt, 1)
    gate_add(GA, XR)
    ln_mod(A, X, 12, CB, SB, D, T, total, tailmask=sMASK)
    A('s_add_u32 %s, %s, 0x%x' % (s(sT0), s(sRow), H2_OFF))
    for c in range(3):
        A('buffer_store_dwordx2 %s, v%d, %s, %s offen offset:%d sc1' % (v(D + 2 * c, 2), vC2 if c == 2 else vC, WS, s(sT0), 512 * c))
    A('s_lshl_b32 %s, %s, 7' % (s(sFlag), s(sItem)))
    A('s_add_u32 %s, %s, 0x%x' % (s(sFlag), s(sFlag), FLAG_OFF + F_C))
    A('v_mov_b32 v10, 1')
    lap(A, opt, 2)
    A('s_waitcnt vmcnt(0)')
    lap(A, opt, 3)
    A('s_mov_b64 exec, 1')
    A('buffer_store_dword v10, off, %s, %s sc1' % (WS, s(sFlag)))
    A('s_mov_b64 exec, -1')
    A.label('CF_skipC')
    A('s_cmp_ge_u32 %s, 2048' % s(sPrev))
    A('s_cbranch_scc1 CF_skipF')
    need_flag(sPrev, 4608, F_DE)
    unpack(XO)
    poll(A, sFl2, 36, sNeed, 6, flags, sleep=opt.get('cf_sleep', 4), wide=True)
    lap(A, opt, 4)
    reduce(36, TOK3, P3_OFF, sPrev)
    lap(A, opt, 5)
    gate_add(GB, XO)
    A('s_mul_i32 %s, %s, %d' % (s(sRow), s(sPrev), ROWB))
    for c in range(3):
        A('buffer_store_dwordx2 %s, v%d, %s, %s offen offset:%d' % (v(XO + 2 * c, 2), vC2 if c == 2 else vC, s(SRD_B, 4), s(sRow), 512 * c))
    lap(A, opt, 6)
    A.label('CF_skipF')
    for i in range(0, 6, 2):
        A('v_mov_b64 %s, %s' % (v(XO + i, 2), v(XR + i, 2)))
    A('s_mov_b32 %s, %s' % (s(sPrev), s(sItem)))
    A('s_add_u32 %s, %s, %d' % (s(sItem), s(sItem), 4 * ncf))
    A('s_cmp_lt_u32 %s, 2048' % s(sPrev))
    A('s_cbranch_scc1 CF_loop')
    role_end(A, opt)


NAUX = 160
D_MOD, D_RDY = 16, 20


def dbg_arrive(A, off, vt):
    A('s_waitcnt vmcnt(0)')
    A('s_barrier')
    l = A.newlabel('noarr')
    A('s_cmp_lg_u32 s4, 0')
    A('s_cbranch_scc1 %s' % l)
    A('v_mov_b32 v%d, 1' % vt)
    A('s_mov_b64 exec, 1')
    A('buffer_atomic_add v%d, off, %s, 0 offset:%d' % (vt, s(SRD_DBG, 4), off))
    A('s_mov_b64 exec, -1')
    A.label(l)


def dbg_wait(A, off, n, vt, st, sspin, sleep=4):
    l0, l1 = A.newlabel('dw'), A.newlabel('dwok')
    A('s_cmp_lg_u32 s4, 0')
    A('s_cbranch_scc1 %s' % l1)
    A.label(l0)
    A('buffer_load_dword v%d, off, %s, 0 offset:%d sc1' % (vt, s(SRD_DBG, 4), off))
    A('s_waitcnt vmcnt(0)')
    A('v_readfirstlane_b32 %s, v%d' % (s(st), vt))
    A('s_cmp_ge_u32 %s, %d' % (s(st), n))
    A('s_cbranch_scc1 %s' % l1)
    A('s_sleep %d' % sleep)
    A('s_sub_u32 %s, %s, 1' % (s(sspin), s(sspin)))
    A('s_cmp_gt_i32 %s, 0' % s(sspin))
    A('s_cbranch_scc1 %s' % l0)
    A.label(l1)
    A('s_barrier')


def gen_aux(A, opt):
    A.label('AUX_entry')
    srd(A, SRD_A, K_WMOD, 576 * 6912)
    srd(A, SRD_B, K_C, 1152)
    srd(A, SRD_C, K_X, 2048 * ROWB)
    A('s_mov_b32 %s, 0xffff0000' % s(sHI))
    A('s_mov_b32 %s, 400000' % s(sSpin))
    A('v_lshrrev_b32 v1, 2, v0')
    A('v_and_b32 v2, 3, v0')
    A('v_mul_u32_u24 v3, 6912, v1')
    A('v_lshl_add_u32 v3, v2, 4, v3')
    A('s_lshl_b32 %s, %s, 6' % (s(sT1), s(sID)))
    A('s_cmp_lt_u32 %s, 108' % s(sID))
    A('s_cselect_b32 %s, %s, 0x%x' % (s(sT1), s(sT1), OOB))
    A('v_add_u32 v3, %s, v3' % s(sT1))
    A('v_lshlrev_b32 v4, 1, v1')
    A('v_and_b32 v5, 63, v0')
    A('v_mul_u32_u24 v6, 24, v5')
    A('v_lshlrev_b32 v7, 1, v6')
    A('v_mov_b32 v8, 0x%x' % OOB)
    A('v_cmp_gt_u32 %s, 48, v5' % s(sMASK, 2))
    A('v_cndmask_b32 v6, v8, v6, %s' % s(sMASK, 2))
    A('v_cndmask_b32 v7, v8, v7, %s' % s(sMASK, 2))
    A('s_lshl_b32 %s, %s, 2' % (s(sSrc), s(sID)))
    A('s_add_u32 %s, %s, s4' % (s(sSrc), s(sSrc)))
    A('s_mul_i32 %s, %s, %d' % (s(sSrc), s(sSrc), 4 * ROWB))
    A('s_cmp_lt_u32 %s, 128' % s(sID))
    A('s_cselect_b32 %s, %s, 0x%x' % (s(sSrc), s(sSrc), OOB))
    A('s_waitcnt lgkmcnt(0)')
    C0, W0, RAW = 10, 20, 100
    for i in range(9):
        A('buffer_load_ushort v%d, v4, %s, 0 offen offset:%d' % (C0 + i, s(SRD_B, 4), 128 * i))
    for i in range(9):
        A('s_mov_b32 %s, %d' % (s(sT0), 64 * 6912 * i))
        A('buffer_load_dwordx4 %s, v3, %s, %s offen nt' % (v(W0 + 4 * i, 4), s(SRD_A, 4), s(sT0)))
    for r in range(4):
        for q in range(3):
            A('buffer_load_dwordx2 %s, v6, %s, %s offen offset:%d' % (v(RAW + 6 * r + 2 * q, 2), s(SRD_C, 4), s(sSrc), ROWB * r + 8 * q))
    for i in range(4):
        A('v_mov_b32 v%d, 0' % (60 + i))
    A('v_lshlrev_b32 v9, 4, v0')
    A('s_mul_i32 %s, %s, 4352' % (s(sT0), s(sID)))
    A('s_add_u32 %s, %s, 0x%x' % (s(sT0), s(sT0), FLAG_OFF))
    A('buffer_store_dwordx4 v[60:63], v9, %s, %s offen sc1' % (WS, s(sT0)))
    A('v_cmp_gt_u32 vcc, 16, v0')
    A('v_cndmask_b32 v9, v8, v9, vcc')
    A('s_add_u32 %s, %s, 4096' % (s(sT0), s(sT0)))
    A('buffer_store_dwordx4 v[60:63], v9, %s, %s offen sc1' % (WS, s(sT0)))
    A('s_cmp_ge_u32 %s, 108' % s(sID))
    A('s_cbranch_scc1 AUX_nomod')
    A('s_waitcnt vmcnt(23)')
    for i in range(9):
        x = C0 + i
        A('v_lshlrev_b32 v%d, 16, v%d' % (x, x))
        A('v_mul_f32 v64, 0x%x, v%d' % (f2u(-math.log2(math.e)), x))
        A('v_exp_f32 v64, v64')
        A('v_add_f32 v64, 1.0, v64')
        A('v_rcp_f32 v64, v64')
        A('v_mul_f32 v%d, v%d, v64' % (x, x))
        round1(A, x)
    AC = 68
    for j in range(8):
        A('v_mov_b32 v%d, 0' % (AC + j))
    for i in range(9):
        A('s_waitcnt vmcnt(%d)' % (22 - i))
        for q in range(4):
            w = W0 + 4 * i + q
            A('v_lshlrev_b32 v64, 16, v%d' % w)
            A('v_and_b32 v65, %s, v%d' % (s(sHI), w))
            A('v_fmac_f32 v%d, v64, v%d' % (AC + 2 * q, C0 + i))
            A('v_fmac_f32 v%d, v65, v%d' % (AC + 2 * q + 1, C0 + i))
    A('v_mul_u32_u24 v9, 144, v1')
    A('v_lshl_add_u32 v9, v2, 5, v9')
    A('ds_write_b128 v9, %s' % v(AC, 4))
    A('ds_write_b128 v9, %s offset:16' % v(AC + 4, 4))
    A('s_waitcnt lgkmcnt(0)')
    A('s_barrier')
    A('s_cmp_lg_u32 s4, 0')
    A('s_cbranch_scc1 AUX_modst')
    A('v_lshrrev_b32 v9, 5, v0')
    A('v_mul_u32_u24 v9, %d, v9' % (32 * 144))
    A('v_and_b32 v64, 31, v0')
    A('v_lshl_add_u32 v9, v64, 2, v9')
    for r in range(32):
        A('ds_read_b32 v%d, v9 offset:%d' % (W0 + r, 144 * r))
    A('s_waitcnt lgkmcnt(0)')
    for stp in (16, 8, 4, 2, 1):
        for r in range(stp):
            A('v_add_f32 v%d, v%d, v%d' % (W0 + r, W0 + r, W0 + r + stp))
    A('v_mov_b32 v%d, v%d' % (W0 + 1, W0))
    A('v_permlane32_swap_b32 v%d, v%d' % (W0, W0 + 1))
    A('v_add_f32 v%d, v%d, v%d' % (W0, W0, W0 + 1))
    round1(A, W0)
    A('v_lshlrev_b32 v64, 2, v64')
    A('s_lshl_b32 %s, %s, 7' % (s(sT0), s(sID)))
    A('s_add_u32 %s, %s, 0x%x' % (s(sT0), s(sT0), MOD_OFF))
    A('s_mov_b32 exec_hi, 0')
    A('buffer_store_dword v%d, v64, %s, %s offen sc1' % (W0, WS, s(sT0)))
    A('v_mov_b32 v65, 1')
    A('s_waitcnt vmcnt(0)')
    A('s_mov_b64 exec, 1')
    A('buffer_atomic_add v65, off, %s, 0 offset:%d' % (s(SRD_DBG, 4), D_MOD))
    A('s_mov_b64 exec, -1')
    A.label('AUX_modst')
    A.label('AUX_nomod')
    dbg_wait(A, D_MOD, 108, 64, sT0, sSpin, 2)
    A('s_cmp_ge_u32 %s, 128' % s(sID))
    A('s_cbranch_scc1 AUX_noln')
    X, SC, SH, T = 10, 24, 36, 48
    A('s_mov_b32 %s, 0x%x' % (s(sT0), MOD_OFF))
    for q in range(3):
        A('buffer_load_dwordx4 %s, v7, %s, %s offen offset:%d sc1' % (v(SH + 4 * q, 4), WS, s(sT0), 16 * q))
        A('buffer_load_dwordx4 %s, v7, %s, %s offen offset:%d sc1' % (v(SC + 4 * q, 4), WS, s(sT0), 2304 + 16 * q))
    A('s_waitcnt vmcnt(0)')
    for i in range(12):
        A('v_add_f32 v%d, 1.0, v%d' % (SC + i, SC + i))
    for i in range(0, 12, 2):
        round_pair(A, SC + i, SC + i + 1, 9)

    def total(reg, which):
        A('v_cndmask_b32 v%d, 0, v%d, %s' % (reg, reg, s(sMASK, 2)))
        wave_sum(A, reg, 9)
    A('s_add_u32 %s, %s, 0x%x' % (s(sSrc), s(sSrc), H1_OFF))
    for r in range(4):
        for i in range(6):
            A('v_lshlrev_b32 v%d, 16, v%d' % (X + 2 * i, RAW + 6 * r + i))
            A('v_and_b32 v%d, %s, v%d' % (X + 2 * i + 1, s(sHI), RAW + 6 * r + i))
        ln_mod(A, X, 12, SC, SH, RAW + 6 * r, T, total)
        for q in range(3):
            A('buffer_store_dwordx2 %s, v6, %s, %s offen offset:%d sc1' % (v(RAW + 6 * r + 2 * q, 2), WS, s(sSrc), ROWB * r + 8 * q))
    A.label('AUX_noln')
    dbg_arrive(A, D_RDY, 9)
```

```python
import sys, json
from asmlib import Asm, v, a, s
from layout import *
import role_r
import roles

NAME = 'adaLN_cond__memory_aug_recurrent_mem_tr__glu_gated_bilinear__prompt'

def header(launches):
    ref = open('cdna_kernels/%s.s.ref' % NAME).read().split('\n')
    out = []
    for ln in ref:
        if not ln.startswith(';'):
            break
        if '@launch' in ln or 'Override launch' in ln or 'grid=ceil' in ln:
            continue
        out.append(ln)
    out += launches
    out.append('.amdgcn_target "amdgcn-amd-amdhsa--gfx950"')
    out.append('.text')
    return '\n'.join(out) + '\n'

def kernel_open(name):
    return '.globl %s\n.p2align 8\n.type %s,@function\n%s:\n' % (name, name, name)

def descriptor(name, vgpr=512, accum=256, sgpr=102):
    return ('.amdhsa_kernel %s\n  .amdhsa_next_free_vgpr %d\n  .amdhsa_next_free_sgpr %d\n  .amdhsa_accum_offset %d\n'
            '  .amdhsa_group_segment_fixed_size 0\n  .amdhsa_kernarg_size 128\n  .amdhsa_user_sgpr_count 2\n'
            '  .amdhsa_user_sgpr_kernarg_segment_ptr 1\n  .amdhsa_system_sgpr_workgroup_id_x 1\n'
            '  .amdhsa_float_denorm_mode_32 3\n'
            '.end_amdhsa_kernel\n' % (name, vgpr, sgpr, accum))

def common_prologue(A, nwg=256):
    A('s_cmp_ge_u32 s2, %d' % nwg)
    A('s_cbranch_scc1 L_exit')
    A('s_load_dwordx2 s[8:9], s[0:1], %d' % K_WS)
    A('s_load_dwordx2 s[12:13], s[0:1], %d' % K_DBG)
    A('s_mov_b32 s10, 0x%x' % WS_SIZE)
    A('s_mov_b32 s11, 0x20000')
    A('s_mov_b32 s14, 256')
    A('s_mov_b32 s15, 0x20000')
    A('s_getreg_b32 s5, hwreg(HW_REG_XCC_ID)')
    A('s_and_b32 s5, s5, 15')
    A('v_lshrrev_b32 v1, 6, v0')
    A('v_readfirstlane_b32 s4, v1')
    A('v_mov_b32 v2, 0')
    A('s_waitcnt lgkmcnt(0)')
    A('s_cmp_lg_u32 s4, 0')
    A('s_cbranch_scc1 L_tk_wait')
    A('s_mov_b64 exec, 1')
    A('s_cmp_eq_u32 s5, 0')
    A('s_cselect_b32 s6, 0, 4')
    A('s_cselect_b32 s7, 32, 224')
    A('v_mov_b32 v1, 1')
    A('buffer_atomic_add v1, off, s[12:15], s6 sc0')
    A('s_waitcnt vmcnt(0)')
    A('v_readfirstlane_b32 s3, v1')
    A('s_cmp_lt_u32 s3, s7')
    A('s_cbranch_scc1 L_tk_have')
    A('s_xor_b32 s6, s6, 4')
    A('v_mov_b32 v1, 1')
    A('buffer_atomic_add v1, off, s[12:15], s6 sc0')
    A('s_waitcnt vmcnt(0)')
    A('v_readfirstlane_b32 s3, v1')
    A.label('L_tk_have')
    A('s_lshl_b32 s6, s6, 3')
    A('s_add_u32 s3, s3, s6')
    A('v_mov_b32 v1, s3')
    A('ds_write_b32 v2, v1')
    A('s_waitcnt lgkmcnt(0)')
    A('s_mov_b64 exec, -1')
    A.label('L_tk_wait')
    A('s_barrier')
    A('ds_read_b32 v1, v2')
    A('s_waitcnt lgkmcnt(0)')
    A('v_readfirstlane_b32 s3, v1')
    A('s_barrier')

def small_prologue(A, n, exit_label):
    A('s_cmp_ge_u32 s2, %d' % n)
    A('s_cbranch_scc1 %s' % exit_label)
    A('s_load_dwordx2 s[8:9], s[0:1], %d' % K_WS)
    A('s_mov_b32 s10, 0x%x' % WS_SIZE)
    A('s_mov_b32 s11, 0x20000')
    A('v_lshrrev_b32 v1, 6, v0')
    A('v_readfirstlane_b32 s4, v1')
    A('s_mov_b32 %s, s2' % s(roles.sID))
    A('s_waitcnt lgkmcnt(0)')


def build_r_only(opt):
    A = Asm()
    common_prologue(A)
    A('s_cmp_lt_u32 s3, 32')
    A('s_cbranch_scc1 R_entry')
    A.label('L_exit')
    A('s_endpgm')
    role_r.gen_R(A, opt)
    body = A.finish()
    k = NAME + '_kernel'
    txt = header(['; @launch grid=(256,1,1) block=(256,1,1) lds=163840'])
    txt += kernel_open(k) + body
    txt += '.section .rodata,"a"\n.p2align 6\n' + descriptor(k)
    return txt


def build_merged(opt):
    opt = dict(opt, flags=True)
    k = NAME + '_kernel'
    L = ['; @launch grid=(256,1,1) block=(256,1,1) lds=163840']
    A = Asm()
    if opt.get('stamps'):
        A('s_memrealtime s[100:101]')
    common_prologue(A)
    A('s_cmp_lt_u32 s3, 32')
    A('s_cbranch_scc1 R_entry')
    A('s_sub_u32 %s, s3, 32' % s(roles.sID))
    A('s_cmp_lt_u32 s3, 96')
    A('s_cbranch_scc1 A1_entry')
    A('s_cmp_ge_u32 s3, 256')
    A('s_cbranch_scc1 L_exit')
    A('s_sub_u32 %s, s3, 96' % s(roles.sID))
    roles.gen_aux(A, opt)
    base = 96
    for name, n in (('A2', 16 * opt.get('a2sets', 3)), ('DE', 72), ('CF', opt.get('ncf', roles.NCF))):
        A('s_sub_u32 %s, s3, %d' % (s(roles.sID), base))
        A('s_cmp_lt_u32 s3, %d' % (base + n))
        A('s_cbranch_scc1 %s_entry' % name)
        base += n
    A.label('L_exit')
    A('s_endpgm')
    role_r.gen_R(A, opt)
    roles.gen_A1(A, opt)
    roles.gen_A2(A, opt)
    roles.gen_CF(A, opt)
    roles.gen_DE(A, opt)
    code = kernel_open(k) + A.finish()
    return header(L) + code + '.section .rodata,"a"\n.p2align 6\n' + descriptor(k)


if __name__ == '__main__':
    opt = json.loads(sys.argv[2]) if len(sys.argv) > 2 else {}
    mode = opt.get('mode', 'r')
    fn = {'r': build_r_only}.get(mode) or globals()['build_' + mode]
    open(sys.argv[1], 'w').write(fn(opt))
```

```python
import math
import struct
from asmlib import v, a, s
from layout import *


def f2u(x):
    return struct.unpack('<I', struct.pack('<f', x))[0]


SRD_WS, SRD_DBG, SRD_A, SRD_B, SRD_C = 8, 12, 16, 20, 24
sH, sStep, sPW0, sPW1, sPR, sPRst, sMRd, sMWr, sMPrev, sKV, sKVM, sC, sUnit, sSpin = range(28, 42)
sSelBit = 90
sPF, sM0K, sM0P, sM0F = 96, 97, 98, 99
sOnes = 88
sNeedKV = 91
sFA1 = 92
sC2 = 94
sQMASK = 42
sSEL = 44
sPLO, sPHI = 52, 53
sT0, sT1, sT2, sT3 = 54, 55, 56, 57
sPB = 58
sUOFF = 59
sA1 = 60
sFLAGO = 61
sKVMP = 62
sMRd1, sMRd2 = 63, 6
sST = 64

vIdx, vL16, vPartOff, vPart8, vPub, vXW, vXR, vOW, vOR, vWo = range(0, 10)
VP = 10
M = [12 + 4 * m for m in range(9)]
AQ = [48 + 4 * t for t in range(4)]
RA, RB = 64, 72
AV = [64, 68]
SP0, SP1 = 72, 76
sTag, sTag2 = 33, 7
sCK = 40

L_WO = 0
L_KT = 147456
L_X = L_KT + 8192
L_O = L_X + 16 * 272
L_MISC = L_O + 8 * 272


KORD = [8, 0, 2, 4, 6, 1, 3, 5, 7]


def wfrag(f):
    return a(8 * f, 8) if f < 32 else v(80 + 8 * (f - 32), 8)


def wfreg(f, r):
    return a(8 * f + r) if f < 32 else v(80 + 8 * (f - 32) + r)


def f_qk(m, t):
    return 3 * m + t


def f_wo(j):
    return 27 + j


def wqk(m, t):
    return wfrag(f_qk(m, t))


def wv(m, t):
    return v(112 + 16 * m + 8 * t, 8)


def rowadd(r, b):
    return 32 * (r >> 2) + 8 * (r & 1) + 2 * ((r >> 1) & 1) + b


class Stream:
    def __init__(self, A, window):
        self.A, self.window, self.batches = A, window, []

    def add(self, n, issue, consume, regs=()):
        self.batches.append((n, issue, consume, set(regs)))

    def run(self):
        A = self.A
        q, out, i = [], 0, 0
        B = self.batches
        while i < len(B) or q:
            while i < len(B) and out + B[i][0] <= self.window and not any(B[i][3] & x[3] for x in q):
                B[i][1]()
                q.append(B[i])
                out += B[i][0]
                i += 1
            n, _, consume, _ = q.pop(0)
            out -= n
            A('s_waitcnt vmcnt(%d)' % out)
            consume()


def srd(A, reg, karg, size):
    A('s_load_dwordx2 %s, s[0:1], %d' % (s(reg, 2), karg))
    A('s_mov_b32 %s, 0x%x' % (s(reg + 2), size))
    A('s_mov_b32 %s, 0x20000' % s(reg + 3))


def wait_kv(A, vt):
    l0, l1 = A.newlabel('R_kv'), A.newlabel('R_kvok')
    A.label(l0)
    A('v_lshrrev_b32 v%d, 2, %s' % (vt, v(vL16)))
    A('v_and_b32 v%d, 4, v%d' % (vt, vt))
    A('buffer_load_dword v%d, v%d, %s, %s offen sc1' % (vt, vt, s(SRD_WS, 4), s(sFA1)))
    A('s_waitcnt vmcnt(0)')
    A('v_readlane_b32 %s, v%d, 0' % (s(sA1), vt))
    A('v_readlane_b32 %s, v%d, 1' % (s(sT3), vt))
    A('s_lshl_b32 %s, %s, 1' % (s(sA1), s(sA1)))
    A('s_lshl_b32 %s, %s, 1' % (s(sT3), s(sT3)))
    A('s_add_u32 %s, %s, 1' % (s(sT3), s(sT3)))
    A('s_min_u32 %s, %s, %s' % (s(sA1), s(sA1), s(sT3)))
    A('s_cmp_gt_u32 %s, %s' % (s(sA1), s(sNeedKV)))
    A('s_cbranch_scc1 %s' % l1)
    A('s_sleep 1')
    A('s_sub_u32 %s, %s, 1' % (s(sSpin), s(sSpin)))
    A('s_cmp_gt_i32 %s, 0' % s(sSpin))
    A('s_cbranch_scc1 %s' % l0)
    A.label(l1)


def gen_R(A, opt):
    stamps = opt.get('stamps', False)
    flags = opt.get('flags', True)
    nsteps = NSEG
    A.label('R_entry')
    if stamps:
        A('s_memrealtime %s' % s(sST + 22, 2))
    A('s_mov_b32 %s, s3' % s(sH))
    A('v_and_b32 v20, 63, v0')
    A('v_and_b32 v21, 15, v20')
    A('v_lshrrev_b32 v22, 4, v20')
    A('v_lshlrev_b32 %s, 4, v20' % v(vL16))
    A('v_lshrrev_b32 v23, 2, v21')
    A('v_and_b32 v24, 1, v21')
    A('v_lshl_add_u32 v23, v23, 1, v24')
    A('v_mov_b32 v26, 0x4444')
    A('v_mov_b32 v27, 0xeeee')
    A('v_cmp_eq_u32 vcc, 1, v24')
    A('v_cndmask_b32 %s, v26, v27, vcc' % v(vIdx))
    A('v_lshlrev_b32 v27, 5, v22')
    A('v_lshl_add_u32 v27, v24, 4, v27')
    A('v_lshrrev_b32 v25, 1, v21')
    A('v_mul_u32_u24 v26, 272, v25')
    A('v_add_u32 v28, v26, v27')
    A('v_add_u32 %s, %d, v28' % (v(vOR), L_O))
    A('v_mul_u32_u24 v26, 272, v23')
    A('s_lshl_b32 %s, s4, 6' % s(sT0))
    A('v_lshl_add_u32 v28, v22, 4, v26')
    A('v_add_u32 v28, %s, v28' % s(sT0))
    A('v_add_u32 %s, %d, v28' % (v(vOW), L_O))
    A('v_mul_u32_u24 v26, 272, v21')
    A('v_lshl_add_u32 v26, v22, 4, v26')
    A('v_add_u32 %s, %d, v26' % (v(vXR), L_X))
    A('s_cmp_lt_u32 s4, 2')
    A('s_cselect_b32 %s, 544, 0' % s(sT0))
    A('s_and_b32 %s, s4, 1' % s(sT1))
    A('s_lshl_b32 %s, %s, 7' % (s(sT1), s(sT1)))
    A('s_add_u32 %s, %s, %s' % (s(sT0), s(sT0), s(sT1)))
    A('s_add_u32 %s, %s, %d' % (s(sT0), s(sT0), L_X))
    A('v_mul_u32_u24 v26, 1088, v22')
    A('v_lshl_add_u32 v26, v21, 3, v26')
    A('v_add_u32 %s, %s, v26' % (v(vXW), s(sT0)))
    A('s_mul_i32 %s, s4, 36864' % s(sT0))
    A('v_add_u32 %s, %s, %s' % (v(vWo), s(sT0), v(vL16)))
    A('v_lshrrev_b32 v27, 3, v21')
    A('v_lshl_add_u32 v27, v22, 1, v27')
    A('s_lshl_b32 %s, s4, 4' % s(sT0))
    A('v_add_u32 v27, %s, v27' % s(sT0))
    A('v_lshlrev_b32 v27, 12, v27')
    A('v_and_b32 v28, 7, v21')
    A('v_lshl_add_u32 v27, v28, 4, v27')
    A('s_lshl_b32 %s, %s, 7' % (s(sT0), s(sH)))
    A('v_add_u32 %s, %s, v27' % (v(vPartOff), s(sT0)))
    A('s_lshr_b32 %s, s4, 1' % s(sT1))
    A('s_add_u32 %s, %s, 64' % (s(sT1), s(sT1)))
    A('s_lshl_b32 %s, %s, 12' % (s(sT1), s(sT1)))
    A('s_add_u32 %s, %s, %s' % (s(sT0), s(sT0), s(sT1)))
    A('s_and_b32 %s, s4, 1' % s(sT1))
    A('s_lshl_b32 %s, %s, 6' % (s(sT1), s(sT1)))
    A('s_add_u32 %s, %s, %s' % (s(sT0), s(sT0), s(sT1)))
    A('v_lshlrev_b32 v26, 13, v22')
    A('v_lshl_add_u32 v26, v21, 2, v26')
    A('v_add_u32 %s, %s, v26' % (v(vPart8), s(sT0)))
    A('s_lshl_b32 %s, s4, 5' % s(sUnit))
    A('s_add_u32 %s, %s, %s' % (s(sUnit), s(sUnit), s(sH)))
    A('s_lshl_b32 %s, %s, 12' % (s(sT0), s(sUnit)))
    A('s_lshr_b32 %s, %s, 3' % (s(sT1), s(sUnit)))
    A('s_lshl_b32 %s, %s, 7' % (s(sT3), s(sT1)))
    A('s_and_b32 %s, %s, 1' % (s(sT2), s(sT1)))
    A('s_lshl_b32 %s, %s, 2' % (s(sT2), s(sT2)))
    A('s_lshr_b32 %s, %s, 1' % (s(sPB), s(sT1)))
    A('s_add_u32 %s, %s, %s' % (s(sT2), s(sT2), s(sPB)))
    A('s_add_u32 %s, %s, 1' % (s(sT2), s(sT2)))
    A('s_cmp_eq_u32 %s, 8' % s(sT1))
    A('s_cselect_b32 %s, 0, %s' % (s(sT1), s(sT2)))
    A('s_lshl_b32 %s, %s, 10' % (s(sT1), s(sT1)))
    A('s_and_b32 %s, %s, 1' % (s(sT2), s(sUnit)))
    A('s_lshl_b32 %s, %s, 9' % (s(sPB), s(sT2)))
    A('s_add_u32 %s, %s, %s' % (s(sT1), s(sT1), s(sPB)))
    A('s_lshl_b32 %s, %s, 6' % (s(sPB), s(sT2)))
    A('s_add_u32 %s, %s, %s' % (s(sT3), s(sT3), s(sPB)))
    A('s_and_b32 %s, %s, 6' % (s(sT2), s(sUnit)))
    A('s_lshl_b32 %s, %s, 5' % (s(sPB), s(sT2)))
    A('s_add_u32 %s, %s, %s' % (s(sT1), s(sT1), s(sPB)))
    A('s_mul_i32 %s, %s, 1152' % (s(sPB), s(sT2)))
    A('s_add_u32 %s, %s, %s' % (s(sT3), s(sT3), s(sPB)))
    A('s_cmp_lt_u32 %s, 72' % s(sUnit))
    A('s_cselect_b32 %s, %s, 0x%x' % (s(sUOFF), s(sT0), OOB))
    A('s_cselect_b32 %s, %s, 0x%x' % (s(sT1), s(sT1), OOB))
    A('v_lshrrev_b32 v26, 2, v21')
    A('v_lshlrev_b32 v26, 8, v26')
    A('v_lshl_add_u32 v26, v22, 5, v26')
    A('v_and_b32 v27, 3, v21')
    A('v_lshl_add_u32 v26, v27, 3, v26')
    A('v_add_u32 v26, %s, v26' % s(sT1))
    A('v_mov_b32 v27, 0x%x' % OOB)
    A('v_and_b32 v28, 0x28, v20')
    A('v_cmp_eq_u32 vcc, 0, v28')
    A('v_cndmask_b32 %s, v27, v26, vcc' % v(vPub))
    A('v_mul_u32_u24 v29, 1152, v22')
    A('v_lshl_add_u32 v29, v21, 3, v29')
    A('v_add_u32 v29, %s, v29' % s(sT3))
    srd(A, SRD_A, K_MEM0, 8 * ROWB)
    A('s_mov_b32 %s, 0xcccccccc' % s(sQMASK))
    A('s_mov_b32 %s, 0xcccccccc' % s(sQMASK + 1))
    A('s_cmp_lt_u32 %s, 64' % s(sUnit))
    A('s_cselect_b32 %s, 4, 6' % s(sSelBit))
    for q in range(4):
        A('s_mov_b32 %s, 0x%x' % (s(sT0), 0x00110011 << q))
        A('s_cselect_b32 %s, 0x%x, %s' % (s(sSEL + 2 * q), 0x00030003 << (2 * q), s(sT0)))
        A('s_mov_b32 %s, %s' % (s(sSEL + 2 * q + 1), s(sSEL + 2 * q)))
    A('s_mov_b32 %s, 0x05040100' % s(sPLO))
    A('s_mov_b32 %s, 0x07060302' % s(sPHI))
    A('s_mov_b32 %s, 0x%x' % (s(sC), f2u(128 ** -0.5 * math.log2(math.e))))
    A('s_mov_b32 %s, %d' % (s(sSpin), opt.get('spin', 200000)))

    for i in range(4):
        A('v_mov_b32 v%d, -1' % (SP1 + i))
    A('s_add_u32 %s, %s, %d' % (s(sPR), s(sUOFF), PART_OFF))
    for i in range(4):
        A('buffer_store_dwordx4 %s, %s, %s, %s offen offset:%d sc1' % (v(SP1, 4), v(vL16), s(SRD_WS, 4), s(sPR), 1024 * i))
    for i in range(1, 3):
        A('s_mov_b32 %s, 0x%x' % (s(sT0), MEMR_OFF + i * MEMR_STRIDE))
        A('buffer_store_dwordx2 %s, %s, %s, %s offen sc1' % (v(SP1, 2), v(vPub), s(SRD_WS, 4), s(sT0)))
    A('s_waitcnt lgkmcnt(0)')
    A('buffer_load_dwordx2 v[30:31], v29, %s, 0 offen' % s(SRD_A, 4))
    A('s_mov_b32 %s, 0x%x' % (s(sT0), MEMR_OFF))
    A('s_waitcnt vmcnt(0)')
    A('buffer_store_dwordx2 v[30:31], %s, %s, %s offen sc1' % (v(vPub), s(SRD_WS, 4), s(sT0)))
    A('s_waitcnt vmcnt(0)')
    A('s_barrier')
    lab = A.newlabel('R_noarrive')
    A('s_cmp_lg_u32 s4, 0')
    A('s_cbranch_scc1 %s' % lab)
    A('s_cmp_eq_u32 s5, 0')
    A('s_cselect_b32 %s, 1, 0x10001' % s(sT0))
    if opt.get('force_slow'):
        A('s_mov_b32 %s, 0x10001' % s(sT0))
    A('v_mov_b32 v26, %s' % s(sT0))
    A('s_mov_b64 exec, 1')
    A('buffer_atomic_add v26, off, %s, 0 offset:8' % s(SRD_DBG, 4))
    A('s_mov_b64 exec, -1')
    A.label(lab)

    srd(A, SRD_A, K_WO, 4096 * ROWB)
    A('s_load_dwordx2 %s, s[0:1], %d' % (s(SRD_B, 2), K_WQ))
    A('s_load_dwordx2 %s, s[0:1], %d' % (s(sT2, 2), K_WK))
    A('s_mov_b32 %s, 0x%x' % (s(SRD_B + 2), 576 * 8192))
    A('s_mov_b32 %s, 0x20000' % s(SRD_B + 3))
    srd(A, SRD_C, K_WV, 576 * 8192)
    A('v_lshrrev_b32 v26, 1, v22')
    A('v_lshlrev_b32 v26, 4, v26')
    A('v_and_b32 v27, 1, v22')
    A('v_lshl_add_u32 v26, v27, 2, v26')
    A('s_lshl_b32 %s, %s, 7' % (s(sT0), s(sH)))
    A('v_add_u32 v27, %s, v26' % s(sT0))
    A('v_mul_u32_u24 v27, 1152, v27')
    A('s_lshl_b32 %s, s4, 8' % s(sT0))
    A('v_lshl_add_u32 v28, v21, 3, v27')
    A('v_add_u32 v12, %s, v28' % s(sT0))
    A('s_lshl_b32 %s, s4, 5' % s(sT0))
    A('s_add_u32 %s, %s, 1024' % (s(sT0), s(sT0)))
    A('v_lshl_add_u32 v28, v21, 1, v27')
    A('v_add_u32 v13, %s, v28' % s(sT0))
    A('v_lshlrev_b32 v27, 13, v26')
    A('s_lshl_b32 %s, %s, 8' % (s(sT0), s(sH)))
    A('v_add_u32 v27, %s, v27' % s(sT0))
    A('s_and_b32 %s, s4, 1' % s(sT0))
    A('s_lshl_b32 %s, %s, 7' % (s(sT0), s(sT0)))
    A('v_lshl_add_u32 v28, v21, 3, v27')
    A('v_add_u32 v14, %s, v28' % s(sT0))
    A('s_lshl_b32 %s, s4, 6' % s(sT0))
    A('v_lshl_add_u32 v28, v21, 2, v27')
    A('v_add_u32 v15, %s, v28' % s(sT0))
    A('s_waitcnt lgkmcnt(0)')
    A('s_cmp_lt_u32 s4, 2')
    A('s_cselect_b32 %s, %s, %s' % (s(SRD_B), s(SRD_B), s(sT2)))
    A('s_cselect_b32 %s, %s, %s' % (s(SRD_B + 1), s(SRD_B + 1), s(sT2 + 1)))
    nt = ' nt' if opt.get('nt', True) else ''

    st = Stream(A, 60)
    TMP = [48, 52, 56, 60]

    def wo_issue(m, rh):
        base = 128 + 32 * (2 * m + rh)
        for r1 in range(2):
            A('s_mov_b32 %s, %d' % (s(sT0), (64 * m + 32 * rh + 8 * r1) * ROWB))
            for r2 in range(2):
                for b in range(2):
                    r = 2 * r2 + r1
                    for i in range(2):
                        A('buffer_load_dwordx2 %s, v12, %s, %s offen offset:%d%s' % (
                            v(base + 8 * r + 4 * b + 2 * i, 2), s(SRD_A, 4), s(sT0), (2 * r2 + b) * ROWB + 128 * i, nt))

    def put(f, r, src):
        if f < 32:
            A('v_accvgpr_write_b32 %s, v%d' % (wfreg(f, r), src))
        else:
            A('v_mov_b32 %s, v%d' % (wfreg(f, r), src))

    def wo_consume(m, rh):
        base = 128 + 32 * (2 * m + rh)
        for j in range(8):
            o = TMP[j & 3]
            for r in range(4):
                A('v_perm_b32 v%d, v%d, v%d, %s' % (o + r, base + 8 * r + 4 + (j >> 1), base + 8 * r + (j >> 1),
                                                   s(sPHI if j & 1 else sPLO)))
            if m == 1:
                A('ds_write_b128 %s, %s offset:%d' % (v(vWo), v(o, 4), (9 + j) * 2048 + rh * 1024))
            else:
                for r in range(4):
                    put(f_wo(j), 4 * rh + r, o + r)

    def wo8_issue(m):
        for r in range(8):
            if (r >> 1) & 1 == 0:
                pass
            A('s_mov_b32 %s, %d' % (s(sT0), (64 * m + rowadd(r, 0)) * ROWB))
            for b in range(2):
                A('buffer_load_ushort v%d, v13, %s, %s offen offset:%d%s' % (
                    16 + 16 * m + 2 * r + b, s(SRD_A, 4), s(sT0), b * ROWB, nt))

    def wo8_consume(m):
        for rh in range(2):
            o = TMP[rh]
            for r in range(4):
                rr = 16 + 16 * m + 2 * (4 * rh + r)
                A('v_lshl_or_b32 v%d, v%d, 16, v%d' % (o + r, rr + 1, rr))
            if m == 1:
                A('ds_write_b128 %s, %s offset:%d' % (v(vWo), v(o, 4), (9 + 8) * 2048 + rh * 1024))
            else:
                for r in range(4):
                    put(f_wo(8), 4 * rh + r, o + r)

    for m in range(2):
        for rh in range(2):
            st.add(16, lambda m=m, rh=rh: wo_issue(m, rh), lambda m=m, rh=rh: wo_consume(m, rh),
                   range(128 + 32 * (2 * m + rh), 160 + 32 * (2 * m + rh)))
    for m in range(2):
        st.add(16, lambda m=m: wo8_issue(m), lambda m=m: wo8_consume(m))

    def qk_raw(m, i, n=1):
        return v(128 + 32 * (m & 3) + i, n)

    def qk_issue(m):
        for r in range(8):
            for b in range(2):
                A('s_mov_b32 %s, %d' % (s(sT0), (64 * m + rowadd(r, b)) * 8192))
                A('buffer_load_dwordx2 %s, v14, %s, %s offen%s' % (qk_raw(m, 4 * r + 2 * b, 2), s(SRD_B, 4), s(sT0), nt))

    def qk_consume(m):
        base = 128 + 32 * (m & 3)
        for t in range(4):
            for r in range(8):
                lo, hi = base + 4 * r + (t >> 1), base + 4 * r + 2 + (t >> 1)
                sel = s(sPHI if t & 1 else sPLO)
                tmp = 48 + 8 * (t & 1) + r
                A('v_perm_b32 v%d, v%d, v%d, %s' % (tmp, hi, lo, sel))
                if t < 3:
                    put(f_qk(m, t), r, tmp)
            if t == 3:
                A('ds_write_b128 %s, %s offset:%d' % (v(vWo), v(56, 4), m * 2048))
                A('ds_write_b128 %s, %s offset:%d' % (v(vWo), v(60, 4), m * 2048 + 1024))

    for m in range(9):
        st.add(16, lambda m=m: qk_issue(m), lambda m=m: qk_consume(m), range(128 + 32 * (m & 3), 160 + 32 * (m & 3)))

    def v_issue(m):
        for r in range(8):
            for b in range(2):
                A('s_mov_b32 %s, %d' % (s(sT0), (64 * m + rowadd(r, b)) * 8192))
                A('buffer_load_dword v%d, v15, %s, %s offen%s' % (112 + 16 * m + 8 * b + r, s(SRD_C, 4), s(sT0), nt))

    def v_consume(m):
        for r in range(8):
            t0, t1 = 112 + 16 * m + r, 112 + 16 * m + 8 + r
            tmp = 16 + (r & 7)
            A('v_perm_b32 v%d, v%d, v%d, %s' % (tmp, t1, t0, s(sPLO)))
            A('v_perm_b32 v%d, v%d, v%d, %s' % (t1, t1, t0, s(sPHI)))
            A('v_mov_b32 v%d, v%d' % (t0, tmp))

    for m in (0, 3, 4, 5, 6, 7, 8, 1, 2):
        st.add(16, lambda m=m: v_issue(m), lambda m=m: v_consume(m), range(112 + 16 * m, 128 + 16 * m))
    st.run()

    A('s_mov_b32 %s, 0' % s(sStep))
    A('s_mov_b32 %s, 0x%x' % (s(sMRd), MEMR_OFF))
    A('s_mov_b32 %s, 0' % s(sTag))
    A('s_mov_b32 %s, 0' % s(sTag2))
    A('s_mov_b32 %s, %d' % (s(sPW1), PART_OFF + 32768))
    A('s_mov_b32 %s, %s' % (s(sC2), s(sC)))
    A('s_mov_b32 %s, %s' % (s(sC2 + 1), s(sC)))
    A('s_mov_b32 %s, 0x%x' % (s(sMRd1), MEMR_OFF + 4096))
    A('s_mov_b32 %s, 0x%x' % (s(sMRd2), MEMR_OFF + 8192))
    A('s_mov_b32 %s, 0x%x' % (s(sMWr), MEMR_OFF + MEMR_STRIDE))
    A('s_mov_b32 %s, 0x%x' % (s(sMPrev), MEMR_OFF + 2 * MEMR_STRIDE))
    A('s_mov_b32 %s, %d' % (s(sPB), PART_OFF))
    A('s_mul_i32 %s, %s, %d' % (s(sKV), s(sH), QKV_BLK))
    A('s_add_u32 %s, %s, 0x%x' % (s(sKV), s(sKV), QKV_OFF))
    A('s_lshl_b32 %s, %s, 13' % (s(sKVM), s(sH)))
    A('s_add_u32 %s, %s, 0x%x' % (s(sKVM), s(sKVM), KVM_OFF))
    A('s_lshl_b32 %s, s4, 11' % s(sT0))
    A('s_add_u32 %s, %s, %s' % (s(sKVM), s(sKVM), s(sT0)))
    lw, lw2 = A.newlabel('R_team'), A.newlabel('R_teamok')
    A.label(lw)
    A('buffer_load_dword v26, off, %s, 0 offset:8 sc1' % s(SRD_DBG, 4))
    A('s_waitcnt vmcnt(0) lgkmcnt(0)')
    A('v_readfirstlane_b32 %s, v26' % s(sT0))
    A('s_and_b32 %s, %s, 0xffff' % (s(sT1), s(sT0)))
    A('s_cmp_ge_u32 %s, 32' % s(sT1))
    A('s_cbranch_scc1 %s' % lw2)
    A('s_sub_u32 %s, %s, 1' % (s(sSpin), s(sSpin)))
    A('s_cmp_gt_i32 %s, 0' % s(sSpin))
    A('s_cbranch_scc1 %s' % lw)
    A.label(lw2)
    A('s_lshl_b32 %s, %s, 7' % (s(sFA1), s(sH)))
    A('s_add_u32 %s, %s, 0x%x' % (s(sFA1), s(sFA1), FLAG_OFF + F_A1))
    A('s_lshl_b32 %s, %s, 7' % (s(sFLAGO), s(sH)))
    A('s_add_u32 %s, %s, 0x%x' % (s(sFLAGO), s(sFLAGO), FLAG_OFF + F_R))
    A('s_cmp_eq_u32 s4, 3')
    A('s_cselect_b32 %s, %s, 0x%x' % (s(sFLAGO), s(sFLAGO), OOB))
    A('s_mov_b32 %s, %d' % (s(sA1), 0 if flags else 64))
    A('s_mov_b32 %s, 0' % s(sNeedKV))
    if flags:
        import roles
        roles.dbg_wait(A, roles.D_RDY, roles.NAUX, 26, sT1, sSpin)
        wait_kv(A, 26)
    A('s_lshl_b32 %s, s4, 11' % s(sT1))
    A('s_add_u32 %s, %s, %d' % (s(sM0K), s(sT1), L_KT))
    A('s_mov_b32 m0, %s' % s(sM0K))
    A('s_lshl_b32 %s, s4, 8' % s(sM0P))
    A('s_add_u32 %s, %s, %d' % (s(sM0P), s(sM0P), L_MISC))
    A('s_lshl_b32 %s, s4, 4' % s(sM0F))
    A('s_add_u32 %s, %s, %d' % (s(sM0F), s(sM0F), L_MISC + 1024))
    A('s_mov_b32 %s, 0x3f803f80' % s(sOnes))
    A('s_mov_b32 %s, 0x3f803f80' % s(sOnes + 1))
    A('s_lshl_b32 %s, s4, 12' % s(sPF))
    A('s_add_u32 %s, %s, %s' % (s(sPF), s(sPF), s(sKV)))
    A('s_add_u32 %s, %s, %d' % (s(sPF), s(sPF), 2 * NH * QKV_BLK + 8192))
    A('s_add_u32 %s, %s, %s' % (s(sKV), s(sKV), s(sT1)))
    A('s_add_u32 %s, %s, 16384' % (s(sKV), s(sKV)))
    A('s_sub_u32 %s, %s, 8192' % (s(sT1), s(sKV)))
    A('buffer_load_dwordx4 %s, %s, %s offen sc1 lds' % (v(vL16), s(SRD_WS, 4), s(sT1)))
    A('buffer_load_dwordx4 %s, %s, %s offen offset:1024 sc1 lds' % (v(vL16), s(SRD_WS, 4), s(sT1)))
    for i in range(48, 64, 2):
        A('v_mov_b64 %s, 0' % v(i, 2))
    A('s_waitcnt lgkmcnt(0)')
    for q in range(2):
        ring = RB if q % 2 == 0 else RA
        A('ds_read_b128 %s, %s offset:%d' % (v(ring, 4), v(vWo), KORD[q] * 2048))
        A('ds_read_b128 %s, %s offset:%d' % (v(ring + 4, 4), v(vWo), KORD[q] * 2048 + 1024))
    A('s_waitcnt vmcnt(0) lgkmcnt(0)')
    A('s_barrier')
    if stamps:
        for i in range(16):
            A('s_mov_b32 %s, 0' % s(sST + 4 + i))
        A('s_memrealtime %s' % s(sST, 2))
        A('s_waitcnt lgkmcnt(0)')
        A('s_mov_b32 %s, %s' % (s(sST + 4 + 11), s(sST)))
        A('s_sub_u32 %s, %s, %s' % (s(sST + 4 + 10), s(sST), s(sST + 22)))
        A('s_memtime %s' % s(sST, 2))
        A('s_waitcnt lgkmcnt(0)')
    A('s_lshr_b32 %s, %s, 16' % (s(sT0), s(sT0)))
    A('s_cmp_lg_u32 %s, 0' % s(sT0))
    A('s_cbranch_scc1 R_loop_slow')
    gen_loop(A, opt, 'fast')
    gen_loop(A, opt, 'slow')


def gen_loop(A, opt, mode):
    stamps = opt.get('stamps', False)
    stsel = opt.get('stsel', list(range(8)))
    flags = opt.get('flags', True)
    sc = ' sc1' if mode == 'slow' else ''
    L = lambda n: 'R_%s_%s' % (n, mode)
    WS = s(SRD_WS, 4)
    NFIRST = opt.get('nfirst', 5)
    BLK = NH * QKV_BLK
    noslow = opt.get('noslow', 0)
    if noslow & 1:
        BLK = 0
    KSC = '' if noslow & 2 else ' sc1'

    def stamp(i):
        if not stamps or i not in stsel:
            return
        A('s_memtime %s' % s(sST + 2, 2))
        A('s_waitcnt lgkmcnt(0)')
        A('s_sub_u32 %s, %s, %s' % (s(sT3), s(sST + 2), s(sST)))
        A('s_add_u32 %s, %s, %s' % (s(sST + 4 + i), s(sST + 4 + i), s(sT3)))
        A('s_mov_b32 %s, %s' % (s(sST), s(sST + 2)))

    def smf(d, aa, b):
        A('v_smfmac_f32_16x16x64_bf16 %s, %s, %s, %s' % (v(d, 4), v(aa, 4), b, v(vIdx)))

    def vs(q, t):
        smf(AV[t], M[q], wv(KORD[q], t))

    def mload(q):
        A('buffer_load_dwordx4 %s, %s, %s, %s offen offset:%d sc1' % (
            v(M[q], 4), v(vL16), WS, s([sMRd, sMRd1, sMRd2][q >> 2]), 1024 * (q & 3)))

    def check(q):
        A('v_cmp_u_f32 vcc, v%d, v%d' % (M[q], M[q] + 2))

    def ldshalf(dst, slot, h):
        A('ds_read_b128 %s, %s offset:%d' % (v(dst + 4 * h, 4), v(vWo), slot * 2048 + 1024 * h))

    def ldsfrag(dst, slot):
        ldshalf(dst, slot, 0)
        ldshalf(dst, slot, 1)

    def z2(r):
        A('v_mov_b64 %s, 0' % v(r, 2))

    ring = lambda q: RB if q % 2 == 0 else RA

    A('.p2align 6')
    A.label(L('loop'))
    pace = opt.get('pace', 14)
    late = []
    if opt.get('late_prep'):
        late = [lambda i=i: z2(i) for i in range(48, 64, 2)]
    for q in range(NFIRST):
        mload(q)
        if q >= opt.get('pace_from', 0) and q < NFIRST - 1:
            k = pace
            while k > 0 and late:
                late.pop(0)()
                k -= 1
            if k > 0:
                A('s_nop %d' % (k - 1))
    for f in late:
        f()
    A.label(L('mpoll'))
    A('s_waitcnt vmcnt(%d)' % (NFIRST - 1))
    check(0)
    A('s_cbranch_vccnz %s' % L('retry0'))
    A.label(L('mok0'))
    stamp(0)
    issued = NFIRST
    extra = 0
    burst = opt.get('burst', 2)
    for q in range(9):
        m = KORD[q]
        smf(AQ[0], M[q], wqk(m, 0))
        if issued < 9 and burst >= 2:
            mload(issued)
            issued += 1
        if q < 8:
            A('s_waitcnt vmcnt(%d)' % (issued - 1 - (q + 1) + extra))
            check(q + 1)
        else:
            z2(RA)
        smf(AQ[1], M[q], wqk(m, 1))
        if issued < 9:
            mload(issued)
            issued += 1
        if q == 8:
            z2(RA + 2)
        smf(AQ[2], M[q], wqk(m, 2))
        if q >= 2:
            A('s_waitcnt lgkmcnt(%d)' % (2 if q < 8 else 0))
        if q < 8:
            A('s_cbranch_vccnz %s' % L('retry%d' % (q + 1)))
            A.label(L('mok%d' % (q + 1)))
        else:
            z2(RA + 4)
        smf(AQ[3], M[q], v(ring(q), 8))
        if q + 2 < 9:
            ldsfrag(ring(q), KORD[q + 2])
        if q == 8:
            z2(RA + 6)
    assert issued == 9
    T = M[0]
    VT = [RB, RB + 4]
    vs(0, 0)
    A('buffer_load_dwordx4 %s, %s, %s, %s offen sc1' % (v(VT[0], 4), v(vL16), WS, s(sKV)))
    A('v_add_u32 v%d, %d, %s' % (VP, L_KT, v(vL16)))
    vs(0, 1)
    A('buffer_load_dwordx4 %s, %s, %s, %s offen offset:1024 sc1' % (v(VT[1], 4), v(vL16), WS, s(sKV)))
    for t in range(4):
        A('v_add_f32 v%d, v%d, v%d' % (AQ[t], AQ[t], AQ[t] + 1))
        A('v_add_f32 v%d, v%d, v%d' % (AQ[t] + 1, AQ[t] + 2, AQ[t] + 3))
    A('v_cvt_pk_bf16_f32 v%d, v%d, v%d' % (T, AQ[0], AQ[1]))
    A('v_cvt_pk_bf16_f32 v%d, v%d, v%d' % (T + 1, AQ[2], AQ[3]))
    A('v_cvt_pk_bf16_f32 v%d, v%d, v%d' % (T + 2, AQ[0] + 1, AQ[1] + 1))
    A('v_cvt_pk_bf16_f32 v%d, v%d, v%d' % (T + 3, AQ[2] + 1, AQ[3] + 1))
    vs(1, 0)
    A('ds_write2_b64 %s, %s, %s offset0:0 offset1:34' % (v(vXW), v(T, 2), v(T + 2, 2)))
    stamp(1)
    KT = {(0, 0): AQ[0], (0, 1): AQ[1], (1, 0): AQ[2], (1, 1): AQ[3], (2, 0): M[4], (2, 1): M[5], (3, 0): AQ[0], (3, 1): AQ[1]}

    def ktread(m, aa):
        A('ds_read_b128 %s, v%d offset:%d' % (v(KT[(m, aa)], 4), VP, (2 * m + aa) * 1024))
    vs(1, 1)
    ktread(0, 0)
    ktread(0, 1)
    vs(2, 0)
    ktread(1, 0)
    ktread(1, 1)
    vs(2, 1)
    A('buffer_store_dwordx4 %s, %s, %s, %s offen%s' % (v(T, 4), v(vL16), WS, s(sKVM), KSC))
    vs(3, 0)
    A('s_add_u32 %s, %s, 1' % (s(sNeedKV), s(sStep)))
    A('s_min_u32 %s, %s, %d' % (s(sNeedKV), s(sNeedKV), NSEG - 1))
    A('s_cmp_gt_u32 %s, %s' % (s(sA1), s(sNeedKV)))
    vs(3, 1)
    A('s_waitcnt lgkmcnt(4)')
    A('s_barrier')
    A('ds_read_b128 %s, %s' % (v(M[0], 4), v(vXR)))
    vs(4, 0)
    A('ds_read_b128 %s, %s offset:64' % (v(M[1], 4), v(vXR)))
    A('ds_read_b128 %s, %s offset:128' % (v(M[2], 4), v(vXR)))
    vs(4, 1)
    A('ds_read_b128 %s, %s offset:192' % (v(M[3], 4), v(vXR)))
    ktread(2, 0)
    vs(5, 0)
    if flags:
        A('s_cbranch_scc0 %s' % L('kvwait'))
        A.label(L('kvok'))
    A('v_lshlrev_b32 v%d, 2, %s' % (VP + 1, v(vL16)))
    vs(5, 1)
    A('s_mov_b32 m0, %s' % s(sM0P))
    ktread(2, 1)
    vs(6, 0)
    A('s_add_u32 %s, %s, 2' % (s(sT1), s(sStep)))
    A('s_cmp_gt_u32 %s, %s' % (s(sA1), s(sT1)))
    A('s_cselect_b32 %s, %s, 0x%x' % (s(sT1), s(sPF), OOB))
    vs(6, 1)
    A('buffer_load_dword v%d, %s, %s offen sc1 lds' % (VP + 1, WS, s(sT1)))
    A('v_mov_b32 v%d, %s' % (VP + 1, s(sStep)))
    vs(7, 0)
    A('s_add_u32 %s, %s, %d' % (s(sPF), s(sPF), BLK))
    A('s_add_u32 %s, %s, %d' % (s(sKV), s(sKV), BLK))
    A('s_mov_b32 m0, %s' % s(sM0F))
    vs(7, 1)
    A('s_mov_b64 exec, 1')
    A('buffer_store_dword v%d, off, %s, %s%s' % (VP + 1, WS, s(sFLAGO), KSC))
    A('buffer_load_dwordx4 off, %s, %s sc1 lds' % (WS, s(sFA1)))
    A('s_mov_b64 exec, -1')
    vs(8, 0)
    A('s_mov_b32 m0, %s' % s(sM0K))
    A('s_sub_u32 %s, %s, 8192' % (s(sT1), s(sKV)))
    vs(8, 1)
    stamp(2)
    S0, S1, SM = M[6], M[7], M[8]
    F = [M[0], M[2], AQ[0]]
    order = [8, 0, 1, 2, 3, 4, 5, 6, 7]

    def fread(i):
        ldsfrag(F[i % 3], 9 + order[i])

    waits = {0: 5, 1: 6, 2: 2, 3: 2}
    P, PM = M[4], M[5]
    for m in range(4):
        A('s_waitcnt lgkmcnt(%d)' % waits[m])
        c = lambda d: '0' if m == 0 else v(d, 4)
        A('v_mfma_f32_16x16x32_bf16 %s, %s, %s, %s' % (v(S0, 4), v(KT[(m, 0)], 4), v(M[m], 4), c(S0)))
        if m == 0:
            ktread(3, 0)
        if m == 2:
            A('v_add_f32 v64, v64, v65')
            A('v_add_f32 v65, v66, v67')
        if m == 3:
            A('v_cvt_pk_bf16_f32 v%d, v64, v65' % VP)
            A('v_cvt_pk_bf16_f32 v%d, v68, v69' % (VP + 1))
        A('v_mfma_f32_16x16x32_bf16 %s, %s, %s, %s' % (v(S1, 4), v(KT[(m, 1)], 4), v(M[m], 4), c(S1)))
        if m == 0:
            ktread(3, 1)
        if m == 2:
            A('v_add_f32 v68, v68, v69')
            A('v_add_f32 v69, v70, v71')
        if m == 3:
            A('v_mov_b32 v%d, 0' % (PM + 1))
            z2(PM + 2)
        A('v_mfma_f32_16x16x32_bf16 %s, %s, %s, %s' % (v(SM, 4), v(M[m], 4), v(M[m], 4), c(SM)))
        if m == 1:
            A('s_cmp_eq_u32 %s, %d' % (s(sStep), NSEG - 1))
        if m == 2:
            fread(0)
    A('buffer_store_dwordx2 %s, %s, %s, %s offen offset:1024%s' % (v(VP, 2), v(vL16), WS, s(sKVM), KSC))
    fread(1)
    A('s_cbranch_scc1 %s' % L('done'))
    sv = [S0, S0 + 1, S0 + 2, S0 + 3, S1, S1 + 1, S1 + 2, S1 + 3, SM, SM + 1]
    mx, t = SM + 2, SM + 3
    A('v_max3_f32 v%d, v%d, v%d, v%d' % (68, sv[0], sv[1], sv[2]))
    A('v_max3_f32 v%d, v%d, v%d, v%d' % (69, sv[3], sv[4], sv[5]))
    A('v_max3_f32 v%d, v%d, v%d, v%d' % (68, 68, sv[6], sv[7]))
    A('v_max3_f32 v%d, v%d, v%d, v%d' % (69, 69, sv[8], sv[9]))
    A('v_max_f32 v%d, v68, v69' % mx)
    A('v_max_f32 v%d, v68, v69' % t)
    A('v_mov_b64 v[64:65], %s' % s(sOnes, 2))
    A('v_mov_b64 v[66:67], %s' % s(sOnes, 2))
    A('v_permlane16_swap_b32 v%d, v%d' % (mx, t))
    A('v_max_f32 v68, v%d, v%d' % (mx, t))
    A('v_max_f32 v69, v%d, v%d' % (mx, t))
    A('s_mov_b32 %s, %s' % (s(sT0), s(sMRd)))
    A('s_mov_b32 %s, %s' % (s(sMRd), s(sMWr)))
    A('v_permlane32_swap_b32 v68, v69')
    A('v_max_f32 v%d, v68, v69' % mx)
    A('v_mul_f32 v%d, %s, v%d' % (mx, s(sC), mx))
    for i in range(0, 10, 2):
        A('v_pk_fma_f32 %s, %s, %s, %s op_sel_hi:[1,1,0] neg_lo:[0,0,1] neg_hi:[0,0,1]' % (
            v(sv[i], 2), v(sv[i], 2), s(sC2, 2), v(mx, 2)))
    for x in sv:
        A('v_exp_f32 v%d, v%d' % (x, x))
    for i in range(4):
        A('v_cvt_pk_bf16_f32 v%d, v%d, v%d' % (P + i, sv[2 * i], sv[2 * i + 1]))
    A('v_cvt_pk_bf16_f32 v%d, v%d, v%d' % (PM, sv[8], sv[9]))
    stamp(3)
    O = [AQ[2], AQ[3]]
    ACC = [M[6], M[7], M[5], RB, RB + 4, M[8], M[4], AQ[2], AQ[3]]
    A('s_waitcnt vmcnt(5)')
    A('v_mfma_f32_16x16x32_bf16 v[68:71], v[64:67], %s, 0' % v(P, 4))
    z2(ACC[0])
    z2(ACC[0] + 2)
    A('v_mfma_f32_16x16x32_bf16 v[68:71], v[64:67], %s, v[68:71]' % v(PM, 4))
    A('v_mov_b32 v%d, v%d' % (PM + 3, PM))
    z2(ACC[1])
    A('v_mfma_f32_16x16x32_bf16 %s, %s, %s, 0' % (v(O[0], 4), v(VT[0], 4), v(P, 4)))
    z2(ACC[1] + 2)
    z2(ACC[5])
    A('v_mfma_f32_16x16x32_bf16 %s, %s, %s, 0' % (v(O[1], 4), v(VT[1], 4), v(P, 4)))
    z2(ACC[5] + 2)
    z2(ACC[3])
    A('v_mfma_f32_16x16x16_bf16 %s, %s, %s, %s' % (v(O[0], 4), v(VP, 2), v(PM, 2), v(O[0], 4)))
    A('v_rcp_f32 v68, v68')
    A('v_mfma_f32_16x16x16_bf16 %s, %s, %s, %s' % (v(O[1], 4), v(VP, 2), v(PM + 2, 2), v(O[1], 4)))
    fread(2)
    z2(ACC[3] + 2)
    z2(ACC[4])
    z2(ACC[4] + 2)
    z2(ACC[2])
    z2(ACC[2] + 2)
    A('s_mov_b64 exec, %s' % s(sQMASK, 2))
    for tt in range(2):
        for i in range(0, 4, 2):
            A('v_pk_mul_f32 %s, %s, v[68:69] op_sel_hi:[1,0]' % (v(O[tt] + i, 2), v(O[tt] + i, 2)))
    for i in range(4):
        A('v_cvt_pk_bf16_f32 v%d, v%d, v%d' % (P + i, O[0] + i, O[1] + i))
    A('ds_write_b128 %s, %s' % (v(vOW), v(P, 4)))
    A('s_mov_b64 exec, -1')
    for k in (7, 8):
        z2(ACC[k])
        z2(ACC[k] + 2)
    A('s_waitcnt lgkmcnt(0)')
    A('s_barrier')
    OA = [64, 68]
    A('ds_read_b128 %s, %s' % (v(OA[0], 4), v(vOR)))
    A('ds_read_b128 %s, %s offset:128' % (v(OA[1], 4), v(vOR)))
    A('buffer_load_dwordx4 %s, %s, %s offen sc1 lds' % (v(vL16), WS, s(sT1)))
    A('buffer_load_dwordx4 %s, %s, %s offen offset:1024 sc1 lds' % (v(vL16), WS, s(sT1)))
    z2(ACC[6])
    z2(ACC[6] + 2)
    A('s_add_u32 %s, %s, %d' % (s(sKVM), s(sKVM), 0 if noslow & 2 else NH * KVM_BLK))
    A('s_add_u32 %s, %s, 1' % (s(sStep), s(sStep)))
    A('s_mov_b32 %s, %s' % (s(sMWr), s(sMPrev)))
    A('s_mov_b32 %s, %s' % (s(sMPrev), s(sT0)))
    A('s_add_u32 %s, %s, 4096' % (s(sMRd1), s(sMRd)))
    A('s_add_u32 %s, %s, 8192' % (s(sMRd2), s(sMRd)))
    stamp(4)
    pending = ['OA0', 'OA1']

    def waitfor(tag):
        if tag in pending:
            k = pending.index(tag)
            rest = len(pending) - 1 - k
            A('s_waitcnt lgkmcnt(%d)' % rest)
            del pending[:k + 1]

    work = []
    lo = lambda ti: ACC[ti]
    hi = lambda ti: ACC[ti] + 1

    def fold(ti):
        acc = ACC[ti]
        work.append((ti, 'v_add_f32 v%d, v%d, v%d' % (acc, acc, acc + 1)))
        work.append((ti, 'v_add_f32 v%d, v%d, v%d' % (acc + 1, acc + 2, acc + 3)))
    fold(0)
    work.append((0, 'v_cvt_pk_bf16_f32 v%d, v%d, v%d' % (VP, lo(0), hi(0))))
    work.append((0, 'v_bfi_b32 v%d, 1, %s, v%d' % (VP, s(sTag), VP)))
    work.append((0, 'buffer_store_dword v%d, %s, %s, %s offen%s' % (VP, v(vPart8), WS, s(sPB), sc)))
    for half in range(2):
        b = 1 + 4 * half
        Q = ACC[half]
        for pr in range(2):
            fold(b + 2 * pr)
            fold(b + 2 * pr + 1)
            work.append((b + 2 * pr + 1, 'v_cvt_pk_bf16_f32 v%d, v%d, v%d' % (Q + pr, lo(b + 2 * pr), lo(b + 2 * pr + 1))))
            work.append((b + 2 * pr + 1, 'v_cvt_pk_bf16_f32 v%d, v%d, v%d' % (Q + 2 + pr, hi(b + 2 * pr), hi(b + 2 * pr + 1))))
            if pr == 0:
                work.append((b + 1, 'v_bfi_b32 v%d, 1, %s, v%d' % (Q, s(sTag), Q)))
        work.append((b + 3, 'buffer_store_dwordx4 %s, %s, %s, %s offen%s' % (v(Q, 4), v(vPartOff), WS, s(sPW1 if half else sPB), sc)))
    nv = opt.get('wo_nv', 2)

    def fill(done, n):
        k = 0
        while work and work[0][0] <= done and (k < n or work[0][1].startswith('buffer')):
            it = work.pop(0)[1]
            if it.startswith('buffer'):
                if k:
                    work.insert(0, (done, it))
                    break
                A(it)
            else:
                A(it)
                k += 1

    for ti in range(9):
        waitfor('OA0')
        smf(ACC[ti], OA[0], wfrag(f_wo(order[ti])))
        waitfor('OA1')
        waitfor('F%d' % ti)
        fill(ti - 2, nv)
        smf(ACC[ti], OA[1], v(F[ti % 3], 8))
        if ti + 3 < 9:
            fread(ti + 3)
            pending += ['F%d_lo' % (ti + 3), 'F%d' % (ti + 3)]
            fill(ti - 2, 1)
        else:
            fill(ti - 2 if ti < 8 else ti - 1, nv)
    ldsfrag(RA, KORD[1])
    while work:
        A(work.pop(0)[1])
    stamp(5)
    ldsfrag(RB, KORD[0])
    SEL, RD, TM = AQ[0], AQ[1], AQ[2]
    A('s_cmp_ge_u32 %s, 72' % s(sUnit))
    A('s_cbranch_scc1 %s' % L('nored'))
    A('v_bfe_u32 v%d, %s, %s, 1' % (TM, v(vL16), s(sSelBit)))
    A('v_lshlrev_b32 v%d, 4, v%d' % (TM, TM))
    A('v_mov_b32 v%d, 0x3f80' % (TM + 1))
    A('v_lshlrev_b32 v%d, v%d, v%d' % (TM, TM, TM + 1))
    for q in range(4):
        A('v_cndmask_b32 v%d, 0, v%d, %s' % (SEL + q, TM, s(sSEL + 2 * q, 2)))
    A('v_mov_b64 %s, -1' % v(VP, 2))

    def pload(st):
        for i in range(4):
            A('buffer_load_dwordx4 %s, %s, %s, %s offen offset:%d sc1' % (v(M[4 * st + i], 4), v(vL16), WS, s(sPR), 1024 * i))

    def pcheck(st, younger):
        R = M[4 * st:4 * st + 4]
        for i in range(4):
            A('s_waitcnt vmcnt(%d)' % (3 - i + younger))
            A('v_mfma_f32_16x16x32_bf16 %s, %s, %s, %s' % (v(RD, 4), v(SEL, 4), v(R[i], 4), '0' if i == 0 else v(RD, 4)))
            if i == 1:
                A('v_bitop3_b32 v%d, v%d, v%d, %s bitop3:0x7e' % (TM, R[0], R[1], s(sTag)))
        A('v_bitop3_b32 v%d, v%d, v%d, %s bitop3:0x7e' % (TM + 1, R[2], R[3], s(sTag)))
        A('v_bitop3_b32 v%d, v%d, v%d, 1 bitop3:0xa8' % (TM, TM, TM + 1))
        A('v_cmp_ne_u32 vcc, 0, v%d' % TM)

    if opt.get('stagger', False):
        A('s_waitcnt vmcnt(%d)' % opt.get('pre_poll_vm', 1))
        pload(0)
        A('s_waitcnt vmcnt(4)')
        for i in range(opt.get('stag_gap', 0)):
            A('s_nop 7')
        pload(1)
        A.label(L('rpoll'))
        pcheck(0, 4)
        A('s_cbranch_vccz %s' % L('rok'))
        pload(0)
        pcheck(1, 4)
        A('s_cbranch_vccnz %s' % L('rretry'))
    else:
        A('s_waitcnt vmcnt(%d)' % opt.get('pre_poll_vm', 0))
        pload(0)
        A.label(L('rpoll'))
        pcheck(0, 0)
        A('s_cbranch_vccnz %s' % L('rretry'))
    A.label(L('rok'))
    A('s_nop 3')
    for i in range(4):
        A('v_add_f32_dpp v%d, v%d, v%d row_ror:8 row_mask:0xf bank_mask:0xf' % (TM + i, RD + i, RD + i))
    A('v_cvt_pk_bf16_f32 v%d, v%d, v%d' % (M[8], TM, TM + 1))
    A('v_cvt_pk_bf16_f32 v%d, v%d, v%d' % (M[8] + 1, TM + 2, TM + 3))
    A('buffer_store_dwordx2 %s, %s, %s, %s offen%s' % (v(M[8], 2), v(vPub), WS, s(sMRd), sc))
    A('buffer_store_dwordx2 %s, %s, %s, %s offen%s' % (v(VP, 2), v(vPub), WS, s(sMPrev), sc))
    A.label(L('nored'))
    stamp(6)
    A('s_xor_b32 %s, %s, 1' % (s(sTag), s(sTag)))
    A('v_mov_b32 v%d, %s' % (M[8] + 2, s(sM0F)))
    A('s_waitcnt vmcnt(2)')
    A('ds_read_b64 %s, v%d' % (v(M[8] + 2, 2), M[8] + 2))
    if not opt.get('late_prep'):
        for i in range(48, 64, 2):
            z2(i)
    A('s_waitcnt lgkmcnt(0)')
    if flags:
        A('v_readfirstlane_b32 %s, v%d' % (s(sA1), M[8] + 2))
        A('v_readfirstlane_b32 %s, v%d' % (s(sT3), M[8] + 3))
        A('s_lshl_b32 %s, %s, 1' % (s(sA1), s(sA1)))
        A('s_lshl_b32 %s, %s, 1' % (s(sT3), s(sT3)))
        A('s_add_u32 %s, %s, 1' % (s(sT3), s(sT3)))
        A('s_min_u32 %s, %s, %s' % (s(sA1), s(sA1), s(sT3)))
    for i in range(opt.get('mem_gap', 0)):
        A('s_nop 7')
    A('s_waitcnt vmcnt(%d)' % opt.get('pre_mem_vm', 0))
    A('s_barrier')
    stamp(7)
    A('s_branch %s' % L('loop'))

    A.label(L('retry0'))
    if stamps:
        A('s_add_u32 %s, %s, 1' % (s(sST + 4 + 8), s(sST + 4 + 8)))
    A('s_sub_u32 %s, %s, 1' % (s(sSpin), s(sSpin)))
    A('s_cmp_gt_i32 %s, 0' % s(sSpin))
    A('s_cbranch_scc0 %s' % L('mok0'))
    for q in range(NFIRST):
        mload(q)
    A('s_branch %s' % L('mpoll'))
    for q in range(1, 9):
        A.label(L('retry%d' % q))
        if stamps:
            A('s_add_u32 %s, %s, 0x10000' % (s(sST + 4 + 8), s(sST + 4 + 8)))
        A('s_sub_u32 %s, %s, 1' % (s(sSpin), s(sSpin)))
        A('s_cmp_gt_i32 %s, 0' % s(sSpin))
        A('s_cbranch_scc0 %s' % L('mok%d' % q))
        mload(q)
        A('s_waitcnt vmcnt(0)')
        check(q)
        A('s_cbranch_vccnz %s' % L('retry%d' % q))
        A('s_branch %s' % L('mok%d' % q))
    A.label(L('rretry'))
    if stamps:
        A('s_add_u32 %s, %s, 1' % (s(sST + 4 + 9), s(sST + 4 + 9)))
    A('s_sub_u32 %s, %s, 1' % (s(sSpin), s(sSpin)))
    A('s_cmp_gt_i32 %s, 0' % s(sSpin))
    A('s_cbranch_scc0 %s' % L('rok'))
    pload(1 if opt.get('stagger', False) else 0)
    A('s_branch %s' % L('rpoll'))
    if flags:
        A.label(L('kvwait'))
        wait_kv(A, VP + 1)
        A('s_branch %s' % L('kvok'))

    A.label(L('done'))
    A('s_waitcnt vmcnt(0)')
    A('s_barrier')
    A('v_mov_b32 v%d, %d' % (VP, NSEG))
    A('s_mov_b64 exec, 1')
    A('buffer_store_dword v%d, off, %s, %s sc1' % (VP, WS, s(sFLAGO)))
    if stamps:
        A('s_memrealtime %s' % s(sST + 2, 2))
        A('s_waitcnt lgkmcnt(0)')
        A('s_sub_u32 %s, %s, %s' % (s(sST + 4 + 11), s(sST + 2), s(sST + 4 + 11)))
        A('s_lshl_b32 %s, %s, 2' % (s(sT0), s(sH)))
        A('s_add_u32 %s, %s, s4' % (s(sT0), s(sT0)))
        A('s_lshl_b32 %s, %s, 6' % (s(sT0), s(sT0)))
        A('s_add_u32 %s, %s, 0x%x' % (s(sT0), s(sT0), STAMP_OFF))
        A('v_mov_b32 v20, %s' % s(sST + 4 + 10))
        A('v_mov_b32 v21, %s' % s(sST + 4 + 11))
        A('buffer_atomic_umax v20, off, %s, 0 offset:32' % s(SRD_DBG, 4))
        A('buffer_atomic_umax v21, off, %s, 0 offset:36' % s(SRD_DBG, 4))
        for i in range(12):
            A('v_mov_b32 v20, %s' % s(sST + 4 + i))
            A('buffer_store_dword v20, off, %s, %s offset:%d' % (WS, s(sT0), 4 * i))
            A('s_nop 1')
    A('s_waitcnt vmcnt(0)')
    A('s_endpgm')
```

```python
import math
from asmlib import v, a, s
from layout import *
from role_r import Stream, srd, f2u, SRD_WS, SRD_DBG, SRD_A, SRD_B, SRD_C

WS = s(SRD_WS, 4)
sID, sItem, sSrc, sDst, sFlag, sSpin, sPLO, sPHI = range(28, 36)
sT0, sT1, sT2, sT3 = 36, 37, 38, 39
sBuf, sNeed, sFl2, sSrc2, sC, sHI = 40, 41, 42, 43, 44, 45
sMASK = 46
XBUF = 36864


def wf4(f):
    return ('a', 4 * f) if f < 64 else ('v', 80 + 4 * (f - 64))


def rg(t, n=1, off=0):
    return a(t[1] + off, n) if t[0] == 'a' else v(t[1] + off, n)


def put(A, dst, src):
    A('%s %s, v%d' % ('v_accvgpr_write_b32' if dst[0] == 'a' else 'v_mov_b32', dst, src))


def lane_consts(A):
    A('v_and_b32 v20, 63, v0')
    A('v_and_b32 v21, 15, v20')
    A('v_lshrrev_b32 v22, 4, v20')
    A('v_lshlrev_b32 v1, 4, v20')
    A('s_mov_b32 %s, 0x05040100' % s(sPLO))
    A('s_mov_b32 %s, 0x07060302' % s(sPHI))
    A('s_mov_b32 %s, 0xffff0000' % s(sHI))
    A('s_mov_b32 %s, %d' % (s(sSpin), 400000))


def stage_consts(A, vsrc, vxa0, vxa1):
    A('v_lshrrev_b32 v23, 3, v20')
    A('s_lshl_b32 %s, s4, 3' % s(sT0))
    A('v_add_u32 v23, %s, v23' % s(sT0))
    A('v_bfe_u32 v24, v23, 1, 3')
    A('v_and_b32 v25, 7, v20')
    A('v_xor_b32 v24, v24, v25')
    A('v_mul_u32_u24 v23, 1152, v23')
    A('v_lshl_add_u32 v%d, v24, 4, v23' % vsrc)
    A('v_lshrrev_b32 v23, 3, v21')
    A('v_lshlrev_b32 v23, 10, v23')
    A('v_and_b32 v24, 7, v21')
    A('v_lshl_add_u32 v23, v24, 7, v23')
    A('v_bfe_u32 v24, v21, 1, 3')
    A('v_xor_b32 v24, v24, v22')
    A('v_lshl_add_u32 v%d, v24, 4, v23' % vxa0)
    A('v_xor_b32 v%d, 64, v%d' % (vxa1, vxa0))


def stage_issue(A, vsrc, ssrc, sbuf):
    A('s_lshl_b32 %s, s4, 10' % s(sT0))
    A('s_add_u32 m0, %s, %s' % (s(sT0), s(sbuf)))
    for cb in range(9):
        if cb:
            A('s_add_u32 m0, m0, %d' % (4096 - 128))
        A('buffer_load_dwordx4 v%d, %s, %s offen offset:%d sc1 lds' % (vsrc, WS, s(ssrc), 128 * cb))


def poll(A, sflagoff, nlanes, sneed, vt, enable=True, first=None, sleep=2, wide=False):
    if not enable:
        if first:
            A('s_waitcnt vmcnt(0)')
            first()
        return
    l0, l1 = A.newlabel('poll'), A.newlabel('pollok')
    m = (1 << nlanes) - 1

    def setexec():
        A('s_mov_b32 exec_lo, 0x%x' % (m & 0xffffffff))
        A('s_mov_b32 exec_hi, 0x%x' % (m >> 32))
    def ld():
        if wide:
            A('buffer_load_dwordx4 %s, v%d, %s, %s offen sc1' % (v(vt, 4), vt + 4, WS, s(sflagoff)))
        else:
            A('buffer_load_dword v%d, v%d, %s, %s offen sc1' % (vt, vt + 1, WS, s(sflagoff)))
    A('v_lshlrev_b32 v%d, 3, v1' % (vt + (4 if wide else 1)))
    setexec()
    if first:
        l2 = A.newlabel('pollchk')
        ld()
        A('s_mov_b64 exec, -1')
        A('s_waitcnt vmcnt(0)')
        first()
        setexec()
        A('s_branch %s' % l2)
    A.label(l0)
    ld()
    A('s_waitcnt vmcnt(0)')
    if first:
        A.label(l2)
    if wide:
        A('v_min3_u32 v%d, v%d, v%d, v%d' % (vt, vt, vt + 1, vt + 2))
        A('v_min_u32 v%d, v%d, v%d' % (vt, vt, vt + 3))
    A('v_cmp_gt_u32 vcc, %s, v%d' % (s(sneed), vt))
    A('s_cbranch_vccz %s' % l1)
    A('s_sleep %d' % sleep)
    A('s_sub_u32 %s, %s, 1' % (s(sSpin), s(sSpin)))
    A('s_cmp_gt_i32 %s, 0' % s(sSpin))
    A('s_cbranch_scc1 %s' % l0)
    A.label(l1)
    A('s_mov_b64 exec, -1')


def signal(A, sflagoff, sval, vt):
    A('s_waitcnt vmcnt(0)')
    A('s_barrier')
    l = A.newlabel('nosig')
    A('s_cmp_lg_u32 s4, 0')
    A('s_cbranch_scc1 %s' % l)
    A('v_mov_b32 v%d, %s' % (vt, s(sval)))
    A('s_mov_b64 exec, 1')
    A('buffer_store_dword v%d, off, %s, %s sc1' % (vt, WS, s(sflagoff)))
    A('s_mov_b64 exec, -1')
    A.label(l)


def wave_signal(A, sflagoff, sval, vt):
    A('v_mov_b32 v%d, %s' % (vt, s(sval)))
    A('s_mov_b64 exec, 1')
    A('buffer_store_dword v%d, off, %s, %s sc1' % (vt, WS, s(sflagoff)))
    A('s_mov_b64 exec, -1')


def role_end(A, opt, which):
    if opt.get('stamps'):
        A('s_memrealtime s[98:99]')
        A('s_lshl_b32 %s, s3, 4' % s(sT0))
        A('s_add_u32 %s, %s, 0x%x' % (s(sT0), s(sT0), STAMP_OFF + 0x4000))
        A('s_waitcnt lgkmcnt(0)')
        A('v_mov_b32 v8, s100')
        A('v_mov_b32 v9, s98')
        A('v_mov_b32 v10, s96')
        A('v_mov_b32 v11, s97')
        A('s_mov_b64 exec, 1')
        A('buffer_store_dwordx4 v[8:11], off, %s, %s' % (WS, s(sT0)))
        A('v_sub_u32 v12, v9, v8')
        A('v_sub_u32 v13, v10, v8')
        A('buffer_atomic_umax v12, off, %s, 0 offset:%d' % (s(SRD_DBG, 4), 40 + 4 * which))
        if which < 2:
            A('buffer_atomic_umax v13, off, %s, 0 offset:%d' % (s(SRD_DBG, 4), 56 + 4 * which))
        A('s_lshl_b32 %s, s3, 2' % s(sT0))
        A('s_add_u32 %s, %s, s4' % (s(sT0), s(sT0)))
        A('s_lshl_b32 %s, %s, 6' % (s(sT0), s(sT0)))
        A('s_add_u32 %s, %s, 0x%x' % (s(sT0), s(sT0), STAMP2_OFF))
        for i in range(16):
            A('v_mov_b32 v%d, s%d' % (12 + i, 80 + i))
        for i in range(4):
            A('buffer_store_dwordx4 %s, off, %s, %s offset:%d' % (v(12 + 4 * i, 4), WS, s(sT0), 16 * i))
    A('s_waitcnt vmcnt(0)')
    A('s_endpgm')


def lap(A, opt, i):
    if opt.get('stamps'):
        A('s_memrealtime s[98:99]')
        A('s_waitcnt lgkmcnt(0)')
        A('s_sub_u32 s99, s98, s97')
        A('s_add_u32 s%d, s%d, s99' % (80 + i, 80 + i))
        A('s_mov_b32 s97, s98')
        A('s_mov_b32 s%d, s98' % (88 + i))


def mark(A, opt, reg):
    if opt.get('stamps'):
        A('s_memrealtime s[98:99]')
        A('s_waitcnt lgkmcnt(0)')
        A('s_mov_b32 s%d, s98' % reg)
        A('s_mov_b32 s97, s98')
        for i in range(8):
            A('s_mov_b32 s%d, 0' % (80 + i))


def mfma(A, d, x, y, c):
    A('v_mfma_f32_16x16x32_bf16 %s, %s, %s, %s' % (d, x, y, c))


def load_cols2(A, st, srdreg, voff, stride, frag, nks, raw, nt):
    def issue(ks):
        for j in range(8):
            A('s_mov_b32 %s, %d' % (s(sT0), (32 * ks + j) * stride))
            A('buffer_load_dword v%d, v%d, %s, %s offen%s' % (raw(ks) + j, voff, s(srdreg, 4), s(sT0), nt))

    def consume(ks):
        for t in range(2):
            for r in range(4):
                d = frag(ks, t)
                if d[0] == 'a':
                    tmp = 24 + 4 * t + r
                    A('v_perm_b32 v%d, v%d, v%d, %s' % (tmp, raw(ks) + 2 * r + 1, raw(ks) + 2 * r, s(sPHI if t else sPLO)))
                    put(A, rg(d, 1, r), tmp)
                else:
                    A('v_perm_b32 %s, v%d, v%d, %s' % (rg(d, 1, r), raw(ks) + 2 * r + 1, raw(ks) + 2 * r, s(sPHI if t else sPLO)))
    for ks in range(nks):
        st.add(8, lambda ks=ks: issue(ks), lambda ks=ks: consume(ks), range(raw(ks), raw(ks) + 8))


def load_cols4(A, st, srdreg, voff, stride, frag, nks, raw, nt):
    def issue(ks):
        for j in range(8):
            A('s_mov_b32 %s, %d' % (s(sT0), (32 * ks + j) * stride))
            A('buffer_load_dwordx2 %s, v%d, %s, %s offen%s' % (v(raw(ks) + 2 * j, 2), voff, s(srdreg, 4), s(sT0), nt))

    def consume(ks):
        for t in range(4):
            for r in range(4):
                d = frag(ks, t)
                lo, hi = raw(ks) + 4 * r + (t >> 1), raw(ks) + 4 * r + 2 + (t >> 1)
                sel = s(sPHI if t & 1 else sPLO)
                if d[0] == 'a':
                    tmp = 24 + 4 * (t & 1) + r
                    A('v_perm_b32 v%d, v%d, v%d, %s' % (tmp, hi, lo, sel))
                    put(A, rg(d, 1, r), tmp)
                else:
                    A('v_perm_b32 %s, v%d, v%d, %s' % (rg(d, 1, r), hi, lo, sel))
    for ks in range(nks):
        st.add(8, lambda ks=ks: issue(ks), lambda ks=ks: consume(ks), range(raw(ks), raw(ks) + 16))


def load_out(A, st, srdreg, voff16, voff2, frag, nks, raw, nt):
    def issue(ks):
        for h in range(2):
            A('s_mov_b32 %s, %d' % (s(sT0), (32 * ks + 4 * h) * ROWB))
            for j in range(4):
                A('buffer_load_dwordx4 %s, v%d, %s, %s offen offset:%d%s' % (
                    v(raw(ks) + 4 * (4 * h + j), 4), voff16, s(srdreg, 4), s(sT0), j * ROWB, nt))
            for j in range(4):
                A('buffer_load_ushort v%d, v%d, %s, %s offen offset:%d%s' % (
                    raw(ks) + 32 + 4 * h + j, voff2, s(srdreg, 4), s(sT0), j * ROWB, nt))

    def consume(ks):
        for j in range(9):
            for r in range(4):
                d = frag(ks, j)
                tmp = 24 + 4 * (j & 1) + r
                dst = 'v%d' % tmp if d[0] == 'a' else rg(d, 1, r)
                if j < 8:
                    A('v_perm_b32 %s, v%d, v%d, %s' % (dst, raw(ks) + 8 * r + 4 + (j >> 1), raw(ks) + 8 * r + (j >> 1),
                                                      s(sPHI if j & 1 else sPLO)))
                else:
                    A('v_lshl_or_b32 %s, v%d, 16, v%d' % (dst, raw(ks) + 32 + 2 * r + 1, raw(ks) + 32 + 2 * r))
                if d[0] == 'a':
                    put(A, rg(d, 1, r), tmp)
    for ks in range(nks):
        st.add(16, lambda ks=ks: issue(ks), lambda ks=ks: consume(ks), range(raw(ks), raw(ks) + 40))


def out_consts(A, srow0, v16, v2):
    A('v_lshlrev_b32 v23, 3, v22')
    A('v_add_u32 v23, %s, v23' % s(srow0))
    A('s_mov_b32 %s, 1152' % s(sT1))
    A('v_mul_lo_u32 v23, v23, %s' % s(sT1))
    A('s_lshl_b32 %s, s4, 8' % s(sT0))
    A('v_lshl_add_u32 v24, v21, 4, v23')
    A('v_add_u32 v%d, %s, v24' % (v16, s(sT0)))
    A('s_lshl_b32 %s, s4, 5' % s(sT0))
    A('s_add_u32 %s, %s, 1024' % (s(sT0), s(sT0)))
    A('v_lshl_add_u32 v24, v21, 1, v23')
    A('v_add_u32 v%d, %s, v24' % (v2, s(sT0)))


def pstore_consts(A, tokstride, vp, vp8):
    A('s_mov_b32 %s, %d' % (s(sT1), 4 * tokstride))
    A('v_mul_lo_u32 v23, v22, %s' % s(sT1))
    A('v_lshl_add_u32 v23, v21, 4, v23')
    A('s_lshl_b32 %s, s4, 8' % s(sT0))
    A('v_add_u32 v%d, %s, v23' % (vp, s(sT0)))
    A('s_mov_b32 %s, %d' % (s(sT1), tokstride))
    A('v_mul_lo_u32 v23, v21, %s' % s(sT1))
    A('v_lshl_add_u32 v23, v22, 3, v23')
    A('s_lshl_b32 %s, s4, 5' % s(sT0))
    A('s_add_u32 %s, %s, 1024' % (s(sT0), s(sT0)))
    A('v_add_u32 v%d, %s, v23' % (vp8, s(sT0)))


def out_gemm(A, nks, frag, vla, ldsoff, XF, ACC, OUT, vp, vp8, sdst, tokstride):
    for aa in range(2):
        for ks in range(nks):
            A('ds_read_b128 %s, v%d offset:%d' % (v(XF + 4 * ks, 4), vla, ldsoff + (2 * ks + aa) * 1024))
        for ks in range(nks):
            A('s_waitcnt lgkmcnt(%d)' % (nks - 1 - ks))
            for j in range(9):
                c = '0' if ks == 0 else v(ACC + 4 * j, 4)
                if j < 8:
                    mfma(A, v(ACC + 4 * j, 4), v(XF + 4 * ks, 4), rg(frag(ks, j), 4), c)
                else:
                    mfma(A, v(ACC + 4 * j, 4), rg(frag(ks, j), 4), v(XF + 4 * ks, 4), c)
        for i in range(4):
            o = OUT + 4 * (i & 1)
            for q in range(4):
                A('v_cvt_pk_bf16_f32 v%d, v%d, v%d' % (o + q, ACC + 8 * q + i, ACC + 8 * q + 4 + i))
            A('s_add_u32 %s, %s, %d' % (s(sT0), s(sdst), (16 * aa + i) * tokstride))
            A('buffer_store_dwordx4 %s, v%d, %s, %s offen sc1' % (v(o, 4), vp, WS, s(sT0)))
        A('v_cvt_pk_bf16_f32 v%d, v%d, v%d' % (ACC + 32, ACC + 32, ACC + 33))
        A('v_cvt_pk_bf16_f32 v%d, v%d, v%d' % (ACC + 33, ACC + 34, ACC + 35))
        A('s_add_u32 %s, %s, %d' % (s(sT0), s(sdst), 16 * aa * tokstride))
        A('buffer_store_dwordx2 %s, v%d, %s, %s offen sc1' % (v(ACC + 32, 2), vp8, WS, s(sT0)))


def out_gemm2(A, nks, frag, vla, ldsoff, XF, ACC0, ACC1, OUT, vp, vp8, sdst, tokstride, fillers):
    def rd(ks, aa):
        A('ds_read_b128 %s, v%d offset:%d' % (v(XF + 4 * ks, 4), vla, ldsoff + (2 * ks + aa) * 1024))

    def epilogue(aa, ACC):
        out = []
        for i in range(4):
            o = OUT + 4 * (i & 1)
            for q in range(0, 4, 2):
                out.append(lambda o=o, q=q, i=i: (
                    A('v_cvt_pk_bf16_f32 v%d, v%d, v%d' % (o + q, ACC + 8 * q + i, ACC + 8 * q + 4 + i)),
                    A('v_cvt_pk_bf16_f32 v%d, v%d, v%d' % (o + q + 1, ACC + 8 * q + 8 + i, ACC + 8 * q + 12 + i))))
            out.append(lambda o=o, i=i: (
                A('s_add_u32 %s, %s, %d' % (s(sT0), s(sdst), (16 * aa + i) * tokstride)),
                A('buffer_store_dwordx4 %s, v%d, %s, %s offen sc1' % (v(o, 4), vp, WS, s(sT0)))))
        out.append(lambda: (A('v_cvt_pk_bf16_f32 v%d, v%d, v%d' % (ACC + 32, ACC + 32, ACC + 33)),
                            A('v_cvt_pk_bf16_f32 v%d, v%d, v%d' % (ACC + 33, ACC + 34, ACC + 35))))
        out.append(lambda: (A('s_add_u32 %s, %s, %d' % (s(sT0), s(sdst), 16 * aa * tokstride)),
                            A('buffer_store_dwordx2 %s, v%d, %s, %s offen sc1' % (v(ACC + 32, 2), vp8, WS, s(sT0)))))
        return out
    for ks in range(nks):
        rd(ks, 0)
    for aa, ACC in enumerate((ACC0, ACC1)):
        fl = list(fillers) if aa == 0 else epilogue(0, ACC0)
        every = max(1, (9 * nks - 4) // max(1, len(fl)))
        cnt = 0
        for ks in range(nks):
            A('s_waitcnt lgkmcnt(%d)' % (nks - 1 if aa == 0 else nks - 1 - ks))
            for j in range(9):
                c = '0' if ks == 0 else v(ACC + 4 * j, 4)
                if j < 8:
                    mfma(A, v(ACC + 4 * j, 4), v(XF + 4 * ks, 4), rg(frag(ks, j), 4), c)
                else:
                    mfma(A, v(ACC + 4 * j, 4), rg(frag(ks, j), 4), v(XF + 4 * ks, 4), c)
                cnt += 1
                if fl and cnt >= 3 and cnt % every == 0:
                    fl.pop(0)()
            if aa == 0:
                rd(ks, 1)
        for f in fl:
            f()
    for f in epilogue(1, ACC1):
        f()


def xloop(A, vxa0, vxa1, XF, body, hook=None):
    def rd(ks):
        b = XF + 8 * (ks & 1)
        for aa in range(2):
            A('ds_read_b128 %s, v%d offset:%d' % (v(b + 4 * aa, 4), vxa1 if ks & 1 else vxa0, (ks >> 1) * 4096 + aa * 2048))
    rd(0)
    rd(1)
    for ks in range(18):
        A('s_waitcnt lgkmcnt(%d)' % (2 if ks < 17 else 0))
        b = XF + 8 * (ks & 1)
        body(ks, b, b + 4)
        if ks + 2 < 18:
            rd(ks + 2)
        if hook:
            hook(ks)


def gen_A1(A, opt):
    nt = ' nt' if opt.get('nt', True) else ''
    flags = opt.get('flags', True)
    A.label('A1_entry')
    vSrc, vXA0, vXA1, vQK = 2, 3, 4, 5
    lane_consts(A)
    stage_consts(A, vSrc, vXA0, vXA1)
    sH, sP = sFl2, sSrc2
    A('s_and_b32 %s, %s, 31' % (s(sH), s(sID)))
    A('s_lshr_b32 %s, %s, 5' % (s(sP), s(sID)))
    A('s_load_dwordx2 %s, s[0:1], %d' % (s(SRD_B, 2), K_WQ))
    A('s_load_dwordx2 %s, s[0:1], %d' % (s(sT2, 2), K_WK))
    A('s_mov_b32 %s, 0x%x' % (s(SRD_B + 2), 576 * 8192))
    A('s_mov_b32 %s, 0x20000' % s(SRD_B + 3))
    srd(A, SRD_C, K_WV, 576 * 8192)
    A('v_lshlrev_b32 v23, 16, v22')
    A('s_lshl_b32 %s, %s, 8' % (s(sT0), s(sH)))
    A('v_add_u32 v23, %s, v23' % s(sT0))
    A('s_and_b32 %s, s4, 1' % s(sT0))
    A('s_lshl_b32 %s, %s, 7' % (s(sT0), s(sT0)))
    A('v_lshl_add_u32 v24, v21, 3, v23')
    A('v_add_u32 v6, %s, v24' % s(sT0))
    A('s_lshl_b32 %s, s4, 6' % s(sT0))
    A('v_lshl_add_u32 v24, v21, 2, v23')
    A('v_add_u32 v7, %s, v24' % s(sT0))
    A('v_lshrrev_b32 v23, 1, v22')
    A('v_lshlrev_b32 v23, 11, v23')
    A('v_and_b32 v24, 1, v22')
    A('v_lshl_add_u32 v23, v24, 9, v23')
    A('v_lshl_add_u32 v23, v21, 4, v23')
    A('s_lshl_b32 %s, s4, 12' % s(sT0))
    A('v_add_u32 v%d, %s, v23' % (vQK, s(sT0)))
    A('s_waitcnt lgkmcnt(0)')
    A('s_cmp_lt_u32 s4, 2')
    A('s_cselect_b32 %s, %s, %s' % (s(SRD_B), s(SRD_B), s(sT2)))
    A('s_cselect_b32 %s, %s, %s' % (s(SRD_B + 1), s(SRD_B + 1), s(sT2 + 1)))
    fqk = lambda ks, t: wf4(4 * ks + t)
    fv = lambda ks, t: wf4(72 + 2 * ks + t)
    st = Stream(A, 60)
    load_cols4(A, st, SRD_B, 6, 8192, fqk, 18, lambda ks: 128 + 16 * (ks % 8), nt)
    load_cols2(A, st, SRD_C, 7, 8192, fv, 18, lambda ks: 32 + 8 * (ks % 6), nt)
    st.run()
    A('s_mov_b32 %s, 0' % s(sItem))
    A('s_mul_i32 %s, %s, %d' % (s(sSrc), s(sP), 32 * ROWB))
    A('s_add_u32 %s, %s, 0x%x' % (s(sSrc), s(sSrc), H1_OFF))
    A('s_lshl_b32 %s, %s, 5' % (s(sT0), s(sP)))
    A('s_add_u32 %s, %s, %s' % (s(sT0), s(sT0), s(sH)))
    A('s_mul_i32 %s, %s, %d' % (s(sDst), s(sT0), QKV_BLK))
    A('s_add_u32 %s, %s, 0x%x' % (s(sDst), s(sDst), QKV_OFF))
    A('s_lshl_b32 %s, %s, 7' % (s(sFlag), s(sH)))
    A('s_lshl_b32 %s, %s, 2' % (s(sT0), s(sP)))
    A('s_add_u32 %s, %s, %s' % (s(sFlag), s(sFlag), s(sT0)))
    A('s_add_u32 %s, %s, 0x%x' % (s(sFlag), s(sFlag), FLAG_OFF + F_A1))
    A('s_mov_b32 %s, 0' % s(sBuf))
    dbg_wait(A, D_RDY, NAUX, 8, sT0, sSpin)
    stage_issue(A, vSrc, sSrc, sBuf)
    A('s_waitcnt vmcnt(0)')
    A('s_barrier')
    XF, ACC = 8, 24
    mark(A, opt, 96)
    A.label('A1_loop')
    A('s_xor_b32 %s, %s, %d' % (s(sBuf), s(sBuf), XBUF))
    A('s_add_u32 %s, %s, %d' % (s(sSrc), s(sSrc), 64 * ROWB))
    A('s_cmp_lt_u32 %s, 31' % s(sItem))
    A('s_cselect_b32 %s, %s, 0x%x' % (s(sT1), s(sSrc), OOB))
    stage_issue(A, vSrc, sT1, sBuf)

    def body(ks, f0, f1):
        for aa, f in enumerate((f0, f1)):
            for t in range(4):
                d = v(ACC + 4 * (4 * aa + t), 4)
                mfma(A, d, rg(fqk(ks, t), 4), v(f, 4), '0' if ks == 0 else d)
            for t in range(2):
                d = v(ACC + 32 + 4 * (2 * t + aa), 4)
                mfma(A, d, v(f, 4), rg(fv(ks, t), 4), '0' if ks == 0 else d)
    xloop(A, vXA0, vXA1, XF, body)
    A('s_lshl_b32 %s, %s, 1' % (s(sT0), s(sBuf)))
    A('s_sub_u32 %s, %s, %d' % (s(sT0), s(sT0), XBUF))
    A('v_add_u32 v%d, %s, v%d' % (vXA0, s(sT0), vXA0))
    A('v_add_u32 v%d, %s, v%d' % (vXA1, s(sT0), vXA1))
    k = 0
    for aa in range(2):
        T = [ACC + 4 * (4 * aa + t) for t in range(4)]
        for c in range(2):
            o = 72 + 4 * (k & 1)
            k += 1
            for ii in range(2):
                i = 2 * c + ii
                A('v_cvt_pk_bf16_f32 v%d, v%d, v%d' % (o + 2 * ii, T[0] + i, T[1] + i))
                A('v_cvt_pk_bf16_f32 v%d, v%d, v%d' % (o + 2 * ii + 1, T[2] + i, T[3] + i))
            A('buffer_store_dwordx4 %s, v%d, %s, %s offen offset:%d sc1' % (v(o, 4), vQK, WS, s(sDst), aa * 1024 + c * 256))
    A('s_lshl_b32 %s, s4, 11' % s(sT0))
    A('s_add_u32 %s, %s, %s' % (s(sT0), s(sT0), s(sDst)))
    A('s_add_u32 %s, %s, 16384' % (s(sT0), s(sT0)))
    for t in range(2):
        o = 72 + 4 * (k & 1)
        k += 1
        b = ACC + 32 + 8 * t
        for q in range(4):
            A('v_cvt_pk_bf16_f32 v%d, v%d, v%d' % (o + q, b + 2 * q, b + 2 * q + 1))
        A('buffer_store_dwordx4 %s, v1, %s, %s offen offset:%d sc1' % (v(o, 4), WS, s(sT0), t * 1024))
    A('s_add_u32 %s, %s, 1' % (s(sItem), s(sItem)))
    A('s_add_u32 %s, %s, %d' % (s(sDst), s(sDst), 2 * NH * QKV_BLK))
    signal(A, sFlag, sItem, 8)
    A('s_cmp_lt_u32 %s, 32' % s(sItem))
    A('s_cbranch_scc1 A1_loop')
    role_end(A, opt, 1)


def round_pair(A, x, y, t):
    A('v_cvt_pk_bf16_f32 v%d, v%d, v%d' % (t, x, y))
    A('v_lshlrev_b32 v%d, 16, v%d' % (x, t))
    A('v_and_b32 v%d, %s, v%d' % (y, s(sHI), t))


def gen_A2(A, opt):
    nt = ' nt' if opt.get('nt', True) else ''
    flags = opt.get('flags', True)
    NS = opt.get('a2sets', 3)
    A.label('A2_entry')
    vP, vP8, vKM, vVM, vMask = 2, 3, 4, 5, 6
    TOK = 16 * ROWB
    lane_consts(A)
    sHP, sP = 48, 49
    A('s_and_b32 %s, %s, 15' % (s(sHP), s(sID)))
    A('s_lshr_b32 %s, %s, 4' % (s(sP), s(sID)))
    srd(A, SRD_A, K_WO, 4096 * ROWB)
    A('s_lshl_b32 %s, %s, 8' % (s(sT2), s(sHP)))
    out_consts(A, sT2, 8, 9)
    pstore_consts(A, TOK, vP, vP8)
    A('v_lshrrev_b32 v23, 2, v21')
    A('v_lshlrev_b32 v23, 8, v23')
    A('v_lshl_add_u32 v23, v22, 5, v23')
    A('v_and_b32 v24, 1, v21')
    A('v_lshl_add_u32 v%d, v24, 3, v23' % vKM)
    A('s_and_b32 %s, s4, 1' % s(sT0))
    A('s_lshl_b32 %s, %s, 4' % (s(sT0), s(sT0)))
    A('v_lshlrev_b32 v23, 2, v22')
    A('v_sub_u32 v23, v21, v23')
    A('v_add_u32 v%d, %s, v23' % (vMask, s(sT0)))
    A('s_waitcnt lgkmcnt(0)')
    fo = lambda ks, j: wf4(9 * ks + j)
    st = Stream(A, 60)
    load_out(A, st, SRD_A, 8, 9, fo, 8, lambda ks: 112 + 40 * (ks % 3), nt)
    st.run()
    CM = 112
    A('v_mov_b32 v23, 0xff800000')
    for ap in range(2):
        for i in range(4):
            A('v_cmp_gt_i32 vcc, %d, v%d' % (16 * ap + i, vMask))
            A('v_cndmask_b32 v%d, 0, v23, vcc' % (CM + 4 * ap + i))
    A('s_mov_b32 %s, 0x%x' % (s(sC), f2u(math.log2(math.e))))
    sScale = 50
    A('s_mov_b32 %s, 0x%x' % (s(sScale), f2u(128 ** -0.5)))
    A('s_mov_b32 %s, %s' % (s(sItem), s(sP)))
    A('s_lshr_b32 %s, s4, 1' % s(sT0))
    A('s_lshl_b32 %s, %s, 1' % (s(sT1), s(sHP)))
    A('s_add_u32 %s, %s, %s' % (s(sT1), s(sT1), s(sT0)))
    A('s_lshl_b32 %s, %s, 5' % (s(sT0), s(sP)))
    A('s_add_u32 %s, %s, %s' % (s(sT0), s(sT0), s(sT1)))
    A('s_mul_i32 %s, %s, %d' % (s(sSrc), s(sT0), QKV_BLK))
    A('s_add_u32 %s, %s, 0x%x' % (s(sSrc), s(sSrc), QKV_OFF))
    A('s_lshl_b32 %s, %s, 13' % (s(sSrc2), s(sT0)))
    A('s_add_u32 %s, %s, 0x%x' % (s(sSrc2), s(sSrc2), KVM_OFF))
    sFA1, sFR = 51, 52
    A('s_lshl_b32 %s, %s, 7' % (s(sFA1), s(sT1)))
    A('s_add_u32 %s, %s, 0x%x' % (s(sFA1), s(sFA1), FLAG_OFF + F_A1))
    A('s_lshl_b32 %s, %s, 7' % (s(sFR), s(sT1)))
    A('s_add_u32 %s, %s, 0x%x' % (s(sFR), s(sFR), FLAG_OFF + F_R))
    A('s_mul_i32 %s, %s, %d' % (s(sDst), s(sP), 32 * TOK))
    A('s_mul_i32 %s, %s, %d' % (s(sT0), s(sHP), ROWB))
    A('s_add_u32 %s, %s, %s' % (s(sDst), s(sDst), s(sT0)))
    A('s_add_u32 %s, %s, 0x%x' % (s(sDst), s(sDst), P2_OFF))
    sFlStep, sOne = 57, 58
    A('s_lshl_b32 %s, %s, 11' % (s(sFlag), s(sP)))
    A('s_lshl_b32 %s, %s, 7' % (s(sT0), s(sHP)))
    A('s_add_u32 %s, %s, %s' % (s(sFlag), s(sFlag), s(sT0)))
    A('s_add_u32 %s, %s, 0x%x' % (s(sFlag), s(sFlag), FLAG_OFF + F_A2 + OOB))
    A('s_mov_b32 %s, 0x%x' % (s(sFlStep), (-OOB) & 0xffffffff))
    A('s_mov_b32 %s, 1' % s(sOne))
    Q, K, V, KM, VM = 120, 136, 168, 200, 216
    S, P, O = 224, 236, 8
    XF = 200
    sA1seen, sQ0, sQ1, sK0 = 53, 54, 55, 56

    def pf_check():
        l0, l = A.newlabel('A2_a1'), A.newlabel('A2_have')
        if flags:
            A.label(l0)
            A('s_cmp_gt_u32 %s, %s' % (s(sA1seen), s(sNeed)))
            A('s_cbranch_scc1 %s' % l)
            A('buffer_load_dwordx2 v[244:245], off, %s, %s sc1' % (WS, s(sFA1)))
            A('s_waitcnt vmcnt(0)')
            A('v_readfirstlane_b32 %s, v244' % s(sA1seen))
            A('v_readfirstlane_b32 %s, v245' % s(sT0))
            A('s_lshl_b32 %s, %s, 1' % (s(sA1seen), s(sA1seen)))
            A('s_lshl_b32 %s, %s, 1' % (s(sT0), s(sT0)))
            A('s_add_u32 %s, %s, 1' % (s(sT0), s(sT0)))
            A('s_min_u32 %s, %s, %s' % (s(sA1seen), s(sA1seen), s(sT0)))
            A('s_sub_u32 %s, %s, 1' % (s(sSpin), s(sSpin)))
            A('s_cmp_gt_i32 %s, 0' % s(sSpin))
            A('s_cbranch_scc1 %s' % l0)
            A.label(l)
        A('s_and_b32 %s, s4, 1' % s(sQ0))
        A('s_lshl_b32 %s, %s, 10' % (s(sQ0), s(sQ0)))
        A('s_add_u32 %s, %s, %s' % (s(sQ0), s(sQ0), s(sSrc)))
        A('s_add_u32 %s, %s, 4096' % (s(sQ1), s(sQ0)))

    def pf_loads():
        out = []
        for m in range(4):
            out.append(lambda m=m: A('buffer_load_dwordx4 %s, v1, %s, %s offen offset:%d sc1' % (
                v(Q + 4 * m, 4), WS, s(sQ1 if m >= 2 else sQ0), 2048 * (m & 1))))
        for blk in range(4):
            for i in range(4):
                out.append(lambda blk=blk, i=i: (
                    A('s_add_u32 %s, %s, %d' % (s(sK0), s(sSrc), 8192 + 4096 * blk)) if i == 0 else None,
                    A('buffer_load_dwordx4 %s, v1, %s, %s offen offset:%d sc1' % (v(K + 16 * blk + 4 * i, 4), WS, s(sK0), 1024 * i))))
        return out

    def prefetch():
        pf_check()
        for f in pf_loads():
            f()
    A('s_mov_b32 %s, 0' % s(sA1seen))
    dbg_wait(A, D_RDY, NAUX, 244, sT0, sSpin)
    A('s_mov_b32 %s, %s' % (s(sNeed), s(sItem)))
    prefetch()
    A('s_waitcnt vmcnt(0)')
    mark(A, opt, 96)
    A.label('A2_loop')
    A('s_waitcnt vmcnt(10)')
    for m in range(4):
        for ap in range(2):
            d = v(S + 4 * ap, 4)
            mfma(A, d, v(K + 8 * m + 4 * ap, 4), v(Q + 4 * m, 4), v(CM + 4 * ap, 4) if m == 0 else d)
    A('s_add_u32 %s, %s, 1' % (s(sNeed), s(sItem)))
    lap(A, opt, 0)
    poll(A, sFR, 1, sNeed, 40, flags, first=lambda: (lap(A, opt, 1), signal(A, sFlag, sOne, 42)), sleep=1)
    lap(A, opt, 2)
    A('s_add_u32 %s, %s, 4096' % (s(sT0), s(sSrc2)))
    for m in range(4):
        for c in range(2):
            A('buffer_load_dwordx2 %s, v%d, %s, %s offen offset:%d sc1' % (
                v(KM + 4 * m + 2 * c, 2), vKM, WS, s(sT0), (m >> 1) * 2048 + (8 * (m & 1) + c) * 16))
    for w in range(4):
        A('buffer_load_dwordx2 %s, v1, %s, %s offen offset:%d sc1' % (
            v(VM + 2 * w, 2), WS, s(sT0 if w >= 2 else sSrc2), (w & 1) * 2048 + 1024))
    A('s_waitcnt vmcnt(4)')
    for m in range(4):
        d = v(S + 8, 4)
        mfma(A, d, v(KM + 4 * m, 4), v(Q + 4 * m, 4), '0' if m == 0 else d)
    lap(A, opt, 3)
    sv = [S + i for i in range(10)]
    for i in range(0, 10, 2):
        round_pair(A, sv[i], sv[i + 1], 40 + i // 2)
    for x in sv:
        A('v_mul_f32 v%d, %s, v%d' % (x, s(sScale), x))
    for i in range(0, 10, 2):
        round_pair(A, sv[i], sv[i + 1], 40 + i // 2)
    A('v_max3_f32 v40, v%d, v%d, v%d' % tuple(sv[0:3]))
    A('v_max3_f32 v41, v%d, v%d, v%d' % tuple(sv[3:6]))
    A('v_max3_f32 v40, v40, v%d, v%d' % tuple(sv[6:8]))
    A('v_max3_f32 v41, v41, v%d, v%d' % tuple(sv[8:10]))
    A('v_max_f32 v42, v40, v41')
    A('v_max_f32 v43, v40, v41')
    A('v_permlane16_swap_b32 v42, v43')
    A('v_max_f32 v40, v42, v43')
    A('v_max_f32 v41, v42, v43')
    A('v_permlane32_swap_b32 v40, v41')
    A('v_max_f32 v42, v40, v41')
    for x in sv:
        A('v_sub_f32 v%d, v%d, v42' % (x, x))
    for x in sv:
        A('v_mul_f32 v%d, %s, v%d' % (x, s(sC), x))
    for x in sv:
        A('v_exp_f32 v%d, v%d' % (x, x))
    A('v_add_f32 v40, v%d, v%d' % (sv[0], sv[1]))
    A('v_add_f32 v41, v%d, v%d' % (sv[2], sv[3]))
    for i in range(4, 10, 2):
        A('v_add_f32 v40, v40, v%d' % sv[i])
        A('v_add_f32 v41, v41, v%d' % sv[i + 1])
    A('v_add_f32 v42, v40, v41')
    A('v_add_f32 v43, v40, v41')
    A('v_permlane16_swap_b32 v42, v43')
    A('v_add_f32 v40, v42, v43')
    A('v_add_f32 v41, v42, v43')
    A('v_permlane32_swap_b32 v40, v41')
    A('v_add_f32 v42, v40, v41')
    A('v_rcp_f32 v42, v42')
    for x in sv:
        A('v_mul_f32 v%d, v%d, v42' % (x, x))
    for i in range(4):
        A('v_cvt_pk_bf16_f32 v%d, v%d, v%d' % (P + i, sv[2 * i], sv[2 * i + 1]))
    A('v_cvt_pk_bf16_f32 v%d, v%d, v%d' % (P + 4, sv[8], sv[9]))
    A('v_mov_b32 v%d, 0' % (P + 5))
    A('v_mov_b32 v%d, 0' % (P + 6))
    A('v_mov_b32 v%d, v%d' % (P + 7, P + 4))
    A('s_waitcnt vmcnt(0)')
    for tl in range(8):
        mfma(A, v(O + 4 * tl, 4), v(V + 4 * tl, 4), v(P, 4), '0')
    for tl in range(8):
        A('v_mfma_f32_16x16x16_bf16 %s, %s, %s, %s' % (v(O + 4 * tl, 4), v(VM + 2 * (tl >> 1), 2), v(P + 4 + 2 * (tl & 1), 2), v(O + 4 * tl, 4)))
    A('s_lshr_b32 %s, s4, 1' % s(sT0))
    A('s_lshl_b32 %s, %s, 13' % (s(sT0), s(sT0)))
    A('s_and_b32 %s, s4, 1' % s(sT1))
    A('s_lshl_b32 %s, %s, 10' % (s(sT1), s(sT1)))
    A('s_add_u32 %s, %s, %s' % (s(sT0), s(sT0), s(sT1)))
    A('v_add_u32 v40, %s, v1' % s(sT0))
    for w in range(4):
        o = 44 + 4 * w
        for i in range(4):
            A('v_cvt_pk_bf16_f32 v%d, v%d, v%d' % (o + i, O + 8 * w + i, O + 8 * w + 4 + i))
        A('ds_write_b128 v40, %s offset:%d' % (v(o, 4), 2048 * w))
    A('s_add_u32 %s, %s, %d' % (s(sItem), s(sItem), NS))
    A('s_add_u32 %s, %s, %d' % (s(sSrc), s(sSrc), NS * NH * QKV_BLK))
    A('s_add_u32 %s, %s, %d' % (s(sSrc2), s(sSrc2), NS * NH * KVM_BLK))
    A('s_min_u32 %s, %s, 63' % (s(sNeed), s(sItem)))
    A('s_cmp_lt_u32 %s, 64' % s(sItem))
    A('s_cselect_b32 %s, %s, 0x%x' % (s(sSrc), s(sSrc), OOB))
    pf_check()
    A('s_waitcnt lgkmcnt(0)')
    A('s_barrier')
    lap(A, opt, 4)
    out_gemm2(A, 8, fo, 1, 0, XF, 8, 44, 248, vP, vP8, sDst, TOK, pf_loads())
    lap(A, opt, 5)
    A('s_add_u32 %s, %s, %d' % (s(sDst), s(sDst), NS * 32 * TOK))
    A('s_add_u32 %s, %s, %s' % (s(sFlag), s(sFlag), s(sFlStep)))
    A('s_mov_b32 %s, %d' % (s(sFlStep), 2048 * NS))
    A('s_cmp_lt_u32 %s, 64' % s(sItem))
    A('s_cbranch_scc1 A2_loop')
    signal(A, sFlag, sOne, 42)
    role_end(A, opt, 2)


def gen_DE(A, opt):
    nt = ' nt' if opt.get('nt', True) else ''
    flags = opt.get('flags', True)
    A.label('DE_entry')
    vSrc, vXA0, vXA1, vP, vP8, vHW = 2, 3, 4, 5, 6, 7
    TOK = 36 * ROWB
    L_H = 0
    L_XB = 8192
    lane_consts(A)
    stage_consts(A, vSrc, vXA0, vXA1)
    sF, sP = 48, 49
    A('s_cmp_ge_u32 %s, 36' % s(sID))
    A('s_cselect_b32 %s, 1, 0' % s(sP))
    A('s_mul_i32 %s, %s, 36' % (s(sT0), s(sP)))
    A('s_sub_u32 %s, %s, %s' % (s(sF), s(sID), s(sT0)))
    srd(A, SRD_A, K_WD, 4608 * ROWB)
    srd(A, SRD_B, K_WG, 576 * 9216)
    srd(A, SRD_C, K_WU, 576 * 9216)
    A('s_lshl_b32 %s, %s, 7' % (s(sT2), s(sF)))
    out_consts(A, sT2, 8, 9)
    pstore_consts(A, TOK, vP, vP8)
    A('s_mov_b32 %s, %d' % (s(sT1), 8 * 9216))
    A('v_mul_lo_u32 v23, v22, %s' % s(sT1))
    A('v_lshl_add_u32 v23, v21, 2, v23')
    A('s_lshl_b32 %s, %s, 8' % (s(sT0), s(sF)))
    A('s_lshl_b32 %s, s4, 6' % s(sT1))
    A('s_add_u32 %s, %s, %s' % (s(sT0), s(sT0), s(sT1)))
    A('v_add_u32 v10, %s, v23' % s(sT0))
    A('s_lshl_b32 %s, s4, 11' % s(sT0))
    A('s_add_u32 %s, %s, %d' % (s(sT0), s(sT0), L_H))
    A('v_add_u32 v%d, %s, v1' % (vHW, s(sT0)))
    A('s_waitcnt lgkmcnt(0)')
    fd = lambda ks, j: wf4(9 * ks + j)
    fg = lambda ks, t: wf4(36 + 2 * ks + t)
    fu = lambda ks, t: wf4(72 + 2 * ks + t)
    st = Stream(A, 60)
    load_out(A, st, SRD_A, 8, 9, fd, 4, lambda ks: 112 + 40 * (ks % 3), nt)
    load_cols2(A, st, SRD_B, 10, 9216, fg, 18, lambda ks: 32 + 8 * (ks % 6), nt)
    load_cols2(A, st, SRD_C, 10, 9216, fu, 18, lambda ks: 32 + 8 * (ks % 6), nt)
    st.run()
    A('s_mov_b32 %s, 0' % s(sItem))
    A('s_mul_i32 %s, %s, %d' % (s(sSrc), s(sP), 32 * ROWB))
    A('s_add_u32 %s, %s, 0x%x' % (s(sSrc), s(sSrc), H2_OFF))
    A('s_mul_i32 %s, %s, %d' % (s(sDst), s(sP), 32 * TOK))
    A('s_mul_i32 %s, %s, %d' % (s(sT0), s(sF), ROWB))
    A('s_add_u32 %s, %s, %s' % (s(sDst), s(sDst), s(sT0)))
    A('s_add_u32 %s, %s, 0x%x' % (s(sDst), s(sDst), P3_OFF))
    A('s_mul_i32 %s, %s, 4608' % (s(sFlag), s(sP)))
    A('s_lshl_b32 %s, %s, 7' % (s(sT0), s(sF)))
    A('s_add_u32 %s, %s, %s' % (s(sFlag), s(sFlag), s(sT0)))
    A('s_lshl_b32 %s, s4, 2' % s(sT0))
    A('s_add_u32 %s, %s, %s' % (s(sFlag), s(sFlag), s(sT0)))
    sFlStep = 57
    A('s_add_u32 %s, %s, 0x%x' % (s(sFlag), s(sFlag), FLAG_OFF + F_DE + OOB))
    A('s_mov_b32 %s, 0x%x' % (s(sFlStep), (-OOB) & 0xffffffff))
    A('s_lshl_b32 %s, %s, 12' % (s(sFl2), s(sP)))
    A('s_lshl_b32 %s, s4, 10' % s(sT0))
    A('s_add_u32 %s, %s, %s' % (s(sFl2), s(sFl2), s(sT0)))
    A('s_add_u32 %s, %s, 0x%x' % (s(sFl2), s(sFl2), FLAG_OFF + F_C))
    A('s_mov_b32 %s, %d' % (s(sBuf), L_XB))
    A('v_add_u32 v%d, %d, v%d' % (vXA0, L_XB, vXA0))
    A('v_add_u32 v%d, %d, v%d' % (vXA1, L_XB, vXA1))
    A('s_mov_b32 %s, 1' % s(sNeed))
    sHave = 50
    A('s_mov_b32 %s, 0' % s(sHave))
    XF, ACC = 8, 24
    dbg_wait(A, D_RDY, NAUX, 8, sT0, sSpin)
    mark(A, opt, 96)
    A.label('DE_loop')
    A('s_cmp_lg_u32 %s, 0' % s(sHave))
    A('s_cbranch_scc1 DE_have')
    poll(A, sFl2, 8, sNeed, 8, flags, first=lambda: wave_signal(A, sFlag, sNeed, 10), sleep=1)
    lap(A, opt, 0)
    stage_issue(A, vSrc, sSrc, sBuf)
    A('s_waitcnt vmcnt(0)')
    A.label('DE_have')
    A('s_waitcnt vmcnt(10)')
    lap(A, opt, 1)
    A('s_barrier')
    lap(A, opt, 2)
    A('s_add_u32 %s, %s, 8192' % (s(sFl2), s(sFl2)))
    A('s_add_u32 %s, %s, %d' % (s(sSrc), s(sSrc), 64 * ROWB))
    A('s_cmp_lt_u32 %s, 31' % s(sItem))
    A('s_cselect_b32 %s, %s, 0x%x' % (s(sT1), s(sFl2), OOB))
    A('v_lshlrev_b32 v73, 3, v1')
    A('v_and_b32 v73, 0x380, v73')
    A('buffer_load_dword v72, v73, %s, %s offen sc1' % (WS, s(sT1)))

    def hook(ks):
        if ks != opt.get('de_hook', 7):
            return
        lap(A, opt, 3)
        A('s_waitcnt vmcnt(0)')
        lap(A, opt, 4)
        A('s_cmp_lg_u32 %s, 0' % s(sHave))
        A('s_cselect_b32 %s, %s, 0x%x' % (s(sT1), s(sFlag), OOB))
        wave_signal(A, sT1, sNeed, 73)
        A('s_xor_b32 %s, %s, %d' % (s(sBuf), s(sBuf), L_XB ^ (L_XB + XBUF)))
        A('s_mov_b32 %s, 0' % s(sHave))
        if flags:
            A('v_cmp_gt_u32 vcc, %s, v72' % s(sNeed))
            A('s_cbranch_vccnz DE_nopf')
            A('s_mov_b32 %s, 1' % s(sHave))
            stage_issue(A, vSrc, sSrc, sBuf)
            A.label('DE_nopf')

    def body(ks, f0, f1):
        for aa, f in enumerate((f0, f1)):
            for mt, fr in enumerate((fg, fu)):
                for t in range(2):
                    d = v(ACC + 4 * (4 * aa + 2 * mt + t), 4)
                    mfma(A, d, rg(fr(ks, t), 4), v(f, 4), '0' if ks == 0 else d)
    xloop(A, vXA0, vXA1, XF, body, hook)
    A('s_lshl_b32 %s, %s, 1' % (s(sT0), s(sBuf)))
    A('s_sub_u32 %s, %s, %d' % (s(sT0), s(sT0), 2 * L_XB + XBUF))
    A('v_add_u32 v%d, %s, v%d' % (vXA0, s(sT0), vXA0))
    A('v_add_u32 v%d, %s, v%d' % (vXA1, s(sT0), vXA1))
    for aa in range(2):
        G0, G1, U0, U1 = [ACC + 16 * aa + 4 * q for q in range(4)]
        for i in range(4):
            round_pair(A, G0 + i, G1 + i, 56 + i)
            round_pair(A, U0 + i, U1 + i, 60 + i)
        for i in range(4):
            A('v_mul_f32 v%d, v%d, v%d' % (G0 + i, G0 + i, U0 + i))
            A('v_mul_f32 v%d, v%d, v%d' % (G1 + i, G1 + i, U1 + i))
        for i in range(4):
            A('v_cvt_pk_bf16_f32 v%d, v%d, v%d' % (64 + 4 * aa + i, G0 + i, G1 + i))
        A('ds_write_b128 v%d, %s offset:%d' % (vHW, v(64 + 4 * aa, 4), 1024 * aa))
    A('s_waitcnt lgkmcnt(0)')
    A('s_barrier')
    lap(A, opt, 5)
    out_gemm(A, 4, fd, 1, L_H, XF, ACC, 60, vP, vP8, sDst, TOK)
    lap(A, opt, 6)
    A('s_add_u32 %s, %s, 1' % (s(sItem), s(sItem)))
    A('s_add_u32 %s, %s, %d' % (s(sDst), s(sDst), 64 * TOK))
    A('s_add_u32 %s, %s, %s' % (s(sFlag), s(sFlag), s(sFlStep)))
    A('s_mov_b32 %s, 9216' % s(sFlStep))
    A('s_cmp_lt_u32 %s, 32' % s(sItem))
    A('s_cbranch_scc1 DE_loop')
    A('s_waitcnt vmcnt(0)')
    wave_signal(A, sFlag, sNeed, 10)
    role_end(A, opt, 3)


def wave_sum(A, x, t):
    for r in (8, 4, 2, 1):
        A('v_add_f32_dpp v%d, v%d, v%d row_ror:%d row_mask:0xf bank_mask:0xf' % (x, x, x, r))
    A('v_mov_b32 v%d, v%d' % (t, x))
    A('v_permlane16_swap_b32 v%d, v%d' % (x, t))
    A('v_add_f32 v%d, v%d, v%d' % (x, x, t))
    A('v_mov_b32 v%d, v%d' % (t, x))
    A('v_permlane32_swap_b32 v%d, v%d' % (x, t))
    A('v_add_f32 v%d, v%d, v%d' % (x, x, t))


def round1(A, x):
    A('v_cvt_pk_bf16_f32 v%d, v%d, v%d' % (x, x, x))
    A('v_lshlrev_b32 v%d, 16, v%d' % (x, x))


def ln_mod(A, X, n, SC, SH, OUTP, T, total, tailmask=None):
    acc, mean, tmp, pk, Dv = T, T + 1, T + 2, T + 3, T + 4
    A('v_add_f32 v%d, v%d, v%d' % (acc, X, X + 1))
    for i in range(2, n):
        A('v_add_f32 v%d, v%d, v%d' % (acc, acc, X + i))
    total(acc, 0)
    A('v_mul_f32 v%d, 0x%x, v%d' % (mean, f2u(1.0 / 576), acc))
    for i in range(n):
        A('v_sub_f32 v%d, v%d, v%d' % (Dv + i, X + i, mean))
    order = list(range(n - 4, n)) + list(range(n - 4))
    A('v_mul_f32 v%d, v%d, v%d' % (acc, Dv + order[0], Dv + order[0]))
    for k, i in enumerate(order[1:]):
        if k == 3 and tailmask is not None:
            A('v_cndmask_b32 v%d, 0, v%d, %s' % (acc, acc, s(tailmask, 2)))
        A('v_fmac_f32 v%d, v%d, v%d' % (acc, Dv + i, Dv + i))
    total(acc, 1)
    round1(A, mean)
    for i in range(n):
        A('v_sub_f32 v%d, v%d, v%d' % (Dv + i, X + i, mean))
    A('v_mul_f32 v%d, 0x%x, v%d' % (acc, f2u(1.0 / 576), acc))
    round1(A, acc)
    A('v_add_f32 v%d, 0x%x, v%d' % (acc, f2u(1e-5), acc))
    round1(A, acc)
    A('v_sqrt_f32 v%d, v%d' % (acc, acc))
    round1(A, acc)
    A('v_rcp_f32 v%d, v%d' % (acc, acc))
    for i in range(0, n, 2):
        round_pair(A, Dv + i, Dv + i + 1, pk)
    for i in range(n):
        A('v_mul_f32 v%d, v%d, v%d' % (Dv + i, Dv + i, acc))
    for i in range(0, n, 2):
        round_pair(A, Dv + i, Dv + i + 1, pk)
    for i in range(n):
        A('v_mul_f32 v%d, v%d, v%d' % (Dv + i, Dv + i, SC + i))
    for i in range(0, n, 2):
        round_pair(A, Dv + i, Dv + i + 1, pk)
    for i in range(n):
        A('v_add_f32 v%d, v%d, v%d' % (Dv + i, Dv + i, SH + i))
    for i in range(0, n, 2):
        A('v_cvt_pk_bf16_f32 v%d, v%d, v%d' % (OUTP + i // 2, Dv + i, Dv + i + 1))


NCF = 40


def gen_CF(A, opt):
    flags = opt.get('flags', True)
    ncf = opt.get('ncf', NCF)
    A.label('CF_entry')
    vA, vB, vC, vC2 = 2, 3, 4, 5
    SEL, GA, CB, SB, GB, X, XR, D, T, LD = 12, 28, 40, 52, 64, 76, 88, 96, 108, 128
    TOK2, TOK3 = 16 * ROWB, 36 * ROWB
    lane_consts(A)
    srd(A, SRD_A, K_X, 2048 * ROWB)
    srd(A, SRD_B, K_OUT, 2048 * ROWB)
    A('v_and_b32 v23, 1, v22')
    A('v_mul_u32_u24 v24, 1152, v23')
    A('v_lshrrev_b32 v25, 1, v22')
    A('v_lshl_add_u32 v25, v25, 4, v21')
    A('v_lshl_add_u32 v%d, v25, 4, v24' % vA)
    A('v_mov_b32 v24, 0x%x' % OOB)
    A('v_cmp_gt_u32 %s, 8, v25' % s(sMASK, 2))
    A('v_cndmask_b32 v%d, v24, v%d, %s' % (vB, vA, s(sMASK, 2)))
    A('v_lshlrev_b32 v25, 4, v25')
    A('v_lshl_add_u32 v%d, v23, 3, v25' % vC)
    A('v_cndmask_b32 v%d, v24, v%d, %s' % (vC2, vC, s(sMASK, 2)))
    A('v_and_b32 v23, 16, v1')
    A('v_mov_b32 v24, 0x3f80')
    A('v_lshlrev_b32 v23, v23, v24')
    A('v_lshrrev_b32 v24, 1, v21')
    A('v_lshrrev_b32 v25, 1, v22')
    A('v_lshlrev_b32 v25, 2, v25')
    A('v_xor_b32 v24, v24, v25')
    for q in range(4):
        A('v_cmp_eq_u32 vcc, %d, v24' % q)
        A('v_cndmask_b32 v%d, 0, v23, vcc' % (SEL + q))
    dbg_wait(A, D_RDY, NAUX, 23, sT0, sSpin)
    A('v_lshlrev_b32 v23, 1, v%d' % vC)
    A('v_lshlrev_b32 v24, 1, v%d' % vC2)
    for reg, idx in ((GA, 2), (SB, 3), (CB, 4), (GB, 5)):
        A('s_mov_b32 %s, 0x%x' % (s(sT0), MOD_OFF + idx * 2304))
        for c in range(3):
            A('buffer_load_dwordx4 %s, v%d, %s, %s offen offset:%d sc1' % (v(reg + 4 * c, 4), 24 if c == 2 else 23, WS, s(sT0), 1024 * c))
    A('s_waitcnt vmcnt(0) lgkmcnt(0)')
    for i in range(12):
        A('v_add_f32 v%d, 1.0, v%d' % (CB + i, CB + i))
    for i in range(0, 12, 2):
        round_pair(A, CB + i, CB + i + 1, 23)
    sRow, sSeg = 48, 49
    A('s_mul_i32 %s, s4, %d' % (s(sItem), ncf))
    A('s_add_u32 %s, %s, %s' % (s(sItem), s(sItem), s(sID)))
    sPrev, XO = 50, 16
    A('s_mov_b32 %s, -1' % s(sPrev))

    def reduce(np_, tok, off, sit):
        A('s_mul_i32 %s, %s, %d' % (s(sSrc), s(sit), tok))
        A('s_add_u32 %s, %s, 0x%x' % (s(sSrc), s(sSrc), off))
        n = 3 * np_ // 2
        regs = 30
        issued = 0

        def issue(k):
            L, c = divmod(k, 3)
            if c == 0 and L:
                A('s_add_u32 %s, %s, %d' % (s(sSrc), s(sSrc), 2 * ROWB))
            A('buffer_load_dwordx4 %s, v%d, %s, %s offen offset:%d sc1' % (
                v(LD + 4 * (k % regs), 4), vB if c == 2 else vA, WS, s(sSrc), 512 * c))
        while issued < min(n, regs):
            issue(issued)
            issued += 1
        for k in range(n):
            A('s_waitcnt vmcnt(%d)' % (issued - 1 - k))
            d = v(D + 4 * (k % 3), 4)
            mfma(A, d, v(SEL, 4), v(LD + 4 * (k % regs), 4), '0' if k < 3 else d)
            if issued < n:
                issue(issued)
                issued += 1
        for i in range(0, 12, 2):
            round_pair(A, D + i, D + i + 1, T)

    def gate_add(G, XR):
        for i in range(12):
            A('v_mul_f32 v%d, v%d, v%d' % (D + i, D + i, G + i))
        for i in range(0, 12, 2):
            round_pair(A, D + i, D + i + 1, T)
        for i in range(12):
            A('v_add_f32 v%d, v%d, v%d' % (X + i, X + i, D + i))
        for i in range(0, 12, 2):
            round_pair(A, X + i, X + i + 1, XR + i // 2)

    def total(reg, which):
        wave_sum(A, reg, 10)

    def unpack(src):
        for i in range(6):
            A('v_lshlrev_b32 v%d, 16, v%d' % (X + 2 * i, src + i))
            A('v_and_b32 v%d, %s, v%d' % (X + 2 * i + 1, s(sHI), src + i))

    def need_flag(sit, shift, base):
        A('s_lshr_b32 %s, %s, 5' % (s(sSeg), s(sit)))
        A('s_mul_i32 %s, %s, %d' % (s(sFl2), s(sSeg), shift))
        A('s_add_u32 %s, %s, 0x%x' % (s(sFl2), s(sFl2), FLAG_OFF + base))

    A('s_mov_b32 %s, 1' % s(sNeed))
    mark(A, opt, 96)
    A.label('CF_loop')
    A('s_cmp_ge_u32 %s, 2048' % s(sItem))
    A('s_cbranch_scc1 CF_skipC')
    A('s_mul_i32 %s, %s, %d' % (s(sRow), s(sItem), ROWB))
    for c in range(3):
        A('buffer_load_dwordx2 %s, v%d, %s, %s offen offset:%d' % (v(XR + 2 * c, 2), vC2 if c == 2 else vC, s(SRD_A, 4), s(sRow), 512 * c))
    need_flag(sItem, 2048, F_A2)
    A('s_waitcnt vmcnt(0)')
    unpack(XR)
    poll(A, sFl2, 16, sNeed, 10, flags, sleep=opt.get('cf_sleep', 4))
    lap(A, opt, 0)
    reduce(16, TOK2, P2_OFF, sItem)
    lap(A, opt, 1)
    gate_add(GA, XR)
    ln_mod(A, X, 12, CB, SB, D, T, total, tailmask=sMASK)
    A('s_add_u32 %s, %s, 0x%x' % (s(sT0), s(sRow), H2_OFF))
    for c in range(3):
        A('buffer_store_dwordx2 %s, v%d, %s, %s offen offset:%d sc1' % (v(D + 2 * c, 2), vC2 if c == 2 else vC, WS, s(sT0), 512 * c))
    A('s_lshl_b32 %s, %s, 7' % (s(sFlag), s(sItem)))
    A('s_add_u32 %s, %s, 0x%x' % (s(sFlag), s(sFlag), FLAG_OFF + F_C))
    A('v_mov_b32 v10, 1')
    lap(A, opt, 2)
    A('s_waitcnt vmcnt(0)')
    lap(A, opt, 3)
    A('s_mov_b64 exec, 1')
    A('buffer_store_dword v10, off, %s, %s sc1' % (WS, s(sFlag)))
    A('s_mov_b64 exec, -1')
    A.label('CF_skipC')
    A('s_cmp_ge_u32 %s, 2048' % s(sPrev))
    A('s_cbranch_scc1 CF_skipF')
    need_flag(sPrev, 4608, F_DE)
    unpack(XO)
    poll(A, sFl2, 36, sNeed, 6, flags, sleep=opt.get('cf_sleep', 4), wide=True)
    lap(A, opt, 4)
    reduce(36, TOK3, P3_OFF, sPrev)
    lap(A, opt, 5)
    gate_add(GB, XO)
    A('s_mul_i32 %s, %s, %d' % (s(sRow), s(sPrev), ROWB))
    for c in range(3):
        A('buffer_store_dwordx2 %s, v%d, %s, %s offen offset:%d' % (v(XO + 2 * c, 2), vC2 if c == 2 else vC, s(SRD_B, 4), s(sRow), 512 * c))
    lap(A, opt, 6)
    A.label('CF_skipF')
    for i in range(0, 6, 2):
        A('v_mov_b64 %s, %s' % (v(XO + i, 2), v(XR + i, 2)))
    A('s_mov_b32 %s, %s' % (s(sPrev), s(sItem)))
    A('s_add_u32 %s, %s, %d' % (s(sItem), s(sItem), 4 * ncf))
    A('s_cmp_lt_u32 %s, 2048' % s(sPrev))
    A('s_cbranch_scc1 CF_loop')
    role_end(A, opt, 0)


NAUX = 160
D_MOD, D_RDY = 128, 192


def dbg_arrive(A, off, vt):
    A('s_waitcnt vmcnt(0)')
    A('s_barrier')
    l = A.newlabel('noarr')
    A('s_cmp_lg_u32 s4, 0')
    A('s_cbranch_scc1 %s' % l)
    A('v_mov_b32 v%d, 1' % vt)
    A('s_mov_b64 exec, 1')
    A('buffer_atomic_add v%d, off, %s, 0 offset:%d' % (vt, s(SRD_DBG, 4), off))
    A('s_mov_b64 exec, -1')
    A.label(l)


def dbg_wait(A, off, n, vt, st, sspin, sleep=4):
    l0, l1 = A.newlabel('dw'), A.newlabel('dwok')
    A('s_cmp_lg_u32 s4, 0')
    A('s_cbranch_scc1 %s' % l1)
    A.label(l0)
    A('buffer_load_dword v%d, off, %s, 0 offset:%d sc1' % (vt, s(SRD_DBG, 4), off))
    A('s_waitcnt vmcnt(0)')
    A('v_readfirstlane_b32 %s, v%d' % (s(st), vt))
    A('s_cmp_ge_u32 %s, %d' % (s(st), n))
    A('s_cbranch_scc1 %s' % l1)
    A('s_sleep %d' % sleep)
    A('s_sub_u32 %s, %s, 1' % (s(sspin), s(sspin)))
    A('s_cmp_gt_i32 %s, 0' % s(sspin))
    A('s_cbranch_scc1 %s' % l0)
    A.label(l1)
    A('s_barrier')


def gen_aux(A, opt):
    A.label('AUX_entry')
    srd(A, SRD_A, K_WMOD, 576 * 6912)
    srd(A, SRD_B, K_C, 1152)
    srd(A, SRD_C, K_X, 2048 * ROWB)
    A('s_mov_b32 %s, 0xffff0000' % s(sHI))
    A('s_mov_b32 %s, 400000' % s(sSpin))
    A('v_lshrrev_b32 v1, 2, v0')
    A('v_and_b32 v2, 3, v0')
    A('v_mul_u32_u24 v3, 6912, v1')
    A('v_lshl_add_u32 v3, v2, 4, v3')
    A('s_lshl_b32 %s, %s, 6' % (s(sT1), s(sID)))
    A('s_cmp_lt_u32 %s, 108' % s(sID))
    A('s_cselect_b32 %s, %s, 0x%x' % (s(sT1), s(sT1), OOB))
    A('v_add_u32 v3, %s, v3' % s(sT1))
    A('v_lshlrev_b32 v4, 1, v1')
    A('v_and_b32 v5, 63, v0')
    A('v_mul_u32_u24 v6, 24, v5')
    A('v_lshlrev_b32 v7, 1, v6')
    A('v_mov_b32 v8, 0x%x' % OOB)
    A('v_cmp_gt_u32 %s, 48, v5' % s(sMASK, 2))
    A('v_cndmask_b32 v6, v8, v6, %s' % s(sMASK, 2))
    A('v_cndmask_b32 v7, v8, v7, %s' % s(sMASK, 2))
    A('s_lshl_b32 %s, %s, 2' % (s(sSrc), s(sID)))
    A('s_add_u32 %s, %s, s4' % (s(sSrc), s(sSrc)))
    A('s_mul_i32 %s, %s, %d' % (s(sSrc), s(sSrc), 4 * ROWB))
    A('s_cmp_lt_u32 %s, 128' % s(sID))
    A('s_cselect_b32 %s, %s, 0x%x' % (s(sSrc), s(sSrc), OOB))
    A('s_waitcnt lgkmcnt(0)')
    C0, W0, RAW = 10, 20, 100
    for i in range(9):
        A('buffer_load_ushort v%d, v4, %s, 0 offen offset:%d' % (C0 + i, s(SRD_B, 4), 128 * i))
    for i in range(9):
        A('s_mov_b32 %s, %d' % (s(sT0), 64 * 6912 * i))
        A('buffer_load_dwordx4 %s, v3, %s, %s offen nt' % (v(W0 + 4 * i, 4), s(SRD_A, 4), s(sT0)))
    for r in range(4):
        for q in range(3):
            A('buffer_load_dwordx2 %s, v6, %s, %s offen offset:%d' % (v(RAW + 6 * r + 2 * q, 2), s(SRD_C, 4), s(sSrc), ROWB * r + 8 * q))
    for i in range(4):
        A('v_mov_b32 v%d, 0' % (60 + i))
    A('v_lshlrev_b32 v9, 4, v0')
    A('s_mul_i32 %s, %s, 4352' % (s(sT0), s(sID)))
    A('s_add_u32 %s, %s, 0x%x' % (s(sT0), s(sT0), FLAG_OFF))
    A('buffer_store_dwordx4 v[60:63], v9, %s, %s offen sc1' % (WS, s(sT0)))
    A('v_cmp_gt_u32 vcc, 16, v0')
    A('v_cndmask_b32 v9, v8, v9, vcc')
    A('s_add_u32 %s, %s, 4096' % (s(sT0), s(sT0)))
    A('buffer_store_dwordx4 v[60:63], v9, %s, %s offen sc1' % (WS, s(sT0)))
    A('s_cmp_ge_u32 %s, 108' % s(sID))
    A('s_cbranch_scc1 AUX_nomod')
    A('s_waitcnt vmcnt(23)')
    for i in range(9):
        x = C0 + i
        A('v_lshlrev_b32 v%d, 16, v%d' % (x, x))
        A('v_mul_f32 v64, 0x%x, v%d' % (f2u(-math.log2(math.e)), x))
        A('v_exp_f32 v64, v64')
        A('v_add_f32 v64, 1.0, v64')
        A('v_rcp_f32 v64, v64')
        A('v_mul_f32 v%d, v%d, v64' % (x, x))
        round1(A, x)
    AC = 68
    for j in range(8):
        A('v_mov_b32 v%d, 0' % (AC + j))
    for i in range(9):
        A('s_waitcnt vmcnt(%d)' % (22 - i))
        for q in range(4):
            w = W0 + 4 * i + q
            A('v_lshlrev_b32 v64, 16, v%d' % w)
            A('v_and_b32 v65, %s, v%d' % (s(sHI), w))
            A('v_fmac_f32 v%d, v64, v%d' % (AC + 2 * q, C0 + i))
            A('v_fmac_f32 v%d, v65, v%d' % (AC + 2 * q + 1, C0 + i))
    A('v_mul_u32_u24 v9, 144, v1')
    A('v_lshl_add_u32 v9, v2, 5, v9')
    A('ds_write_b128 v9, %s' % v(AC, 4))
    A('ds_write_b128 v9, %s offset:16' % v(AC + 4, 4))
    A('s_waitcnt lgkmcnt(0)')
    A('s_barrier')
    A('s_cmp_lg_u32 s4, 0')
    A('s_cbranch_scc1 AUX_modst')
    A('v_lshrrev_b32 v9, 5, v0')
    A('v_mul_u32_u24 v9, %d, v9' % (32 * 144))
    A('v_and_b32 v64, 31, v0')
    A('v_lshl_add_u32 v9, v64, 2, v9')
    for r in range(32):
        A('ds_read_b32 v%d, v9 offset:%d' % (W0 + r, 144 * r))
    A('s_waitcnt lgkmcnt(0)')
    for stp in (16, 8, 4, 2, 1):
        for r in range(stp):
            A('v_add_f32 v%d, v%d, v%d' % (W0 + r, W0 + r, W0 + r + stp))
    A('v_mov_b32 v%d, v%d' % (W0 + 1, W0))
    A('v_permlane32_swap_b32 v%d, v%d' % (W0, W0 + 1))
    A('v_add_f32 v%d, v%d, v%d' % (W0, W0, W0 + 1))
    round1(A, W0)
    A('v_lshlrev_b32 v64, 2, v64')
    A('s_lshl_b32 %s, %s, 7' % (s(sT0), s(sID)))
    A('s_add_u32 %s, %s, 0x%x' % (s(sT0), s(sT0), MOD_OFF))
    A('s_mov_b32 exec_hi, 0')
    A('buffer_store_dword v%d, v64, %s, %s offen sc1' % (W0, WS, s(sT0)))
    A('v_mov_b32 v65, 1')
    A('s_waitcnt vmcnt(0)')
    A('s_mov_b64 exec, 1')
    A('buffer_atomic_add v65, off, %s, 0 offset:%d' % (s(SRD_DBG, 4), D_MOD))
    A('s_mov_b64 exec, -1')
    A.label('AUX_modst')
    A.label('AUX_nomod')
    dbg_wait(A, D_MOD, 108, 64, sT0, sSpin, 2)
    A('s_cmp_ge_u32 %s, 128' % s(sID))
    A('s_cbranch_scc1 AUX_noln')
    X, SC, SH, T = 10, 24, 36, 48
    A('s_mov_b32 %s, 0x%x' % (s(sT0), MOD_OFF))
    for q in range(3):
        A('buffer_load_dwordx4 %s, v7, %s, %s offen offset:%d sc1' % (v(SH + 4 * q, 4), WS, s(sT0), 16 * q))
        A('buffer_load_dwordx4 %s, v7, %s, %s offen offset:%d sc1' % (v(SC + 4 * q, 4), WS, s(sT0), 2304 + 16 * q))
    A('s_waitcnt vmcnt(0)')
    for i in range(12):
        A('v_add_f32 v%d, 1.0, v%d' % (SC + i, SC + i))
    for i in range(0, 12, 2):
        round_pair(A, SC + i, SC + i + 1, 9)

    def total(reg, which):
        A('v_cndmask_b32 v%d, 0, v%d, %s' % (reg, reg, s(sMASK, 2)))
        wave_sum(A, reg, 9)
    A('s_add_u32 %s, %s, 0x%x' % (s(sSrc), s(sSrc), H1_OFF))
    for r in range(4):
        for i in range(6):
            A('v_lshlrev_b32 v%d, 16, v%d' % (X + 2 * i, RAW + 6 * r + i))
            A('v_and_b32 v%d, %s, v%d' % (X + 2 * i + 1, s(sHI), RAW + 6 * r + i))
        ln_mod(A, X, 12, SC, SH, RAW + 6 * r, T, total)
        for q in range(3):
            A('buffer_store_dwordx2 %s, v6, %s, %s offen offset:%d sc1' % (v(RAW + 6 * r + 2 * q, 2), WS, s(sSrc), ROWB * r + 8 * q))
    A.label('AUX_noln')
    dbg_arrive(A, D_RDY, 9)
```

```python
NSEG = 64
NH = 32
D = 576
ROWB = 1152

WS_SIZE = 0x10000000
OOB = 0x20000000

PART_OFF = 0x0
PART_BUF = 72 * 4096
MEMR_OFF = 0x100000
MEMR_STRIDE = 0x4000
FLAG_OFF = 0x144000
STAMP_OFF = 0x130000
MOD_OFF = 0x140000
H1_OFF = 0x200000
H2_OFF = 0x500000
KVM_OFF = 0x800000
KVM_BLK = 8192
QKV_OFF = 0x1800000
QKV_BLK = 24576
P2_OFF = 0x4800000
P3_OFF = 0x7000000

K_X, K_MEM0, K_WQ, K_WK, K_WV, K_WO, K_SEG, K_BX, K_WG, K_WU, K_WD, K_C, K_WMOD, K_OUT, K_DBG, K_WS = \
    [8 * i for i in range(16)]

F_A1 = 0x000
F_R = 0x1000
F_A2 = 0x2000
F_C = 0x22000
F_DE = 0x62000
F_MOD = 0xAA000
F_H1 = 0xAE000
FLAG_BYTES = 0xB4000
STAMP2_OFF = 0x110000
```

```python
import math
from asmlib import v, a, s
from layout import *
from role_r import Stream, srd, f2u, SRD_WS, SRD_DBG, SRD_A, SRD_B, SRD_C

WS = s(SRD_WS, 4)
sID, sItem, sSrc, sDst, sFlag, sSpin, sPLO, sPHI = range(28, 36)
sT0, sT1, sT2, sT3 = 36, 37, 38, 39
sBuf, sNeed, sFl2, sSrc2, sC, sHI = 40, 41, 42, 43, 44, 45
sMASK = 46
XBUF = 36864


def wf4(f):
    return ('a', 4 * f) if f < 64 else ('v', 80 + 4 * (f - 64))


def rg(t, n=1, off=0):
    return a(t[1] + off, n) if t[0] == 'a' else v(t[1] + off, n)


def put(A, dst, src):
    A('%s %s, v%d' % ('v_accvgpr_write_b32' if dst[0] == 'a' else 'v_mov_b32', dst, src))


def lane_consts(A):
    A('v_and_b32 v20, 63, v0')
    A('v_and_b32 v21, 15, v20')
    A('v_lshrrev_b32 v22, 4, v20')
    A('v_lshlrev_b32 v1, 4, v20')
    A('s_mov_b32 %s, 0x05040100' % s(sPLO))
    A('s_mov_b32 %s, 0x07060302' % s(sPHI))
    A('s_mov_b32 %s, 0xffff0000' % s(sHI))
    A('s_mov_b32 %s, %d' % (s(sSpin), 400000))


def stage_consts(A, vsrc, vxa0, vxa1):
    A('v_lshrrev_b32 v23, 3, v20')
    A('s_lshl_b32 %s, s4, 3' % s(sT0))
    A('v_add_u32 v23, %s, v23' % s(sT0))
    A('v_bfe_u32 v24, v23, 1, 3')
    A('v_and_b32 v25, 7, v20')
    A('v_xor_b32 v24, v24, v25')
    A('v_mul_u32_u24 v23, 1152, v23')
    A('v_lshl_add_u32 v%d, v24, 4, v23' % vsrc)
    A('v_lshrrev_b32 v23, 3, v21')
    A('v_lshlrev_b32 v23, 10, v23')
    A('v_and_b32 v24, 7, v21')
    A('v_lshl_add_u32 v23, v24, 7, v23')
    A('v_bfe_u32 v24, v21, 1, 3')
    A('v_xor_b32 v24, v24, v22')
    A('v_lshl_add_u32 v%d, v24, 4, v23' % vxa0)
    A('v_xor_b32 v%d, 64, v%d' % (vxa1, vxa0))


def stage_issue(A, vsrc, ssrc, sbuf):
    A('s_lshl_b32 %s, s4, 10' % s(sT0))
    A('s_add_u32 m0, %s, %s' % (s(sT0), s(sbuf)))
    for cb in range(9):
        if cb:
            A('s_add_u32 m0, m0, %d' % (4096 - 128))
        A('buffer_load_dwordx4 v%d, %s, %s offen offset:%d sc1 lds' % (vsrc, WS, s(ssrc), 128 * cb))


def poll(A, sflagoff, nlanes, sneed, vt, enable=True, first=None, sleep=2, wide=False):
    if not enable:
        if first:
            A('s_waitcnt vmcnt(0)')
            first()
        return
    l0, l1 = A.newlabel('poll'), A.newlabel('pollok')
    m = (1 << nlanes) - 1

    def setexec():
        A('s_mov_b32 exec_lo, 0x%x' % (m & 0xffffffff))
        A('s_mov_b32 exec_hi, 0x%x' % (m >> 32))
    def ld():
        if wide:
            A('buffer_load_dwordx4 %s, v%d, %s, %s offen sc1' % (v(vt, 4), vt + 4, WS, s(sflagoff)))
        else:
            A('buffer_load_dword v%d, v%d, %s, %s offen sc1' % (vt, vt + 1, WS, s(sflagoff)))
    A('v_lshlrev_b32 v%d, 3, v1' % (vt + (4 if wide else 1)))
    setexec()
    if first:
        l2 = A.newlabel('pollchk')
        ld()
        A('s_mov_b64 exec, -1')
        A('s_waitcnt vmcnt(0)')
        first()
        setexec()
        A('s_branch %s' % l2)
    A.label(l0)
    ld()
    A('s_waitcnt vmcnt(0)')
    if first:
        A.label(l2)
    if wide:
        A('v_min3_u32 v%d, v%d, v%d, v%d' % (vt, vt, vt + 1, vt + 2))
        A('v_min_u32 v%d, v%d, v%d' % (vt, vt, vt + 3))
    A('v_cmp_gt_u32 vcc, %s, v%d' % (s(sneed), vt))
    A('s_cbranch_vccz %s' % l1)
    A('s_sleep %d' % sleep)
    A('s_sub_u32 %s, %s, 1' % (s(sSpin), s(sSpin)))
    A('s_cmp_gt_i32 %s, 0' % s(sSpin))
    A('s_cbranch_scc1 %s' % l0)
    A.label(l1)
    A('s_mov_b64 exec, -1')


def signal(A, sflagoff, sval, vt):
    A('s_waitcnt vmcnt(0)')
    A('s_barrier')
    l = A.newlabel('nosig')
    A('s_cmp_lg_u32 s4, 0')
    A('s_cbranch_scc1 %s' % l)
    A('v_mov_b32 v%d, %s' % (vt, s(sval)))
    A('s_mov_b64 exec, 1')
    A('buffer_store_dword v%d, off, %s, %s sc1' % (vt, WS, s(sflagoff)))
    A('s_mov_b64 exec, -1')
    A.label(l)


def wave_signal(A, sflagoff, sval, vt):
    A('v_mov_b32 v%d, %s' % (vt, s(sval)))
    A('s_mov_b64 exec, 1')
    A('buffer_store_dword v%d, off, %s, %s sc1' % (vt, WS, s(sflagoff)))
    A('s_mov_b64 exec, -1')


def role_end(A, opt, which):
    if opt.get('stamps'):
        A('s_memrealtime s[98:99]')
        A('s_lshl_b32 %s, s3, 4' % s(sT0))
        A('s_add_u32 %s, %s, 0x%x' % (s(sT0), s(sT0), STAMP_OFF + 0x4000))
        A('s_waitcnt lgkmcnt(0)')
        A('v_mov_b32 v8, s100')
        A('v_mov_b32 v9, s98')
        A('v_mov_b32 v10, s96')
        A('v_mov_b32 v11, s97')
        A('s_mov_b64 exec, 1')
        A('buffer_store_dwordx4 v[8:11], off, %s, %s' % (WS, s(sT0)))
        A('v_sub_u32 v12, v9, v8')
        A('v_sub_u32 v13, v10, v8')
        A('buffer_atomic_umax v12, off, %s, 0 offset:%d' % (s(SRD_DBG, 4), 40 + 4 * which))
        if which < 2:
            A('buffer_atomic_umax v13, off, %s, 0 offset:%d' % (s(SRD_DBG, 4), 56 + 4 * which))
        A('s_lshl_b32 %s, s3, 2' % s(sT0))
        A('s_add_u32 %s, %s, s4' % (s(sT0), s(sT0)))
        A('s_lshl_b32 %s, %s, 6' % (s(sT0), s(sT0)))
        A('s_add_u32 %s, %s, 0x%x' % (s(sT0), s(sT0), STAMP2_OFF))
        for i in range(16):
            A('v_mov_b32 v%d, s%d' % (12 + i, 80 + i))
        for i in range(4):
            A('buffer_store_dwordx4 %s, off, %s, %s offset:%d' % (v(12 + 4 * i, 4), WS, s(sT0), 16 * i))
        A('s_add_u32 %s, %s, 0x10000' % (s(sT0), s(sT0)))
        for i in range(8):
            A('v_mov_b32 v%d, s%d' % (32 + i, 64 + i))
        for i in range(2):
            A('buffer_store_dwordx4 %s, off, %s, %s offset:%d' % (v(32 + 4 * i, 4), WS, s(sT0), 16 * i))
    A('s_waitcnt vmcnt(0)')
    A('s_endpgm')


def lap(A, opt, i):
    if opt.get('stamps'):
        A('s_memrealtime s[98:99]')
        A('s_waitcnt lgkmcnt(0)')
        A('s_sub_u32 s99, s98, s97')
        A('s_add_u32 s%d, s%d, s99' % (80 + i, 80 + i))
        A('s_mov_b32 s97, s98')
        A('s_mov_b32 s%d, s98' % (88 + i))


def tick(A, opt, i):
    if opt.get('stamps'):
        A('s_memrealtime s[98:99]')
        A('s_waitcnt lgkmcnt(0)')
        A('s_mov_b32 s%d, s98' % (64 + i))


def mark(A, opt, reg):
    if opt.get('stamps'):
        A('s_memrealtime s[98:99]')
        A('s_waitcnt lgkmcnt(0)')
        A('s_mov_b32 s%d, s98' % reg)
        A('s_mov_b32 s97, s98')
        for i in range(8):
            A('s_mov_b32 s%d, 0' % (80 + i))


def hold_back(A, opt, vt):
    dbg_wait(A, D_RDY, NAUX, vt, sT0, sSpin)
    if opt.get('hold', True):
        A('s_mov_b32 %s, 1' % s(sNeed))
        A('s_and_b32 %s, %s, 31' % (s(sT3), s(sID)))
        A('s_lshl_b32 %s, %s, 7' % (s(sT3), s(sT3)))
        A('s_add_u32 %s, %s, 0x%x' % (s(sT3), s(sT3), FLAG_OFF + F_A1))
        poll(A, sT3, 1, sNeed, vt, True, sleep=8)


def mfma(A, d, x, y, c):
    A('v_mfma_f32_16x16x32_bf16 %s, %s, %s, %s' % (d, x, y, c))


def load_cols2(A, st, srdreg, voff, stride, frag, nks, raw, nt):
    def issue(ks):
        for j in range(8):
            A('s_mov_b32 %s, %d' % (s(sT0), (32 * ks + j) * stride))
            A('buffer_load_dword v%d, v%d, %s, %s offen%s' % (raw(ks) + j, voff, s(srdreg, 4), s(sT0), nt))

    def consume(ks):
        for t in range(2):
            for r in range(4):
                d = frag(ks, t)
                if d[0] == 'a':
                    tmp = 24 + 4 * t + r
                    A('v_perm_b32 v%d, v%d, v%d, %s' % (tmp, raw(ks) + 2 * r + 1, raw(ks) + 2 * r, s(sPHI if t else sPLO)))
                    put(A, rg(d, 1, r), tmp)
                else:
                    A('v_perm_b32 %s, v%d, v%d, %s' % (rg(d, 1, r), raw(ks) + 2 * r + 1, raw(ks) + 2 * r, s(sPHI if t else sPLO)))
    for ks in range(nks):
        st.add(8, lambda ks=ks: issue(ks), lambda ks=ks: consume(ks), range(raw(ks), raw(ks) + 8))


def load_cols4(A, st, srdreg, voff, stride, frag, nks, raw, nt):
    def issue(ks):
        for j in range(8):
            A('s_mov_b32 %s, %d' % (s(sT0), (32 * ks + j) * stride))
            A('buffer_load_dwordx2 %s, v%d, %s, %s offen%s' % (v(raw(ks) + 2 * j, 2), voff, s(srdreg, 4), s(sT0), nt))

    def consume(ks):
        for t in range(4):
            for r in range(4):
                d = frag(ks, t)
                lo, hi = raw(ks) + 4 * r + (t >> 1), raw(ks) + 4 * r + 2 + (t >> 1)
                sel = s(sPHI if t & 1 else sPLO)
                if d[0] == 'a':
                    tmp = 24 + 4 * (t & 1) + r
                    A('v_perm_b32 v%d, v%d, v%d, %s' % (tmp, hi, lo, sel))
                    put(A, rg(d, 1, r), tmp)
                else:
                    A('v_perm_b32 %s, v%d, v%d, %s' % (rg(d, 1, r), hi, lo, sel))
    for ks in range(nks):
        st.add(8, lambda ks=ks: issue(ks), lambda ks=ks: consume(ks), range(raw(ks), raw(ks) + 16))


def load_out(A, st, srdreg, voff16, voff2, frag, nks, raw, nt):
    def issue(ks):
        for h in range(2):
            A('s_mov_b32 %s, %d' % (s(sT0), (32 * ks + 4 * h) * ROWB))
            for j in range(4):
                A('buffer_load_dwordx4 %s, v%d, %s, %s offen offset:%d%s' % (
                    v(raw(ks) + 4 * (4 * h + j), 4), voff16, s(srdreg, 4), s(sT0), j * ROWB, nt))
            for j in range(4):
                A('buffer_load_ushort v%d, v%d, %s, %s offen offset:%d%s' % (
                    raw(ks) + 32 + 4 * h + j, voff2, s(srdreg, 4), s(sT0), j * ROWB, nt))

    def consume(ks):
        for j in range(9):
            for r in range(4):
                d = frag(ks, j)
                tmp = 24 + 4 * (j & 1) + r
                dst = 'v%d' % tmp if d[0] == 'a' else rg(d, 1, r)
                if j < 8:
                    A('v_perm_b32 %s, v%d, v%d, %s' % (dst, raw(ks) + 8 * r + 4 + (j >> 1), raw(ks) + 8 * r + (j >> 1),
                                                      s(sPHI if j & 1 else sPLO)))
                else:
                    A('v_lshl_or_b32 %s, v%d, 16, v%d' % (dst, raw(ks) + 32 + 2 * r + 1, raw(ks) + 32 + 2 * r))
                if d[0] == 'a':
                    put(A, rg(d, 1, r), tmp)
    for ks in range(nks):
        st.add(16, lambda ks=ks: issue(ks), lambda ks=ks: consume(ks), range(raw(ks), raw(ks) + 40))


def out_consts(A, srow0, v16, v2):
    A('v_lshlrev_b32 v23, 3, v22')
    A('v_add_u32 v23, %s, v23' % s(srow0))
    A('s_mov_b32 %s, 1152' % s(sT1))
    A('v_mul_lo_u32 v23, v23, %s' % s(sT1))
    A('s_lshl_b32 %s, s4, 8' % s(sT0))
    A('v_lshl_add_u32 v24, v21, 4, v23')
    A('v_add_u32 v%d, %s, v24' % (v16, s(sT0)))
    A('s_lshl_b32 %s, s4, 5' % s(sT0))
    A('s_add_u32 %s, %s, 1024' % (s(sT0), s(sT0)))
    A('v_lshl_add_u32 v24, v21, 1, v23')
    A('v_add_u32 v%d, %s, v24' % (v2, s(sT0)))


def pstore_consts(A, tokstride, vp, vp8):
    A('s_mov_b32 %s, %d' % (s(sT1), 4 * tokstride))
    A('v_mul_lo_u32 v23, v22, %s' % s(sT1))
    A('v_lshl_add_u32 v23, v21, 4, v23')
    A('s_lshl_b32 %s, s4, 8' % s(sT0))
    A('v_add_u32 v%d, %s, v23' % (vp, s(sT0)))
    A('s_mov_b32 %s, %d' % (s(sT1), tokstride))
    A('v_mul_lo_u32 v23, v21, %s' % s(sT1))
    A('v_lshl_add_u32 v23, v22, 3, v23')
    A('s_lshl_b32 %s, s4, 5' % s(sT0))
    A('s_add_u32 %s, %s, 1024' % (s(sT0), s(sT0)))
    A('v_add_u32 v%d, %s, v23' % (vp8, s(sT0)))


def out_gemm(A, nks, frag, vla, ldsoff, XF, ACC, OUT, vp, vp8, sdst, tokstride):
    for aa in range(2):
        for ks in range(nks):
            A('ds_read_b128 %s, v%d offset:%d' % (v(XF + 4 * ks, 4), vla, ldsoff + (2 * ks + aa) * 1024))
        for ks in range(nks):
            A('s_waitcnt lgkmcnt(%d)' % (nks - 1 - ks))
            for j in range(9):
                c = '0' if ks == 0 else v(ACC + 4 * j, 4)
                if j < 8:
                    mfma(A, v(ACC + 4 * j, 4), v(XF + 4 * ks, 4), rg(frag(ks, j), 4), c)
                else:
                    mfma(A, v(ACC + 4 * j, 4), rg(frag(ks, j), 4), v(XF + 4 * ks, 4), c)
        for i in range(4):
            o = OUT + 4 * (i & 1)
            for q in range(4):
                A('v_cvt_pk_bf16_f32 v%d, v%d, v%d' % (o + q, ACC + 8 * q + i, ACC + 8 * q + 4 + i))
            A('s_add_u32 %s, %s, %d' % (s(sT0), s(sdst), (16 * aa + i) * tokstride))
            A('buffer_store_dwordx4 %s, v%d, %s, %s offen sc1' % (v(o, 4), vp, WS, s(sT0)))
        A('v_cvt_pk_bf16_f32 v%d, v%d, v%d' % (ACC + 32, ACC + 32, ACC + 33))
        A('v_cvt_pk_bf16_f32 v%d, v%d, v%d' % (ACC + 33, ACC + 34, ACC + 35))
        A('s_add_u32 %s, %s, %d' % (s(sT0), s(sdst), 16 * aa * tokstride))
        A('buffer_store_dwordx2 %s, v%d, %s, %s offen sc1' % (v(ACC + 32, 2), vp8, WS, s(sT0)))


def out_gemm2(A, nks, frag, vla, ldsoff, XF, ACC0, ACC1, OUT, vp, vp8, sdst, tokstride, fillers):
    def rd(ks, aa):
        A('ds_read_b128 %s, v%d offset:%d' % (v(XF + 4 * ks, 4), vla, ldsoff + (2 * ks + aa) * 1024))

    def epilogue(aa, ACC):
        out = []
        for i in range(4):
            o = OUT + 4 * (i & 1)
            for q in range(0, 4, 2):
                out.append(lambda o=o, q=q, i=i: (
                    A('v_cvt_pk_bf16_f32 v%d, v%d, v%d' % (o + q, ACC + 8 * q + i, ACC + 8 * q + 4 + i)),
                    A('v_cvt_pk_bf16_f32 v%d, v%d, v%d' % (o + q + 1, ACC + 8 * q + 8 + i, ACC + 8 * q + 12 + i))))
            out.append(lambda o=o, i=i: (
                A('s_add_u32 %s, %s, %d' % (s(sT0), s(sdst), (16 * aa + i) * tokstride)),
                A('buffer_store_dwordx4 %s, v%d, %s, %s offen sc1' % (v(o, 4), vp, WS, s(sT0)))))
        out.append(lambda: (A('v_cvt_pk_bf16_f32 v%d, v%d, v%d' % (ACC + 32, ACC + 32, ACC + 33)),
                            A('v_cvt_pk_bf16_f32 v%d, v%d, v%d' % (ACC + 33, ACC + 34, ACC + 35))))
        out.append(lambda: (A('s_add_u32 %s, %s, %d' % (s(sT0), s(sdst), 16 * aa * tokstride)),
                            A('buffer_store_dwordx2 %s, v%d, %s, %s offen sc1' % (v(ACC + 32, 2), vp8, WS, s(sT0)))))
        return out
    for ks in range(nks):
        rd(ks, 0)
    for aa, ACC in enumerate((ACC0, ACC1)):
        fl = list(fillers) if aa == 0 else epilogue(0, ACC0)
        every = max(1, (9 * nks - 4) // max(1, len(fl)))
        cnt = 0
        for ks in range(nks):
            A('s_waitcnt lgkmcnt(%d)' % (nks - 1 if aa == 0 else nks - 1 - ks))
            for j in range(9):
                c = '0' if ks == 0 else v(ACC + 4 * j, 4)
                if j < 8:
                    mfma(A, v(ACC + 4 * j, 4), v(XF + 4 * ks, 4), rg(frag(ks, j), 4), c)
                else:
                    mfma(A, v(ACC + 4 * j, 4), rg(frag(ks, j), 4), v(XF + 4 * ks, 4), c)
                cnt += 1
                if fl and cnt >= 3 and cnt % every == 0:
                    fl.pop(0)()
            if aa == 0:
                rd(ks, 1)
        for f in fl:
            f()
    for f in epilogue(1, ACC1):
        f()


def xloop(A, vxa0, vxa1, XF, body, hook=None):
    def rd(ks):
        b = XF + 8 * (ks & 1)
        for aa in range(2):
            A('ds_read_b128 %s, v%d offset:%d' % (v(b + 4 * aa, 4), vxa1 if ks & 1 else vxa0, (ks >> 1) * 4096 + aa * 2048))
    rd(0)
    rd(1)
    for ks in range(18):
        A('s_waitcnt lgkmcnt(%d)' % (2 if ks < 17 else 0))
        b = XF + 8 * (ks & 1)
        body(ks, b, b + 4)
        if ks + 2 < 18:
            rd(ks + 2)
        if hook:
            hook(ks)


def gen_A1(A, opt):
    nt = ' nt' if opt.get('nt', True) else ''
    flags = opt.get('flags', True)
    A.label('A1_entry')
    for i in range(8):
        tick(A, opt, i)
    vSrc, vXA0, vXA1, vQK = 2, 3, 4, 5
    lane_consts(A)
    stage_consts(A, vSrc, vXA0, vXA1)
    sH, sP = sFl2, sSrc2
    A('s_lshr_b32 %s, %s, 1' % (s(sH), s(sID)))
    A('s_and_b32 %s, %s, 1' % (s(sP), s(sID)))
    A('s_load_dwordx2 %s, s[0:1], %d' % (s(SRD_B, 2), K_WQ))
    A('s_load_dwordx2 %s, s[0:1], %d' % (s(sT2, 2), K_WK))
    A('s_mov_b32 %s, 0x%x' % (s(SRD_B + 2), 576 * 8192))
    A('s_mov_b32 %s, 0x20000' % s(SRD_B + 3))
    srd(A, SRD_C, K_WV, 576 * 8192)
    A('v_lshlrev_b32 v23, 16, v22')
    A('s_lshl_b32 %s, %s, 8' % (s(sT0), s(sH)))
    A('v_add_u32 v23, %s, v23' % s(sT0))
    A('s_and_b32 %s, s4, 1' % s(sT0))
    A('s_lshl_b32 %s, %s, 7' % (s(sT0), s(sT0)))
    A('v_lshl_add_u32 v24, v21, 3, v23')
    A('v_add_u32 v6, %s, v24' % s(sT0))
    A('s_lshl_b32 %s, s4, 6' % s(sT0))
    A('v_lshl_add_u32 v24, v21, 2, v23')
    A('v_add_u32 v7, %s, v24' % s(sT0))
    A('v_lshrrev_b32 v23, 1, v22')
    A('v_lshlrev_b32 v23, 11, v23')
    A('v_and_b32 v24, 1, v22')
    A('v_lshl_add_u32 v23, v24, 9, v23')
    A('v_lshl_add_u32 v23, v21, 4, v23')
    A('s_lshl_b32 %s, s4, 12' % s(sT0))
    A('v_add_u32 v%d, %s, v23' % (vQK, s(sT0)))
    A('s_waitcnt lgkmcnt(0)')
    A('s_cmp_lt_u32 s4, 2')
    A('s_cselect_b32 %s, %s, %s' % (s(SRD_B), s(SRD_B), s(sT2)))
    A('s_cselect_b32 %s, %s, %s' % (s(SRD_B + 1), s(SRD_B + 1), s(sT2 + 1)))
    fqk = lambda ks, t: wf4(4 * ks + t)
    fv = lambda ks, t: wf4(72 + 2 * ks + t)
    st = Stream(A, 60)
    load_cols4(A, st, SRD_B, 6, 8192, fqk, 18, lambda ks: 128 + 16 * (ks % 8), nt)
    load_cols2(A, st, SRD_C, 7, 8192, fv, 18, lambda ks: 32 + 8 * (ks % 6), nt)
    st.run()
    A('s_mov_b32 %s, 0' % s(sItem))
    A('s_mul_i32 %s, %s, %d' % (s(sSrc), s(sP), 32 * ROWB))
    A('s_add_u32 %s, %s, 0x%x' % (s(sSrc), s(sSrc), H1_OFF))
    A('s_lshl_b32 %s, %s, 5' % (s(sT0), s(sP)))
    A('s_add_u32 %s, %s, %s' % (s(sT0), s(sT0), s(sH)))
    A('s_mul_i32 %s, %s, %d' % (s(sDst), s(sT0), QKV_BLK))
    A('s_add_u32 %s, %s, 0x%x' % (s(sDst), s(sDst), QKV_OFF))
    A('s_lshl_b32 %s, %s, 7' % (s(sFlag), s(sH)))
    A('s_lshl_b32 %s, %s, 2' % (s(sT0), s(sP)))
    A('s_add_u32 %s, %s, %s' % (s(sFlag), s(sFlag), s(sT0)))
    A('s_add_u32 %s, %s, 0x%x' % (s(sFlag), s(sFlag), FLAG_OFF + F_A1))
    A('s_mov_b32 %s, 0' % s(sBuf))
    tick(A, opt, 1)
    dbg_wait(A, D_RDY, NAUX, 8, sT0, sSpin)
    tick(A, opt, 2)
    A('s_mov_b32 %s, 1' % s(sNeed))
    A('s_lshl_b32 %s, %s, 8' % (s(sT2), s(sP)))
    A('s_add_u32 %s, %s, 0x%x' % (s(sT2), s(sT2), FLAG_OFF + F_H1))
    poll(A, sT2, 2, sNeed, 8, flags, sleep=1)
    tick(A, opt, 3)
    stage_issue(A, vSrc, sSrc, sBuf)
    for hh in range(2):
        A('s_mov_b32 %s, 0x%x' % (s(sT2), FLAG_OFF + F_H1 + 8192 * hh))
        poll(A, sT2, 64, sNeed, 8, flags, sleep=1)
    A('s_waitcnt vmcnt(0)')
    A('s_barrier')
    XF, ACC = 8, 24
    mark(A, opt, 96)
    A.label('A1_loop')
    A('s_xor_b32 %s, %s, %d' % (s(sBuf), s(sBuf), XBUF))
    A('s_add_u32 %s, %s, %d' % (s(sSrc), s(sSrc), 64 * ROWB))
    A('s_cmp_lt_u32 %s, 31' % s(sItem))
    A('s_cselect_b32 %s, %s, 0x%x' % (s(sT1), s(sSrc), OOB))
    stage_issue(A, vSrc, sT1, sBuf)

    def body(ks, f0, f1):
        for aa, f in enumerate((f0, f1)):
            for t in range(4):
                d = v(ACC + 4 * (4 * aa + t), 4)
                mfma(A, d, rg(fqk(ks, t), 4), v(f, 4), '0' if ks == 0 else d)
            for t in range(2):
                d = v(ACC + 32 + 4 * (2 * t + aa), 4)
                mfma(A, d, v(f, 4), rg(fv(ks, t), 4), '0' if ks == 0 else d)
    xloop(A, vXA0, vXA1, XF, body)
    A('s_lshl_b32 %s, %s, 1' % (s(sT0), s(sBuf)))
    A('s_sub_u32 %s, %s, %d' % (s(sT0), s(sT0), XBUF))
    A('v_add_u32 v%d, %s, v%d' % (vXA0, s(sT0), vXA0))
    A('v_add_u32 v%d, %s, v%d' % (vXA1, s(sT0), vXA1))
    k = 0
    for aa in range(2):
        T = [ACC + 4 * (4 * aa + t) for t in range(4)]
        for c in range(2):
            o = 72 + 4 * (k & 1)
            k += 1
            for ii in range(2):
                i = 2 * c + ii
                A('v_cvt_pk_bf16_f32 v%d, v%d, v%d' % (o + 2 * ii, T[0] + i, T[1] + i))
                A('v_cvt_pk_bf16_f32 v%d, v%d, v%d' % (o + 2 * ii + 1, T[2] + i, T[3] + i))
            A('buffer_store_dwordx4 %s, v%d, %s, %s offen offset:%d sc1' % (v(o, 4), vQK, WS, s(sDst), aa * 1024 + c * 256))
    A('s_lshl_b32 %s, s4, 11' % s(sT0))
    A('s_add_u32 %s, %s, %s' % (s(sT0), s(sT0), s(sDst)))
    A('s_add_u32 %s, %s, 16384' % (s(sT0), s(sT0)))
    for t in range(2):
        o = 72 + 4 * (k & 1)
        k += 1
        b = ACC + 32 + 8 * t
        for q in range(4):
            A('v_cvt_pk_bf16_f32 v%d, v%d, v%d' % (o + q, b + 2 * q, b + 2 * q + 1))
        A('buffer_store_dwordx4 %s, v1, %s, %s offen offset:%d sc1' % (v(o, 4), WS, s(sT0), t * 1024))
    A('s_add_u32 %s, %s, 1' % (s(sItem), s(sItem)))
    A('s_add_u32 %s, %s, %d' % (s(sDst), s(sDst), 2 * NH * QKV_BLK))
    signal(A, sFlag, sItem, 8)
    A('s_cmp_lt_u32 %s, 32' % s(sItem))
    A('s_cbranch_scc1 A1_loop')
    role_end(A, opt, 1)


def round_pair(A, x, y, t):
    A('v_cvt_pk_bf16_f32 v%d, v%d, v%d' % (t, x, y))
    A('v_lshlrev_b32 v%d, 16, v%d' % (x, t))
    A('v_and_b32 v%d, %s, v%d' % (y, s(sHI), t))


def gen_A2(A, opt):
    nt = ' nt' if opt.get('nt', True) else ''
    flags = opt.get('flags', True)
    NS = opt.get('a2sets', 3)
    A.label('A2_entry')
    vP, vP8, vKM, vVM, vMask = 2, 3, 4, 5, 6
    TOK = 16 * ROWB
    lane_consts(A)
    sHP, sP = 48, 49
    A('s_and_b32 %s, %s, 15' % (s(sHP), s(sID)))
    A('s_lshr_b32 %s, %s, 4' % (s(sP), s(sID)))
    srd(A, SRD_A, K_WO, 4096 * ROWB)
    A('s_lshl_b32 %s, %s, 8' % (s(sT2), s(sHP)))
    out_consts(A, sT2, 8, 9)
    pstore_consts(A, TOK, vP, vP8)
    A('v_lshrrev_b32 v23, 2, v21')
    A('v_lshlrev_b32 v23, 8, v23')
    A('v_lshl_add_u32 v23, v22, 5, v23')
    A('v_and_b32 v24, 1, v21')
    A('v_lshl_add_u32 v%d, v24, 3, v23' % vKM)
    A('s_and_b32 %s, s4, 1' % s(sT0))
    A('s_lshl_b32 %s, %s, 4' % (s(sT0), s(sT0)))
    A('v_lshlrev_b32 v23, 2, v22')
    A('v_sub_u32 v23, v21, v23')
    A('v_add_u32 v%d, %s, v23' % (vMask, s(sT0)))
    A('s_waitcnt lgkmcnt(0)')
    hold_back(A, opt, 244)
    fo = lambda ks, j: wf4(9 * ks + j)
    st = Stream(A, 60)
    load_out(A, st, SRD_A, 8, 9, fo, 8, lambda ks: 112 + 40 * (ks % 3), nt)
    st.run()
    CM = 112
    A('v_mov_b32 v23, 0xff800000')
    for ap in range(2):
        for i in range(4):
            A('v_cmp_gt_i32 vcc, %d, v%d' % (16 * ap + i, vMask))
            A('v_cndmask_b32 v%d, 0, v23, vcc' % (CM + 4 * ap + i))
    A('s_mov_b32 %s, 0x%x' % (s(sC), f2u(math.log2(math.e))))
    sScale = 50
    A('s_mov_b32 %s, 0x%x' % (s(sScale), f2u(128 ** -0.5)))
    A('s_mov_b32 %s, %s' % (s(sItem), s(sP)))
    A('s_lshr_b32 %s, s4, 1' % s(sT0))
    A('s_lshl_b32 %s, %s, 1' % (s(sT1), s(sHP)))
    A('s_add_u32 %s, %s, %s' % (s(sT1), s(sT1), s(sT0)))
    A('s_lshl_b32 %s, %s, 5' % (s(sT0), s(sP)))
    A('s_add_u32 %s, %s, %s' % (s(sT0), s(sT0), s(sT1)))
    A('s_mul_i32 %s, %s, %d' % (s(sSrc), s(sT0), QKV_BLK))
    A('s_add_u32 %s, %s, 0x%x' % (s(sSrc), s(sSrc), QKV_OFF))
    A('s_lshl_b32 %s, %s, 13' % (s(sSrc2), s(sT0)))
    A('s_add_u32 %s, %s, 0x%x' % (s(sSrc2), s(sSrc2), KVM_OFF))
    sFA1, sFR = 51, 52
    A('s_lshl_b32 %s, %s, 7' % (s(sFA1), s(sT1)))
    A('s_add_u32 %s, %s, 0x%x' % (s(sFA1), s(sFA1), FLAG_OFF + F_A1))
    A('s_lshl_b32 %s, %s, 7' % (s(sFR), s(sT1)))
    A('s_add_u32 %s, %s, 0x%x' % (s(sFR), s(sFR), FLAG_OFF + F_R))
    A('s_mul_i32 %s, %s, %d' % (s(sDst), s(sP), 32 * TOK))
    A('s_mul_i32 %s, %s, %d' % (s(sT0), s(sHP), ROWB))
    A('s_add_u32 %s, %s, %s' % (s(sDst), s(sDst), s(sT0)))
    A('s_add_u32 %s, %s, 0x%x' % (s(sDst), s(sDst), P2_OFF))
    sFlStep, sOne = 57, 58
    A('s_lshl_b32 %s, %s, 11' % (s(sFlag), s(sP)))
    A('s_lshl_b32 %s, %s, 7' % (s(sT0), s(sHP)))
    A('s_add_u32 %s, %s, %s' % (s(sFlag), s(sFlag), s(sT0)))
    A('s_add_u32 %s, %s, 0x%x' % (s(sFlag), s(sFlag), FLAG_OFF + F_A2 + OOB))
    A('s_mov_b32 %s, 0x%x' % (s(sFlStep), (-OOB) & 0xffffffff))
    A('s_mov_b32 %s, 1' % s(sOne))
    Q, K, V, KM, VM = 120, 136, 168, 200, 216
    S, P, O = 224, 236, 8
    XF = 200
    sA1seen, sQ0, sQ1, sK0 = 53, 54, 55, 56

    def pf_check():
        l0, l = A.newlabel('A2_a1'), A.newlabel('A2_have')
        if flags:
            A.label(l0)
            A('s_cmp_gt_u32 %s, %s' % (s(sA1seen), s(sNeed)))
            A('s_cbranch_scc1 %s' % l)
            A('buffer_load_dwordx2 v[244:245], off, %s, %s sc1' % (WS, s(sFA1)))
            A('s_waitcnt vmcnt(0)')
            A('v_readfirstlane_b32 %s, v244' % s(sA1seen))
            A('v_readfirstlane_b32 %s, v245' % s(sT0))
            A('s_lshl_b32 %s, %s, 1' % (s(sA1seen), s(sA1seen)))
            A('s_lshl_b32 %s, %s, 1' % (s(sT0), s(sT0)))
            A('s_add_u32 %s, %s, 1' % (s(sT0), s(sT0)))
            A('s_min_u32 %s, %s, %s' % (s(sA1seen), s(sA1seen), s(sT0)))
            A('s_sub_u32 %s, %s, 1' % (s(sSpin), s(sSpin)))
            A('s_cmp_gt_i32 %s, 0' % s(sSpin))
            A('s_cbranch_scc1 %s' % l0)
            A.label(l)
        A('s_and_b32 %s, s4, 1' % s(sQ0))
        A('s_lshl_b32 %s, %s, 10' % (s(sQ0), s(sQ0)))
        A('s_add_u32 %s, %s, %s' % (s(sQ0), s(sQ0), s(sSrc)))
        A('s_add_u32 %s, %s, 4096' % (s(sQ1), s(sQ0)))

    def pf_loads():
        out = []
        for m in range(4):
            out.append(lambda m=m: A('buffer_load_dwordx4 %s, v1, %s, %s offen offset:%d sc1' % (
                v(Q + 4 * m, 4), WS, s(sQ1 if m >= 2 else sQ0), 2048 * (m & 1))))
        for blk in range(4):
            for i in range(4):
                out.append(lambda blk=blk, i=i: (
                    A('s_add_u32 %s, %s, %d' % (s(sK0), s(sSrc), 8192 + 4096 * blk)) if i == 0 else None,
                    A('buffer_load_dwordx4 %s, v1, %s, %s offen offset:%d sc1' % (v(K + 16 * blk + 4 * i, 4), WS, s(sK0), 1024 * i))))
        return out

    def prefetch():
        pf_check()
        for f in pf_loads():
            f()
    A('s_mov_b32 %s, 0' % s(sA1seen))
    A('s_mov_b32 %s, %s' % (s(sNeed), s(sItem)))
    prefetch()
    A('s_waitcnt vmcnt(0)')
    mark(A, opt, 96)
    A.label('A2_loop')
    A('s_waitcnt vmcnt(10)')
    for m in range(4):
        for ap in range(2):
            d = v(S + 4 * ap, 4)
            mfma(A, d, v(K + 8 * m + 4 * ap, 4), v(Q + 4 * m, 4), v(CM + 4 * ap, 4) if m == 0 else d)
    A('s_add_u32 %s, %s, 1' % (s(sNeed), s(sItem)))
    lap(A, opt, 0)
    poll(A, sFR, 1, sNeed, 40, flags, first=lambda: (lap(A, opt, 1), signal(A, sFlag, sOne, 42)), sleep=1)
    lap(A, opt, 2)
    A('s_add_u32 %s, %s, 4096' % (s(sT0), s(sSrc2)))
    for m in range(4):
        for c in range(2):
            A('buffer_load_dwordx2 %s, v%d, %s, %s offen offset:%d sc1' % (
                v(KM + 4 * m + 2 * c, 2), vKM, WS, s(sT0), (m >> 1) * 2048 + (8 * (m & 1) + c) * 16))
    for w in range(4):
        A('buffer_load_dwordx2 %s, v1, %s, %s offen offset:%d sc1' % (
            v(VM + 2 * w, 2), WS, s(sT0 if w >= 2 else sSrc2), (w & 1) * 2048 + 1024))
    A('s_waitcnt vmcnt(4)')
    for m in range(4):
        d = v(S + 8, 4)
        mfma(A, d, v(KM + 4 * m, 4), v(Q + 4 * m, 4), '0' if m == 0 else d)
    lap(A, opt, 3)
    sv = [S + i for i in range(10)]
    for i in range(0, 10, 2):
        round_pair(A, sv[i], sv[i + 1], 40 + i // 2)
    for x in sv:
        A('v_mul_f32 v%d, %s, v%d' % (x, s(sScale), x))
    for i in range(0, 10, 2):
        round_pair(A, sv[i], sv[i + 1], 40 + i // 2)
    A('v_max3_f32 v40, v%d, v%d, v%d' % tuple(sv[0:3]))
    A('v_max3_f32 v41, v%d, v%d, v%d' % tuple(sv[3:6]))
    A('v_max3_f32 v40, v40, v%d, v%d' % tuple(sv[6:8]))
    A('v_max3_f32 v41, v41, v%d, v%d' % tuple(sv[8:10]))
    A('v_max_f32 v42, v40, v41')
    A('v_max_f32 v43, v40, v41')
    A('v_permlane16_swap_b32 v42, v43')
    A('v_max_f32 v40, v42, v43')
    A('v_max_f32 v41, v42, v43')
    A('v_permlane32_swap_b32 v40, v41')
    A('v_max_f32 v42, v40, v41')
    for x in sv:
        A('v_sub_f32 v%d, v%d, v42' % (x, x))
    for x in sv:
        A('v_mul_f32 v%d, %s, v%d' % (x, s(sC), x))
    for x in sv:
        A('v_exp_f32 v%d, v%d' % (x, x))
    A('v_add_f32 v40, v%d, v%d' % (sv[0], sv[1]))
    A('v_add_f32 v41, v%d, v%d' % (sv[2], sv[3]))
    for i in range(4, 10, 2):
        A('v_add_f32 v40, v40, v%d' % sv[i])
        A('v_add_f32 v41, v41, v%d' % sv[i + 1])
    A('v_add_f32 v42, v40, v41')
    A('v_add_f32 v43, v40, v41')
    A('v_permlane16_swap_b32 v42, v43')
    A('v_add_f32 v40, v42, v43')
    A('v_add_f32 v41, v42, v43')
    A('v_permlane32_swap_b32 v40, v41')
    A('v_add_f32 v42, v40, v41')
    A('v_rcp_f32 v42, v42')
    for x in sv:
        A('v_mul_f32 v%d, v%d, v42' % (x, x))
    for i in range(4):
        A('v_cvt_pk_bf16_f32 v%d, v%d, v%d' % (P + i, sv[2 * i], sv[2 * i + 1]))
    A('v_cvt_pk_bf16_f32 v%d, v%d, v%d' % (P + 4, sv[8], sv[9]))
    A('v_mov_b32 v%d, 0' % (P + 5))
    A('v_mov_b32 v%d, 0' % (P + 6))
    A('v_mov_b32 v%d, v%d' % (P + 7, P + 4))
    A('s_waitcnt vmcnt(0)')
    for tl in range(8):
        mfma(A, v(O + 4 * tl, 4), v(V + 4 * tl, 4), v(P, 4), '0')
    for tl in range(8):
        A('v_mfma_f32_16x16x16_bf16 %s, %s, %s, %s' % (v(O + 4 * tl, 4), v(VM + 2 * (tl >> 1), 2), v(P + 4 + 2 * (tl & 1), 2), v(O + 4 * tl, 4)))
    A('s_lshr_b32 %s, s4, 1' % s(sT0))
    A('s_lshl_b32 %s, %s, 13' % (s(sT0), s(sT0)))
    A('s_and_b32 %s, s4, 1' % s(sT1))
    A('s_lshl_b32 %s, %s, 10' % (s(sT1), s(sT1)))
    A('s_add_u32 %s, %s, %s' % (s(sT0), s(sT0), s(sT1)))
    A('v_add_u32 v40, %s, v1' % s(sT0))
    for w in range(4):
        o = 44 + 4 * w
        for i in range(4):
            A('v_cvt_pk_bf16_f32 v%d, v%d, v%d' % (o + i, O + 8 * w + i, O + 8 * w + 4 + i))
        A('ds_write_b128 v40, %s offset:%d' % (v(o, 4), 2048 * w))
    A('s_add_u32 %s, %s, %d' % (s(sItem), s(sItem), NS))
    A('s_add_u32 %s, %s, %d' % (s(sSrc), s(sSrc), NS * NH * QKV_BLK))
    A('s_add_u32 %s, %s, %d' % (s(sSrc2), s(sSrc2), NS * NH * KVM_BLK))
    A('s_min_u32 %s, %s, 63' % (s(sNeed), s(sItem)))
    A('s_cmp_lt_u32 %s, 64' % s(sItem))
    A('s_cselect_b32 %s, %s, 0x%x' % (s(sSrc), s(sSrc), OOB))
    pf_check()
    A('s_waitcnt lgkmcnt(0)')
    A('s_barrier')
    lap(A, opt, 4)
    out_gemm2(A, 8, fo, 1, 0, XF, 8, 44, 248, vP, vP8, sDst, TOK, pf_loads())
    lap(A, opt, 5)
    A('s_add_u32 %s, %s, %d' % (s(sDst), s(sDst), NS * 32 * TOK))
    A('s_add_u32 %s, %s, %s' % (s(sFlag), s(sFlag), s(sFlStep)))
    A('s_mov_b32 %s, %d' % (s(sFlStep), 2048 * NS))
    A('s_cmp_lt_u32 %s, 64' % s(sItem))
    A('s_cbranch_scc1 A2_loop')
    signal(A, sFlag, sOne, 42)
    role_end(A, opt, 2)


def gen_DE(A, opt):
    nt = ' nt' if opt.get('nt', True) else ''
    flags = opt.get('flags', True)
    A.label('DE_entry')
    vSrc, vXA0, vXA1, vP, vP8, vHW = 2, 3, 4, 5, 6, 7
    TOK = 36 * ROWB
    L_H = 0
    L_XB = 8192
    lane_consts(A)
    stage_consts(A, vSrc, vXA0, vXA1)
    sF, sP = 48, 49
    A('s_cmp_ge_u32 %s, 36' % s(sID))
    A('s_cselect_b32 %s, 1, 0' % s(sP))
    A('s_mul_i32 %s, %s, 36' % (s(sT0), s(sP)))
    A('s_sub_u32 %s, %s, %s' % (s(sF), s(sID), s(sT0)))
    srd(A, SRD_A, K_WD, 4608 * ROWB)
    srd(A, SRD_B, K_WG, 576 * 9216)
    srd(A, SRD_C, K_WU, 576 * 9216)
    A('s_lshl_b32 %s, %s, 7' % (s(sT2), s(sF)))
    out_consts(A, sT2, 8, 9)
    pstore_consts(A, TOK, vP, vP8)
    A('s_mov_b32 %s, %d' % (s(sT1), 8 * 9216))
    A('v_mul_lo_u32 v23, v22, %s' % s(sT1))
    A('v_lshl_add_u32 v23, v21, 2, v23')
    A('s_lshl_b32 %s, %s, 8' % (s(sT0), s(sF)))
    A('s_lshl_b32 %s, s4, 6' % s(sT1))
    A('s_add_u32 %s, %s, %s' % (s(sT0), s(sT0), s(sT1)))
    A('v_add_u32 v10, %s, v23' % s(sT0))
    A('s_lshl_b32 %s, s4, 11' % s(sT0))
    A('s_add_u32 %s, %s, %d' % (s(sT0), s(sT0), L_H))
    A('v_add_u32 v%d, %s, v1' % (vHW, s(sT0)))
    A('s_waitcnt lgkmcnt(0)')
    hold_back(A, opt, 244)
    fd = lambda ks, j: wf4(9 * ks + j)
    fg = lambda ks, t: wf4(36 + 2 * ks + t)
    fu = lambda ks, t: wf4(72 + 2 * ks + t)
    st = Stream(A, 60)
    load_out(A, st, SRD_A, 8, 9, fd, 4, lambda ks: 112 + 40 * (ks % 3), nt)
    load_cols2(A, st, SRD_B, 10, 9216, fg, 18, lambda ks: 32 + 8 * (ks % 6), nt)
    load_cols2(A, st, SRD_C, 10, 9216, fu, 18, lambda ks: 32 + 8 * (ks % 6), nt)
    st.run()
    A('s_mov_b32 %s, 0' % s(sItem))
    A('s_mul_i32 %s, %s, %d' % (s(sSrc), s(sP), 32 * ROWB))
    A('s_add_u32 %s, %s, 0x%x' % (s(sSrc), s(sSrc), H2_OFF))
    A('s_mul_i32 %s, %s, %d' % (s(sDst), s(sP), 32 * TOK))
    A('s_mul_i32 %s, %s, %d' % (s(sT0), s(sF), ROWB))
    A('s_add_u32 %s, %s, %s' % (s(sDst), s(sDst), s(sT0)))
    A('s_add_u32 %s, %s, 0x%x' % (s(sDst), s(sDst), P3_OFF))
    A('s_mul_i32 %s, %s, 4608' % (s(sFlag), s(sP)))
    A('s_lshl_b32 %s, %s, 7' % (s(sT0), s(sF)))
    A('s_add_u32 %s, %s, %s' % (s(sFlag), s(sFlag), s(sT0)))
    A('s_lshl_b32 %s, s4, 2' % s(sT0))
    A('s_add_u32 %s, %s, %s' % (s(sFlag), s(sFlag), s(sT0)))
    sFlStep = 57
    A('s_add_u32 %s, %s, 0x%x' % (s(sFlag), s(sFlag), FLAG_OFF + F_DE + OOB))
    A('s_mov_b32 %s, 0x%x' % (s(sFlStep), (-OOB) & 0xffffffff))
    A('s_lshl_b32 %s, %s, 12' % (s(sFl2), s(sP)))
    A('s_lshl_b32 %s, s4, 10' % s(sT0))
    A('s_add_u32 %s, %s, %s' % (s(sFl2), s(sFl2), s(sT0)))
    A('s_add_u32 %s, %s, 0x%x' % (s(sFl2), s(sFl2), FLAG_OFF + F_C))
    A('s_mov_b32 %s, %d' % (s(sBuf), L_XB))
    A('v_add_u32 v%d, %d, v%d' % (vXA0, L_XB, vXA0))
    A('v_add_u32 v%d, %d, v%d' % (vXA1, L_XB, vXA1))
    A('s_mov_b32 %s, 1' % s(sNeed))
    sHave = 50
    A('s_mov_b32 %s, 0' % s(sHave))
    XF, ACC = 8, 24
    mark(A, opt, 96)
    A.label('DE_loop')
    A('s_cmp_lg_u32 %s, 0' % s(sHave))
    A('s_cbranch_scc1 DE_have')
    poll(A, sFl2, 8, sNeed, 8, flags, first=lambda: wave_signal(A, sFlag, sNeed, 10), sleep=1)
    lap(A, opt, 0)
    stage_issue(A, vSrc, sSrc, sBuf)
    A('s_waitcnt vmcnt(0)')
    A.label('DE_have')
    A('s_waitcnt vmcnt(10)')
    lap(A, opt, 1)
    A('s_barrier')
    lap(A, opt, 2)
    A('s_add_u32 %s, %s, 8192' % (s(sFl2), s(sFl2)))
    A('s_add_u32 %s, %s, %d' % (s(sSrc), s(sSrc), 64 * ROWB))
    A('s_cmp_lt_u32 %s, 31' % s(sItem))
    A('s_cselect_b32 %s, %s, 0x%x' % (s(sT1), s(sFl2), OOB))
    A('v_lshlrev_b32 v73, 3, v1')
    A('v_and_b32 v73, 0x380, v73')
    A('buffer_load_dword v72, v73, %s, %s offen sc1' % (WS, s(sT1)))

    def hook(ks):
        if ks != opt.get('de_hook', 7):
            return
        lap(A, opt, 3)
        A('s_waitcnt vmcnt(0)')
        lap(A, opt, 4)
        A('s_cmp_lg_u32 %s, 0' % s(sHave))
        A('s_cselect_b32 %s, %s, 0x%x' % (s(sT1), s(sFlag), OOB))
        wave_signal(A, sT1, sNeed, 73)
        A('s_xor_b32 %s, %s, %d' % (s(sBuf), s(sBuf), L_XB ^ (L_XB + XBUF)))
        A('s_mov_b32 %s, 0' % s(sHave))
        if flags:
            A('v_cmp_gt_u32 vcc, %s, v72' % s(sNeed))
            A('s_cbranch_vccnz DE_nopf')
            A('s_mov_b32 %s, 1' % s(sHave))
            stage_issue(A, vSrc, sSrc, sBuf)
            A.label('DE_nopf')

    def body(ks, f0, f1):
        for aa, f in enumerate((f0, f1)):
            for mt, fr in enumerate((fg, fu)):
                for t in range(2):
                    d = v(ACC + 4 * (4 * aa + 2 * mt + t), 4)
                    mfma(A, d, rg(fr(ks, t), 4), v(f, 4), '0' if ks == 0 else d)
    xloop(A, vXA0, vXA1, XF, body, hook)
    A('s_lshl_b32 %s, %s, 1' % (s(sT0), s(sBuf)))
    A('s_sub_u32 %s, %s, %d' % (s(sT0), s(sT0), 2 * L_XB + XBUF))
    A('v_add_u32 v%d, %s, v%d' % (vXA0, s(sT0), vXA0))
    A('v_add_u32 v%d, %s, v%d' % (vXA1, s(sT0), vXA1))
    for aa in range(2):
        G0, G1, U0, U1 = [ACC + 16 * aa + 4 * q for q in range(4)]
        for i in range(4):
            round_pair(A, G0 + i, G1 + i, 56 + i)
            round_pair(A, U0 + i, U1 + i, 60 + i)
        for i in range(4):
            A('v_mul_f32 v%d, v%d, v%d' % (G0 + i, G0 + i, U0 + i))
            A('v_mul_f32 v%d, v%d, v%d' % (G1 + i, G1 + i, U1 + i))
        for i in range(4):
            A('v_cvt_pk_bf16_f32 v%d, v%d, v%d' % (64 + 4 * aa + i, G0 + i, G1 + i))
        A('ds_write_b128 v%d, %s offset:%d' % (vHW, v(64 + 4 * aa, 4), 1024 * aa))
    A('s_waitcnt lgkmcnt(0)')
    A('s_barrier')
    lap(A, opt, 5)
    out_gemm(A, 4, fd, 1, L_H, XF, ACC, 60, vP, vP8, sDst, TOK)
    lap(A, opt, 6)
    A('s_add_u32 %s, %s, 1' % (s(sItem), s(sItem)))
    A('s_add_u32 %s, %s, %d' % (s(sDst), s(sDst), 64 * TOK))
    A('s_add_u32 %s, %s, %s' % (s(sFlag), s(sFlag), s(sFlStep)))
    A('s_mov_b32 %s, 9216' % s(sFlStep))
    A('s_cmp_lt_u32 %s, 32' % s(sItem))
    A('s_cbranch_scc1 DE_loop')
    A('s_waitcnt vmcnt(0)')
    wave_signal(A, sFlag, sNeed, 10)
    role_end(A, opt, 3)


def wave_sum(A, x, t):
    for r in (8, 4, 2, 1):
        A('v_add_f32_dpp v%d, v%d, v%d row_ror:%d row_mask:0xf bank_mask:0xf' % (x, x, x, r))
    A('v_mov_b32 v%d, v%d' % (t, x))
    A('v_permlane16_swap_b32 v%d, v%d' % (x, t))
    A('v_add_f32 v%d, v%d, v%d' % (x, x, t))
    A('v_mov_b32 v%d, v%d' % (t, x))
    A('v_permlane32_swap_b32 v%d, v%d' % (x, t))
    A('v_add_f32 v%d, v%d, v%d' % (x, x, t))


def round1(A, x):
    A('v_cvt_pk_bf16_f32 v%d, v%d, v%d' % (x, x, x))
    A('v_lshlrev_b32 v%d, 16, v%d' % (x, x))


def ln_norm(A, X, n, Dv, T, total, tailmask=None):
    acc, mean, pk = T, T + 1, T + 2
    A('v_add_f32 v%d, v%d, v%d' % (acc, X, X + 1))
    for i in range(2, n):
        A('v_add_f32 v%d, v%d, v%d' % (acc, acc, X + i))
    total(acc, 0)
    A('v_mul_f32 v%d, 0x%x, v%d' % (mean, f2u(1.0 / 576), acc))
    for i in range(n):
        A('v_sub_f32 v%d, v%d, v%d' % (Dv + i, X + i, mean))
    order = list(range(n - 4, n)) + list(range(n - 4))
    A('v_mul_f32 v%d, v%d, v%d' % (acc, Dv + order[0], Dv + order[0]))
    for k, i in enumerate(order[1:]):
        if k == 3 and tailmask is not None:
            A('v_cndmask_b32 v%d, 0, v%d, %s' % (acc, acc, s(tailmask, 2)))
        A('v_fmac_f32 v%d, v%d, v%d' % (acc, Dv + i, Dv + i))
    total(acc, 1)
    round1(A, mean)
    for i in range(n):
        A('v_sub_f32 v%d, v%d, v%d' % (Dv + i, X + i, mean))
    A('v_mul_f32 v%d, 0x%x, v%d' % (acc, f2u(1.0 / 576), acc))
    round1(A, acc)
    A('v_add_f32 v%d, 0x%x, v%d' % (acc, f2u(1e-5), acc))
    round1(A, acc)
    A('v_sqrt_f32 v%d, v%d' % (acc, acc))
    round1(A, acc)
    A('v_rcp_f32 v%d, v%d' % (acc, acc))
    for i in range(0, n, 2):
        round_pair(A, Dv + i, Dv + i + 1, pk)
    for i in range(n):
        A('v_mul_f32 v%d, v%d, v%d' % (Dv + i, Dv + i, acc))
    for i in range(0, n, 2):
        round_pair(A, Dv + i, Dv + i + 1, pk)


def ln_fin(A, Dv, n, SC, SH, OUTP, pk):
    for i in range(n):
        A('v_mul_f32 v%d, v%d, v%d' % (Dv + i, Dv + i, SC + i))
    for i in range(0, n, 2):
        round_pair(A, Dv + i, Dv + i + 1, pk)
    for i in range(n):
        A('v_add_f32 v%d, v%d, v%d' % (Dv + i, Dv + i, SH + i))
    for i in range(0, n, 2):
        A('v_cvt_pk_bf16_f32 v%d, v%d, v%d' % (OUTP + i // 2, Dv + i, Dv + i + 1))


def ln_mod(A, X, n, SC, SH, OUTP, T, total, tailmask=None):
    ln_norm(A, X, n, T + 4, T, total, tailmask)
    ln_fin(A, T + 4, n, SC, SH, OUTP, T + 2)


NCF = 40


def gen_CF(A, opt):
    flags = opt.get('flags', True)
    ncf = opt.get('ncf', NCF)
    A.label('CF_entry')
    vA, vB, vC, vC2 = 2, 3, 4, 5
    SEL, GA, CB, SB, GB, X, XR, D, T, LD = 12, 28, 40, 52, 64, 76, 88, 96, 108, 128
    TOK2, TOK3 = 16 * ROWB, 36 * ROWB
    lane_consts(A)
    srd(A, SRD_A, K_X, 2048 * ROWB)
    srd(A, SRD_B, K_OUT, 2048 * ROWB)
    A('v_and_b32 v23, 1, v22')
    A('v_mul_u32_u24 v24, 1152, v23')
    A('v_lshrrev_b32 v25, 1, v22')
    A('v_lshl_add_u32 v25, v25, 4, v21')
    A('v_lshl_add_u32 v%d, v25, 4, v24' % vA)
    A('v_mov_b32 v24, 0x%x' % OOB)
    A('v_cmp_gt_u32 %s, 8, v25' % s(sMASK, 2))
    A('v_cndmask_b32 v%d, v24, v%d, %s' % (vB, vA, s(sMASK, 2)))
    A('v_lshlrev_b32 v25, 4, v25')
    A('v_lshl_add_u32 v%d, v23, 3, v25' % vC)
    A('v_cndmask_b32 v%d, v24, v%d, %s' % (vC2, vC, s(sMASK, 2)))
    A('v_and_b32 v23, 16, v1')
    A('v_mov_b32 v24, 0x3f80')
    A('v_lshlrev_b32 v23, v23, v24')
    A('v_lshrrev_b32 v24, 1, v21')
    A('v_lshrrev_b32 v25, 1, v22')
    A('v_lshlrev_b32 v25, 2, v25')
    A('v_xor_b32 v24, v24, v25')
    for q in range(4):
        A('v_cmp_eq_u32 vcc, %d, v24' % q)
        A('v_cndmask_b32 v%d, 0, v23, vcc' % (SEL + q))
    dbg_wait(A, D_RDY, NAUX, 23, sT0, sSpin)
    A('s_mov_b32 %s, 1' % s(sNeed))
    for hh in range(2):
        A('s_mov_b32 %s, 0x%x' % (s(sT2), FLAG_OFF + F_MOD + 54 * 128 * hh))
        poll(A, sT2, 54, sNeed, 24, flags)
    A('v_lshlrev_b32 v23, 1, v%d' % vC)
    A('v_lshlrev_b32 v24, 1, v%d' % vC2)
    for reg, idx in ((GA, 2), (SB, 3), (CB, 4), (GB, 5)):
        A('s_mov_b32 %s, 0x%x' % (s(sT0), MOD_OFF + idx * 2304))
        for c in range(3):
            A('buffer_load_dwordx4 %s, v%d, %s, %s offen offset:%d sc1' % (v(reg + 4 * c, 4), 24 if c == 2 else 23, WS, s(sT0), 1024 * c))
    A('s_waitcnt vmcnt(0) lgkmcnt(0)')
    for i in range(12):
        A('v_add_f32 v%d, 1.0, v%d' % (CB + i, CB + i))
    for i in range(0, 12, 2):
        round_pair(A, CB + i, CB + i + 1, 23)
    sRow, sSeg = 48, 49
    A('s_mul_i32 %s, s4, %d' % (s(sItem), ncf))
    A('s_add_u32 %s, %s, %s' % (s(sItem), s(sItem), s(sID)))
    sPrev, XO = 50, 16
    A('s_mov_b32 %s, -1' % s(sPrev))

    def reduce(np_, tok, off, sit):
        A('s_mul_i32 %s, %s, %d' % (s(sSrc), s(sit), tok))
        A('s_add_u32 %s, %s, 0x%x' % (s(sSrc), s(sSrc), off))
        n = 3 * np_ // 2
        regs = 30
        issued = 0

        def issue(k):
            L, c = divmod(k, 3)
            if c == 0 and L:
                A('s_add_u32 %s, %s, %d' % (s(sSrc), s(sSrc), 2 * ROWB))
            A('buffer_load_dwordx4 %s, v%d, %s, %s offen offset:%d sc1' % (
                v(LD + 4 * (k % regs), 4), vB if c == 2 else vA, WS, s(sSrc), 512 * c))
        while issued < min(n, regs):
            issue(issued)
            issued += 1
        for k in range(n):
            A('s_waitcnt vmcnt(%d)' % (issued - 1 - k))
            d = v(D + 4 * (k % 3), 4)
            mfma(A, d, v(SEL, 4), v(LD + 4 * (k % regs), 4), '0' if k < 3 else d)
            if issued < n:
                issue(issued)
                issued += 1
        for i in range(0, 12, 2):
            round_pair(A, D + i, D + i + 1, T)

    def gate_add(G, XR):
        for i in range(12):
            A('v_mul_f32 v%d, v%d, v%d' % (D + i, D + i, G + i))
        for i in range(0, 12, 2):
            round_pair(A, D + i, D + i + 1, T)
        for i in range(12):
            A('v_add_f32 v%d, v%d, v%d' % (X + i, X + i, D + i))
        for i in range(0, 12, 2):
            round_pair(A, X + i, X + i + 1, XR + i // 2)

    def total(reg, which):
        wave_sum(A, reg, 10)

    def unpack(src):
        for i in range(6):
            A('v_lshlrev_b32 v%d, 16, v%d' % (X + 2 * i, src + i))
            A('v_and_b32 v%d, %s, v%d' % (X + 2 * i + 1, s(sHI), src + i))

    def need_flag(sit, shift, base):
        A('s_lshr_b32 %s, %s, 5' % (s(sSeg), s(sit)))
        A('s_mul_i32 %s, %s, %d' % (s(sFl2), s(sSeg), shift))
        A('s_add_u32 %s, %s, 0x%x' % (s(sFl2), s(sFl2), FLAG_OFF + base))

    A('s_mov_b32 %s, 1' % s(sNeed))
    mark(A, opt, 96)
    A.label('CF_loop')
    A('s_cmp_ge_u32 %s, 2048' % s(sItem))
    A('s_cbranch_scc1 CF_skipC')
    A('s_mul_i32 %s, %s, %d' % (s(sRow), s(sItem), ROWB))
    for c in range(3):
        A('buffer_load_dwordx2 %s, v%d, %s, %s offen offset:%d' % (v(XR + 2 * c, 2), vC2 if c == 2 else vC, s(SRD_A, 4), s(sRow), 512 * c))
    need_flag(sItem, 2048, F_A2)
    A('s_waitcnt vmcnt(0)')
    unpack(XR)
    poll(A, sFl2, 16, sNeed, 10, flags, sleep=opt.get('cf_sleep', 4))
    lap(A, opt, 0)
    reduce(16, TOK2, P2_OFF, sItem)
    lap(A, opt, 1)
    gate_add(GA, XR)
    ln_mod(A, X, 12, CB, SB, D, T, total, tailmask=sMASK)
    A('s_add_u32 %s, %s, 0x%x' % (s(sT0), s(sRow), H2_OFF))
    for c in range(3):
        A('buffer_store_dwordx2 %s, v%d, %s, %s offen offset:%d sc1' % (v(D + 2 * c, 2), vC2 if c == 2 else vC, WS, s(sT0), 512 * c))
    A('s_lshl_b32 %s, %s, 7' % (s(sFlag), s(sItem)))
    A('s_add_u32 %s, %s, 0x%x' % (s(sFlag), s(sFlag), FLAG_OFF + F_C))
    A('v_mov_b32 v10, 1')
    lap(A, opt, 2)
    A('s_waitcnt vmcnt(0)')
    lap(A, opt, 3)
    A('s_mov_b64 exec, 1')
    A('buffer_store_dword v10, off, %s, %s sc1' % (WS, s(sFlag)))
    A('s_mov_b64 exec, -1')
    A.label('CF_skipC')
    A('s_cmp_ge_u32 %s, 2048' % s(sPrev))
    A('s_cbranch_scc1 CF_skipF')
    need_flag(sPrev, 4608, F_DE)
    unpack(XO)
    poll(A, sFl2, 36, sNeed, 6, flags, sleep=opt.get('cf_sleep', 4), wide=True)
    lap(A, opt, 4)
    reduce(36, TOK3, P3_OFF, sPrev)
    lap(A, opt, 5)
    gate_add(GB, XO)
    A('s_mul_i32 %s, %s, %d' % (s(sRow), s(sPrev), ROWB))
    for c in range(3):
        A('buffer_store_dwordx2 %s, v%d, %s, %s offen offset:%d' % (v(XO + 2 * c, 2), vC2 if c == 2 else vC, s(SRD_B, 4), s(sRow), 512 * c))
    lap(A, opt, 6)
    A.label('CF_skipF')
    for i in range(0, 6, 2):
        A('v_mov_b64 %s, %s' % (v(XO + i, 2), v(XR + i, 2)))
    A('s_mov_b32 %s, %s' % (s(sPrev), s(sItem)))
    A('s_add_u32 %s, %s, %d' % (s(sItem), s(sItem), 4 * ncf))
    A('s_cmp_lt_u32 %s, 2048' % s(sPrev))
    A('s_cbranch_scc1 CF_loop')
    role_end(A, opt, 0)


NAUX = 160
D_RDY, D_CNT = 64, 192


def dbg_arrive(A, off, vt):
    A('s_waitcnt vmcnt(0)')
    A('s_barrier')
    l = A.newlabel('noarr')
    A('s_cmp_lg_u32 s4, 0')
    A('s_cbranch_scc1 %s' % l)
    A('v_mov_b32 v%d, 1' % vt)
    A('s_mov_b64 exec, 1')
    A('buffer_atomic_add v%d, off, %s, 0 offset:%d' % (vt, s(SRD_DBG, 4), off))
    A('s_mov_b64 exec, -1')
    A.label(l)


def dbg_wait(A, off, n, vt, st, sspin, sleep=4, bar=True):
    l0, l1 = A.newlabel('dw'), A.newlabel('dwok')
    A('s_cmp_lg_u32 s4, 0')
    A('s_cbranch_scc1 %s' % l1)
    A.label(l0)
    A('buffer_load_dword v%d, off, %s, 0 offset:%d sc1' % (vt, s(SRD_DBG, 4), off))
    A('s_waitcnt vmcnt(0)')
    A('v_readfirstlane_b32 %s, v%d' % (s(st), vt))
    A('s_cmp_ge_u32 %s, %d' % (s(st), n))
    A('s_cbranch_scc1 %s' % l1)
    A('s_sleep %d' % sleep)
    A('s_sub_u32 %s, %s, 1' % (s(sspin), s(sspin)))
    A('s_cmp_gt_i32 %s, 0' % s(sspin))
    A('s_cbranch_scc1 %s' % l0)
    A.label(l1)
    if bar:
        A('s_barrier')


def gen_aux(A, opt):
    A.label('AUX_entry')
    for i in range(8):
        tick(A, opt, i)
    srd(A, SRD_A, K_WMOD, 576 * 6912)
    srd(A, SRD_B, K_C, 1152)
    srd(A, SRD_C, K_X, 2048 * ROWB)
    A('s_mov_b32 %s, 0xffff0000' % s(sHI))
    A('s_mov_b32 %s, 400000' % s(sSpin))
    A('s_mov_b32 %s, 1' % s(sNeed))
    A('v_lshrrev_b32 v1, 2, v0')
    A('v_and_b32 v2, 3, v0')
    A('v_mul_u32_u24 v3, 6912, v1')
    A('v_lshl_add_u32 v3, v2, 4, v3')
    A('s_lshl_b32 %s, %s, 6' % (s(sT1), s(sID)))
    A('s_cmp_lt_u32 %s, 108' % s(sID))
    A('s_cselect_b32 %s, %s, 0x%x' % (s(sT1), s(sT1), OOB))
    A('v_add_u32 v3, %s, v3' % s(sT1))
    A('v_lshlrev_b32 v4, 1, v1')
    A('v_and_b32 v5, 63, v0')
    A('v_lshlrev_b32 v6, 3, v5')
    A('v_mov_b32 v8, 0x%x' % OOB)
    A('v_cmp_gt_u32 %s, 16, v5' % s(sMASK, 2))
    A('v_cndmask_b32 v7, v8, v6, %s' % s(sMASK, 2))
    A('s_lshl_b32 %s, %s, 2' % (s(sSrc), s(sID)))
    A('s_add_u32 %s, %s, s4' % (s(sSrc), s(sSrc)))
    A('s_mul_i32 %s, %s, %d' % (s(sSrc), s(sSrc), 4 * ROWB))
    A('s_cmp_lt_u32 %s, 128' % s(sID))
    A('s_cselect_b32 %s, %s, 0x%x' % (s(sSrc), s(sSrc), OOB))
    A('s_waitcnt lgkmcnt(0)')
    C0, W0, RAW = 10, 20, 100
    for i in range(4):
        A('v_mov_b32 v%d, 0' % (60 + i))
    A('v_lshlrev_b32 v9, 4, v0')
    A('s_mul_i32 %s, %s, 4608' % (s(sT0), s(sID)))
    A('s_add_u32 %s, %s, 0x%x' % (s(sT0), s(sT0), FLAG_OFF))
    A('buffer_store_dwordx4 v[60:63], v9, %s, %s offen sc1' % (WS, s(sT0)))
    A('v_cmp_gt_u32 vcc, 32, v0')
    A('v_cndmask_b32 v9, v8, v9, vcc')
    A('s_add_u32 %s, %s, 4096' % (s(sT0), s(sT0)))
    A('buffer_store_dwordx4 v[60:63], v9, %s, %s offen sc1' % (WS, s(sT0)))
    for i in range(9):
        A('buffer_load_ushort v%d, v4, %s, 0 offen offset:%d' % (C0 + i, s(SRD_B, 4), 128 * i))
    for i in range(9):
        A('s_mov_b32 %s, %d' % (s(sT0), 64 * 6912 * i))
        A('buffer_load_dwordx4 %s, v3, %s, %s offen nt' % (v(W0 + 4 * i, 4), s(SRD_A, 4), s(sT0)))
    for r in range(4):
        for q in range(3):
            if r == 3 and q == 2:
                A('s_add_u32 %s, %s, 1024' % (s(sT0), s(sSrc)))
            A('buffer_load_dwordx2 %s, v%d, %s, %s offen offset:%d' % (
                v(RAW + 6 * r + 2 * q, 2), 7 if q == 2 else 6, s(SRD_C, 4), s(sT0 if (r, q) == (3, 2) else sSrc),
                ROWB * r + (0 if (r, q) == (3, 2) else 512 * q)))
    A('s_waitcnt vmcnt(30)')
    tick(A, opt, 1)
    A('s_barrier')
    A('v_mov_b32 v66, 1')
    A('s_cmp_eq_u32 s4, 3')
    A('s_cselect_b32 %s, 0, 0x1000' % s(sT0))
    A('s_mov_b64 exec, 1')
    A('buffer_atomic_add v66, off, %s, %s offset:%d sc0' % (s(SRD_DBG, 4), s(sT0), D_CNT))
    A('s_mov_b64 exec, -1')
    A('s_cbranch_scc0 AUX_arrived')
    A('s_waitcnt vmcnt(0)')
    A('v_readfirstlane_b32 %s, v66' % s(sT0))
    A('s_cmp_lg_u32 %s, %d' % (s(sT0), NAUX - 1))
    A('s_cbranch_scc1 AUX_arrived')
    A('v_mov_b32 v66, %d' % NAUX)
    A('s_mov_b64 exec, 1')
    A('buffer_store_dword v66, off, %s, 0 offset:%d sc1' % (s(SRD_DBG, 4), D_RDY))
    A('s_mov_b64 exec, -1')
    A.label('AUX_arrived')
    A('s_cmp_ge_u32 %s, 108' % s(sID))
    A('s_cbranch_scc1 AUX_nomod')
    A('s_waitcnt vmcnt(22)')
    for i in range(9):
        x = C0 + i
        A('v_lshlrev_b32 v%d, 16, v%d' % (x, x))
        A('v_mul_f32 v64, 0x%x, v%d' % (f2u(-math.log2(math.e)), x))
        A('v_exp_f32 v64, v64')
        A('v_add_f32 v64, 1.0, v64')
        A('v_rcp_f32 v64, v64')
        A('v_mul_f32 v%d, v%d, v64' % (x, x))
        round1(A, x)
    AC = 68
    for j in range(8):
        A('v_mov_b32 v%d, 0' % (AC + j))
    for i in range(9):
        A('s_waitcnt vmcnt(%d)' % (21 - i))
        for q in range(4):
            w = W0 + 4 * i + q
            A('v_lshlrev_b32 v64, 16, v%d' % w)
            A('v_and_b32 v65, %s, v%d' % (s(sHI), w))
            A('v_fmac_f32 v%d, v64, v%d' % (AC + 2 * q, C0 + i))
            A('v_fmac_f32 v%d, v65, v%d' % (AC + 2 * q + 1, C0 + i))
    tick(A, opt, 2)
    A('v_mul_u32_u24 v9, 144, v1')
    A('v_lshl_add_u32 v9, v2, 5, v9')
    A('ds_write_b128 v9, %s' % v(AC, 4))
    A('ds_write_b128 v9, %s offset:16' % v(AC + 4, 4))
    A('s_waitcnt lgkmcnt(0)')
    A('s_barrier')
    A('s_cmp_lg_u32 s4, 0')
    A('s_cbranch_scc1 AUX_modst')
    A('v_lshrrev_b32 v9, 5, v0')
    A('v_mul_u32_u24 v9, %d, v9' % (32 * 144))
    A('v_and_b32 v64, 31, v0')
    A('v_lshl_add_u32 v9, v64, 2, v9')
    for r in range(32):
        A('ds_read_b32 v%d, v9 offset:%d' % (W0 + r, 144 * r))
    A('s_waitcnt lgkmcnt(0)')
    for stp in (16, 8, 4, 2, 1):
        for r in range(stp):
            A('v_add_f32 v%d, v%d, v%d' % (W0 + r, W0 + r, W0 + r + stp))
    A('v_mov_b32 v%d, v%d' % (W0 + 1, W0))
    A('v_permlane32_swap_b32 v%d, v%d' % (W0, W0 + 1))
    A('v_add_f32 v%d, v%d, v%d' % (W0, W0, W0 + 1))
    round1(A, W0)
    A('v_lshlrev_b32 v64, 2, v64')
    A('s_lshl_b32 %s, %s, 7' % (s(sT0), s(sID)))
    A('s_add_u32 %s, %s, 0x%x' % (s(sT0), s(sT0), MOD_OFF))
    A('s_mov_b32 exec_hi, 0')
    A('buffer_store_dword v%d, v64, %s, %s offen sc1' % (W0, WS, s(sT0)))
    A('s_mov_b64 exec, -1')
    dbg_wait(A, D_RDY, NAUX, 65, sT1, sSpin, 1, bar=False)
    tick(A, opt, 3)
    A('s_lshl_b32 %s, %s, 7' % (s(sT0), s(sID)))
    A('s_add_u32 %s, %s, 0x%x' % (s(sT0), s(sT0), FLAG_OFF + F_MOD))
    wave_signal(A, sT0, sNeed, 65)
    A.label('AUX_modst')
    A.label('AUX_nomod')
    A('s_cmp_ge_u32 %s, 128' % s(sID))
    A('s_cbranch_scc1 AUX_noln')
    X, SC, SH, T, DV = 10, 24, 36, 48, 128

    def total(reg, which):
        wave_sum(A, reg, 9)
    A('s_waitcnt vmcnt(1)')
    for r in range(4):
        for i in range(6):
            A('v_lshlrev_b32 v%d, 16, v%d' % (X + 2 * i, RAW + 6 * r + i))
            A('v_and_b32 v%d, %s, v%d' % (X + 2 * i + 1, s(sHI), RAW + 6 * r + i))
        ln_norm(A, X, 12, DV + 12 * r, T, total, sMASK)
    tick(A, opt, 4)
    dbg_wait(A, D_RDY, NAUX, 65, sT1, sSpin, 1)
    tick(A, opt, 5)
    A('v_lshlrev_b32 v1, 4, v5')
    A('s_mov_b32 %s, 0x%x' % (s(sT2), FLAG_OFF + F_MOD))
    poll(A, sT2, 36, sNeed, 64, True, sleep=1)
    tick(A, opt, 6)
    A('s_mov_b32 %s, 0x%x' % (s(sT0), MOD_OFF))
    A('s_mov_b32 %s, 0x%x' % (s(sT1), MOD_OFF + 2304))
    A('v_lshlrev_b32 v9, 1, v7')
    for q in range(3):
        A('buffer_load_dwordx4 %s, v%d, %s, %s offen offset:%d sc1' % (v(SH + 4 * q, 4), 9 if q == 2 else 1, WS, s(sT0), 1024 * q))
        A('buffer_load_dwordx4 %s, v%d, %s, %s offen offset:%d sc1' % (v(SC + 4 * q, 4), 9 if q == 2 else 1, WS, s(sT1), 1024 * q))
    A('s_waitcnt vmcnt(0)')
    for i in range(12):
        A('v_add_f32 v%d, 1.0, v%d' % (SC + i, SC + i))
    for i in range(0, 12, 2):
        round_pair(A, SC + i, SC + i + 1, 9)
    A('s_add_u32 %s, %s, 0x%x' % (s(sSrc), s(sSrc), H1_OFF))
    for r in range(4):
        ln_fin(A, DV + 12 * r, 12, SC, SH, RAW + 6 * r, 9)
        for q in range(3):
            if r == 3 and q == 2:
                A('s_add_u32 %s, %s, 1024' % (s(sSrc), s(sSrc)))
            A('buffer_store_dwordx2 %s, v%d, %s, %s offen offset:%d sc1' % (
                v(RAW + 6 * r + 2 * q, 2), 7 if q == 2 else 6, WS, s(sSrc), ROWB * r + (0 if (r, q) == (3, 2) else 512 * q)))
    A('s_lshl_b32 %s, %s, 7' % (s(sT2), s(sID)))
    A('s_add_u32 %s, %s, 0x%x' % (s(sT2), s(sT2), FLAG_OFF + F_H1))
    signal(A, sT2, sNeed, 9)
    tick(A, opt, 7)
    A.label('AUX_noln')
```

```python
import sys, json
from asmlib import Asm, v, a, s
from layout import *
import role_r
import roles

NAME = 'adaLN_cond__memory_aug_recurrent_mem_tr__glu_gated_bilinear__prompt'

def header(launches):
    ref = open('cdna_kernels/%s.s.ref' % NAME).read().split('\n')
    out = []
    for ln in ref:
        if not ln.startswith(';'):
            break
        if '@launch' in ln or 'Override launch' in ln or 'grid=ceil' in ln:
            continue
        out.append(ln)
    out += launches
    out.append('.amdgcn_target "amdgcn-amd-amdhsa--gfx950"')
    out.append('.text')
    return '\n'.join(out) + '\n'

def kernel_open(name):
    return '.globl %s\n.p2align 8\n.type %s,@function\n%s:\n' % (name, name, name)

def descriptor(name, vgpr=512, accum=256, sgpr=102):
    return ('.amdhsa_kernel %s\n  .amdhsa_next_free_vgpr %d\n  .amdhsa_next_free_sgpr %d\n  .amdhsa_accum_offset %d\n'
            '  .amdhsa_group_segment_fixed_size 0\n  .amdhsa_kernarg_size 128\n  .amdhsa_user_sgpr_count 2\n'
            '  .amdhsa_user_sgpr_kernarg_segment_ptr 1\n  .amdhsa_system_sgpr_workgroup_id_x 1\n'
            '  .amdhsa_float_denorm_mode_32 3\n'
            '.end_amdhsa_kernel\n' % (name, vgpr, sgpr, accum))

def common_prologue(A, nwg=256):
    A('s_cmp_ge_u32 s2, %d' % nwg)
    A('s_cbranch_scc1 L_exit')
    A('s_load_dwordx2 s[8:9], s[0:1], %d' % K_WS)
    A('s_load_dwordx2 s[12:13], s[0:1], %d' % K_DBG)
    A('s_mov_b32 s10, 0x%x' % WS_SIZE)
    A('s_mov_b32 s11, 0x20000')
    A('s_mov_b32 s14, 256')
    A('s_mov_b32 s15, 0x20000')
    A('s_getreg_b32 s5, hwreg(HW_REG_XCC_ID)')
    A('s_and_b32 s5, s5, 15')
    A('v_lshrrev_b32 v1, 6, v0')
    A('v_readfirstlane_b32 s4, v1')
    A('v_mov_b32 v2, 0')
    A('s_waitcnt lgkmcnt(0)')
    A('s_cmp_lg_u32 s4, 0')
    A('s_cbranch_scc1 L_tk_wait')
    A('s_mov_b64 exec, 1')
    A('s_cmp_eq_u32 s5, 0')
    A('s_cselect_b32 s6, 0, 128')
    A('s_cselect_b32 s7, 32, 224')
    A('v_mov_b32 v1, 1')
    A('buffer_atomic_add v1, off, s[12:15], s6 sc0')
    A('s_waitcnt vmcnt(0)')
    A('v_readfirstlane_b32 s3, v1')
    A('s_cmp_lt_u32 s3, s7')
    A('s_cbranch_scc1 L_tk_have')
    A('s_xor_b32 s6, s6, 128')
    A('v_mov_b32 v1, 1')
    A('buffer_atomic_add v1, off, s[12:15], s6 sc0')
    A('s_waitcnt vmcnt(0)')
    A('v_readfirstlane_b32 s3, v1')
    A.label('L_tk_have')
    A('s_lshr_b32 s6, s6, 2')
    A('s_add_u32 s3, s3, s6')
    A('v_mov_b32 v1, s3')
    A('ds_write_b32 v2, v1')
    A('s_waitcnt lgkmcnt(0)')
    A('s_mov_b64 exec, -1')
    A.label('L_tk_wait')
    A('s_barrier')
    A('ds_read_b32 v1, v2')
    A('s_waitcnt lgkmcnt(0)')
    A('v_readfirstlane_b32 s3, v1')
    A('s_barrier')

def small_prologue(A, n, exit_label):
    A('s_cmp_ge_u32 s2, %d' % n)
    A('s_cbranch_scc1 %s' % exit_label)
    A('s_load_dwordx2 s[8:9], s[0:1], %d' % K_WS)
    A('s_mov_b32 s10, 0x%x' % WS_SIZE)
    A('s_mov_b32 s11, 0x20000')
    A('v_lshrrev_b32 v1, 6, v0')
    A('v_readfirstlane_b32 s4, v1')
    A('s_mov_b32 %s, s2' % s(roles.sID))
    A('s_waitcnt lgkmcnt(0)')


def build_r_only(opt):
    A = Asm()
    common_prologue(A)
    A('s_cmp_lt_u32 s3, 32')
    A('s_cbranch_scc1 R_entry')
    A.label('L_exit')
    A('s_endpgm')
    role_r.gen_R(A, opt)
    body = A.finish()
    k = NAME + '_kernel'
    txt = header(['; @launch grid=(256,1,1) block=(256,1,1) lds=163840'])
    txt += kernel_open(k) + body
    txt += '.section .rodata,"a"\n.p2align 6\n' + descriptor(k)
    return txt


def build_merged(opt):
    opt = dict(opt, flags=True)
    k = NAME + '_kernel'
    L = ['; @launch grid=(256,1,1) block=(256,1,1) lds=163840']
    A = Asm()
    if opt.get('stamps'):
        A('s_memrealtime s[100:101]')
    common_prologue(A)
    A('s_cmp_lt_u32 s3, 32')
    A('s_cbranch_scc1 R_entry')
    A('s_cmp_ge_u32 s3, 256')
    A('s_cbranch_scc1 L_exit')
    A('s_sub_u32 s6, s3, 32')
    A('s_mul_i32 s7, s6, 9363')
    A('s_lshr_b32 s7, s7, 16')
    A('s_mul_i32 s3, s7, 7')
    A('s_sub_u32 s6, s6, s3')
    A('s_lshl_b32 %s, s7, 1' % s(roles.sID))
    A('s_add_u32 %s, %s, s6' % (s(roles.sID), s(roles.sID)))
    A('s_add_u32 s3, %s, 32' % s(roles.sID))
    A('s_cmp_lt_u32 s6, 2')
    A('s_cbranch_scc1 A1_entry')
    A('s_mul_i32 %s, s7, 5' % s(roles.sID))
    A('s_add_u32 %s, %s, s6' % (s(roles.sID), s(roles.sID)))
    A('s_sub_u32 %s, %s, 2' % (s(roles.sID), s(roles.sID)))
    A('s_mul_i32 s3, %s, 37' % s(roles.sID))
    A('s_mul_i32 s6, s3, 52429')
    A('s_lshr_b32 s6, s6, 23')
    A('s_mul_i32 s6, s6, 160')
    A('s_sub_u32 s3, s3, s6')
    A('s_add_u32 s3, s3, 96')
    roles.gen_aux(A, opt)
    base = 96
    for name, n in (('A2', 16 * opt.get('a2sets', 3)), ('DE', 72), ('CF', opt.get('ncf', roles.NCF))):
        A('s_sub_u32 %s, s3, %d' % (s(roles.sID), base))
        A('s_cmp_lt_u32 s3, %d' % (base + n))
        A('s_cbranch_scc1 %s_entry' % name)
        base += n
    A.label('L_exit')
    A('s_endpgm')
    role_r.gen_R(A, opt)
    roles.gen_A1(A, opt)
    roles.gen_A2(A, opt)
    roles.gen_CF(A, opt)
    roles.gen_DE(A, opt)
    code = kernel_open(k) + A.finish()
    return header(L) + code + '.section .rodata,"a"\n.p2align 6\n' + descriptor(k)


if __name__ == '__main__':
    opt = json.loads(sys.argv[2]) if len(sys.argv) > 2 else {}
    mode = opt.get('mode', 'r')
    fn = {'r': build_r_only}.get(mode) or globals()['build_' + mode]
    open(sys.argv[1], 'w').write(fn(opt))
```

```python
NSEG = 64
NH = 32
D = 576
ROWB = 1152

WS_SIZE = 0x10000000
OOB = 0x20000000

PART_OFF = 0x0
PART_BUF = 72 * 4096
MEMR_OFF = 0x100000
MEMR_STRIDE = 0x4000
FLAG_OFF = 0x144000
STAMP_OFF = 0x130000
MOD_OFF = 0x140000
H1_OFF = 0x200000
H2_OFF = 0x500000
KVM_OFF = 0x800000
KVM_BLK = 4096
QKV_OFF = 0x1800000
QKV_BLK = 24576
P2_OFF = 0x4800000
P2L_OFF = 0x6800000
P3_OFF = 0x7000000
P3L_OFF = 0xB800000

K_X, K_MEM0, K_WQ, K_WK, K_WV, K_WO, K_SEG, K_BX, K_WG, K_WU, K_WD, K_C, K_WMOD, K_OUT, K_DBG, K_WS = \
    [8 * i for i in range(16)]

F_A1 = 0x000
F_R = 0x1000
F_A2 = 0x2000
F_C = 0x22000
F_DE = 0x62000
F_MOD = 0xAA000
F_H1 = 0xAE000
FLAG_BYTES = 0xB4000
STAMP2_OFF = 0x110000
```

```python
import math
import struct
from asmlib import v, a, s
from layout import *


def f2u(x):
    return struct.unpack('<I', struct.pack('<f', x))[0]


SRD_WS, SRD_DBG, SRD_A, SRD_B, SRD_C = 8, 12, 16, 20, 24
sH, sStep, sPW0, sPW1, sPR, sPRst, sMRd, sMWr, sMPrev, sKV, sKVM, sC, sUnit, sSpin = range(28, 42)
sSelBit = 90
sPF, sM0K, sM0P, sM0F = 96, 97, 98, 99
sOnes = 88
sNeedKV = 91
sFA1 = 92
sC2 = 94
sQMASK = 42
sSEL = 44
sPLO, sPHI = 52, 53
sT0, sT1, sT2, sT3 = 54, 55, 56, 57
sPB = 58
sUOFF = 59
sA1 = 60
sFLAGO = 61
sKVMK = 62
sMRd1, sMRd2 = 63, 6
sST = 64

vIdx, vL16, vPartOff, vPart8, vPub, vXW, vXR, vOW, vOR, vWo = range(0, 10)
VP = 10
M = [12 + 4 * m for m in range(9)]
AQ = [48 + 4 * t for t in range(4)]
RA, RB = 64, 72
AV = [64, 68]
SP0, SP1 = 72, 76
sTag, sTag2 = 33, 7
sCK = 40

L_WO = 0
L_KT = 147456
L_X = L_KT + 8192
L_O = L_X + 16 * 272
L_MISC = L_O + 8 * 272


KORD = [8, 0, 2, 4, 6, 1, 3, 5, 7]


def wfrag(f):
    return a(8 * f, 8) if f < 32 else v(80 + 8 * (f - 32), 8)


def wfreg(f, r):
    return a(8 * f + r) if f < 32 else v(80 + 8 * (f - 32) + r)


def f_qk(m, t):
    return 3 * m + t


def f_wo(j):
    return 27 + j


def wqk(m, t):
    return wfrag(f_qk(m, t))


def wv(m, t):
    return v(112 + 16 * m + 8 * t, 8)


def rowadd(r, b):
    return 32 * (r >> 2) + 8 * (r & 1) + 2 * ((r >> 1) & 1) + b


class Stream:
    def __init__(self, A, window):
        self.A, self.window, self.batches = A, window, []

    def add(self, n, issue, consume, regs=()):
        self.batches.append((n, issue, consume, set(regs)))

    def run(self):
        A = self.A
        q, out, i = [], 0, 0
        B = self.batches
        while i < len(B) or q:
            while i < len(B) and out + B[i][0] <= self.window and not any(B[i][3] & x[3] for x in q):
                B[i][1]()
                q.append(B[i])
                out += B[i][0]
                i += 1
            n, _, consume, _ = q.pop(0)
            out -= n
            A('s_waitcnt vmcnt(%d)' % out)
            consume()


def srd(A, reg, karg, size):
    A('s_load_dwordx2 %s, s[0:1], %d' % (s(reg, 2), karg))
    A('s_mov_b32 %s, 0x%x' % (s(reg + 2), size))
    A('s_mov_b32 %s, 0x20000' % s(reg + 3))


def wait_kv(A, vt):
    l0, l1 = A.newlabel('R_kv'), A.newlabel('R_kvok')
    A.label(l0)
    A('v_lshrrev_b32 v%d, 2, %s' % (vt, v(vL16)))
    A('v_and_b32 v%d, 4, v%d' % (vt, vt))
    A('buffer_load_dword v%d, v%d, %s, %s offen sc1' % (vt, vt, s(SRD_WS, 4), s(sFA1)))
    A('s_waitcnt vmcnt(0)')
    A('v_readlane_b32 %s, v%d, 0' % (s(sA1), vt))
    A('v_readlane_b32 %s, v%d, 1' % (s(sT3), vt))
    A('s_lshl_b32 %s, %s, 1' % (s(sA1), s(sA1)))
    A('s_lshl_b32 %s, %s, 1' % (s(sT3), s(sT3)))
    A('s_add_u32 %s, %s, 1' % (s(sT3), s(sT3)))
    A('s_min_u32 %s, %s, %s' % (s(sA1), s(sA1), s(sT3)))
    A('s_cmp_gt_u32 %s, %s' % (s(sA1), s(sNeedKV)))
    A('s_cbranch_scc1 %s' % l1)
    A('s_sleep 1')
    A('s_sub_u32 %s, %s, 1' % (s(sSpin), s(sSpin)))
    A('s_cmp_gt_i32 %s, 0' % s(sSpin))
    A('s_cbranch_scc1 %s' % l0)
    A.label(l1)


def gen_R(A, opt):
    stamps = opt.get('stamps', False)
    flags = opt.get('flags', True)
    nsteps = NSEG
    A.label('R_entry')
    if stamps:
        A('s_memrealtime %s' % s(sST + 22, 2))
    A('s_mov_b32 %s, s3' % s(sH))
    A('v_and_b32 v20, 63, v0')
    A('v_and_b32 v21, 15, v20')
    A('v_lshrrev_b32 v22, 4, v20')
    A('v_lshlrev_b32 %s, 4, v20' % v(vL16))
    A('v_lshrrev_b32 v23, 2, v21')
    A('v_and_b32 v24, 1, v21')
    A('v_lshl_add_u32 v23, v23, 1, v24')
    A('v_mov_b32 v26, 0x4444')
    A('v_mov_b32 v27, 0xeeee')
    A('v_cmp_eq_u32 vcc, 1, v24')
    A('v_cndmask_b32 %s, v26, v27, vcc' % v(vIdx))
    A('v_lshlrev_b32 v27, 5, v22')
    A('v_lshl_add_u32 v27, v24, 4, v27')
    A('v_lshrrev_b32 v25, 1, v21')
    A('v_mul_u32_u24 v26, 272, v25')
    A('v_add_u32 v28, v26, v27')
    A('v_add_u32 %s, %d, v28' % (v(vOR), L_O))
    A('v_mul_u32_u24 v26, 272, v23')
    A('s_lshl_b32 %s, s4, 6' % s(sT0))
    A('v_lshl_add_u32 v28, v22, 4, v26')
    A('v_add_u32 v28, %s, v28' % s(sT0))
    A('v_add_u32 %s, %d, v28' % (v(vOW), L_O))
    A('v_mul_u32_u24 v26, 272, v21')
    A('v_lshl_add_u32 v26, v22, 4, v26')
    A('v_add_u32 %s, %d, v26' % (v(vXR), L_X))
    A('s_cmp_lt_u32 s4, 2')
    A('s_cselect_b32 %s, 544, 0' % s(sT0))
    A('s_and_b32 %s, s4, 1' % s(sT1))
    A('s_lshl_b32 %s, %s, 7' % (s(sT1), s(sT1)))
    A('s_add_u32 %s, %s, %s' % (s(sT0), s(sT0), s(sT1)))
    A('s_add_u32 %s, %s, %d' % (s(sT0), s(sT0), L_X))
    A('v_mul_u32_u24 v26, 1088, v22')
    A('v_lshl_add_u32 v26, v21, 3, v26')
    A('v_add_u32 %s, %s, v26' % (v(vXW), s(sT0)))
    A('s_mul_i32 %s, s4, 36864' % s(sT0))
    A('v_add_u32 %s, %s, %s' % (v(vWo), s(sT0), v(vL16)))
    A('v_lshrrev_b32 v27, 3, v21')
    A('v_lshl_add_u32 v27, v22, 1, v27')
    A('s_lshl_b32 %s, s4, 4' % s(sT0))
    A('v_add_u32 v27, %s, v27' % s(sT0))
    A('v_lshlrev_b32 v27, 12, v27')
    A('v_and_b32 v28, 7, v21')
    A('v_lshl_add_u32 v27, v28, 4, v27')
    A('s_lshl_b32 %s, %s, 7' % (s(sT0), s(sH)))
    A('v_add_u32 %s, %s, v27' % (v(vPartOff), s(sT0)))
    A('s_lshr_b32 %s, s4, 1' % s(sT1))
    A('s_add_u32 %s, %s, 64' % (s(sT1), s(sT1)))
    A('s_lshl_b32 %s, %s, 12' % (s(sT1), s(sT1)))
    A('s_add_u32 %s, %s, %s' % (s(sT0), s(sT0), s(sT1)))
    A('s_and_b32 %s, s4, 1' % s(sT1))
    A('s_lshl_b32 %s, %s, 6' % (s(sT1), s(sT1)))
    A('s_add_u32 %s, %s, %s' % (s(sT0), s(sT0), s(sT1)))
    A('v_lshlrev_b32 v26, 13, v22')
    A('v_lshl_add_u32 v26, v21, 2, v26')
    A('v_add_u32 %s, %s, v26' % (v(vPart8), s(sT0)))
    A('s_lshl_b32 %s, s4, 5' % s(sUnit))
    A('s_add_u32 %s, %s, %s' % (s(sUnit), s(sUnit), s(sH)))
    A('s_lshl_b32 %s, %s, 12' % (s(sT0), s(sUnit)))
    A('s_lshr_b32 %s, %s, 3' % (s(sT1), s(sUnit)))
    A('s_lshl_b32 %s, %s, 7' % (s(sT3), s(sT1)))
    A('s_and_b32 %s, %s, 1' % (s(sT2), s(sT1)))
    A('s_lshl_b32 %s, %s, 2' % (s(sT2), s(sT2)))
    A('s_lshr_b32 %s, %s, 1' % (s(sPB), s(sT1)))
    A('s_add_u32 %s, %s, %s' % (s(sT2), s(sT2), s(sPB)))
    A('s_add_u32 %s, %s, 1' % (s(sT2), s(sT2)))
    A('s_cmp_eq_u32 %s, 8' % s(sT1))
    A('s_cselect_b32 %s, 0, %s' % (s(sT1), s(sT2)))
    A('s_lshl_b32 %s, %s, 10' % (s(sT1), s(sT1)))
    A('s_and_b32 %s, %s, 1' % (s(sT2), s(sUnit)))
    A('s_lshl_b32 %s, %s, 9' % (s(sPB), s(sT2)))
    A('s_add_u32 %s, %s, %s' % (s(sT1), s(sT1), s(sPB)))
    A('s_lshl_b32 %s, %s, 6' % (s(sPB), s(sT2)))
    A('s_add_u32 %s, %s, %s' % (s(sT3), s(sT3), s(sPB)))
    A('s_and_b32 %s, %s, 6' % (s(sT2), s(sUnit)))
    A('s_lshl_b32 %s, %s, 5' % (s(sPB), s(sT2)))
    A('s_add_u32 %s, %s, %s' % (s(sT1), s(sT1), s(sPB)))
    A('s_mul_i32 %s, %s, 1152' % (s(sPB), s(sT2)))
    A('s_add_u32 %s, %s, %s' % (s(sT3), s(sT3), s(sPB)))
    A('s_cmp_lt_u32 %s, 72' % s(sUnit))
    A('s_cselect_b32 %s, %s, 0x%x' % (s(sUOFF), s(sT0), OOB))
    A('s_cselect_b32 %s, %s, 0x%x' % (s(sT1), s(sT1), OOB))
    A('v_lshrrev_b32 v26, 2, v21')
    A('v_lshlrev_b32 v26, 8, v26')
    A('v_lshl_add_u32 v26, v22, 5, v26')
    A('v_and_b32 v27, 3, v21')
    A('v_lshl_add_u32 v26, v27, 3, v26')
    A('v_add_u32 v26, %s, v26' % s(sT1))
    A('v_mov_b32 v27, 0x%x' % OOB)
    A('v_and_b32 v28, 0x28, v20')
    A('v_cmp_eq_u32 vcc, 0, v28')
    A('v_cndmask_b32 %s, v27, v26, vcc' % v(vPub))
    A('v_mul_u32_u24 v29, 1152, v22')
    A('v_lshl_add_u32 v29, v21, 3, v29')
    A('v_add_u32 v29, %s, v29' % s(sT3))
    srd(A, SRD_A, K_MEM0, 8 * ROWB)
    A('s_mov_b32 %s, 0xcccccccc' % s(sQMASK))
    A('s_mov_b32 %s, 0xcccccccc' % s(sQMASK + 1))
    A('s_cmp_lt_u32 %s, 64' % s(sUnit))
    A('s_cselect_b32 %s, 4, 6' % s(sSelBit))
    for q in range(4):
        A('s_mov_b32 %s, 0x%x' % (s(sT0), 0x00110011 << q))
        A('s_cselect_b32 %s, 0x%x, %s' % (s(sSEL + 2 * q), 0x00030003 << (2 * q), s(sT0)))
        A('s_mov_b32 %s, %s' % (s(sSEL + 2 * q + 1), s(sSEL + 2 * q)))
    A('s_mov_b32 %s, 0x05040100' % s(sPLO))
    A('s_mov_b32 %s, 0x07060302' % s(sPHI))
    A('s_mov_b32 %s, 0x%x' % (s(sC), f2u(128 ** -0.5 * math.log2(math.e))))
    A('s_mov_b32 %s, %d' % (s(sSpin), opt.get('spin', 200000)))

    for i in range(4):
        A('v_mov_b32 v%d, -1' % (SP1 + i))
    A('s_add_u32 %s, %s, %d' % (s(sPR), s(sUOFF), PART_OFF))
    for i in range(4):
        A('buffer_store_dwordx4 %s, %s, %s, %s offen offset:%d sc1' % (v(SP1, 4), v(vL16), s(SRD_WS, 4), s(sPR), 1024 * i))
    for i in range(1, 3):
        A('s_mov_b32 %s, 0x%x' % (s(sT0), MEMR_OFF + i * MEMR_STRIDE))
        A('buffer_store_dwordx2 %s, %s, %s, %s offen sc1' % (v(SP1, 2), v(vPub), s(SRD_WS, 4), s(sT0)))
    A('s_waitcnt lgkmcnt(0)')
    A('buffer_load_dwordx2 v[30:31], v29, %s, 0 offen' % s(SRD_A, 4))
    A('s_mov_b32 %s, 0x%x' % (s(sT0), MEMR_OFF))
    A('s_waitcnt vmcnt(0)')
    A('buffer_store_dwordx2 v[30:31], %s, %s, %s offen sc1' % (v(vPub), s(SRD_WS, 4), s(sT0)))
    A('s_waitcnt vmcnt(0)')
    A('s_barrier')
    lab = A.newlabel('R_noarrive')
    A('s_cmp_lg_u32 s4, 0')
    A('s_cbranch_scc1 %s' % lab)
    A('s_cmp_eq_u32 s5, 0')
    A('s_cselect_b32 %s, 1, 0x10001' % s(sT0))
    if opt.get('force_slow'):
        A('s_mov_b32 %s, 0x10001' % s(sT0))
    A('v_mov_b32 v26, %s' % s(sT0))
    A('s_mov_b64 exec, 1')
    A('buffer_atomic_add v26, off, %s, 0 offset:8' % s(SRD_DBG, 4))
    A('s_mov_b64 exec, -1')
    A.label(lab)

    srd(A, SRD_A, K_WO, 4096 * ROWB)
    A('s_load_dwordx2 %s, s[0:1], %d' % (s(SRD_B, 2), K_WQ))
    A('s_load_dwordx2 %s, s[0:1], %d' % (s(sT2, 2), K_WK))
    A('s_mov_b32 %s, 0x%x' % (s(SRD_B + 2), 576 * 8192))
    A('s_mov_b32 %s, 0x20000' % s(SRD_B + 3))
    srd(A, SRD_C, K_WV, 576 * 8192)
    A('v_lshrrev_b32 v26, 1, v22')
    A('v_lshlrev_b32 v26, 4, v26')
    A('v_and_b32 v27, 1, v22')
    A('v_lshl_add_u32 v26, v27, 2, v26')
    A('s_lshl_b32 %s, %s, 7' % (s(sT0), s(sH)))
    A('v_add_u32 v27, %s, v26' % s(sT0))
    A('v_mul_u32_u24 v27, 1152, v27')
    A('s_lshl_b32 %s, s4, 8' % s(sT0))
    A('v_lshl_add_u32 v28, v21, 3, v27')
    A('v_add_u32 v12, %s, v28' % s(sT0))
    A('s_lshl_b32 %s, s4, 5' % s(sT0))
    A('s_add_u32 %s, %s, 1024' % (s(sT0), s(sT0)))
    A('v_lshl_add_u32 v28, v21, 1, v27')
    A('v_add_u32 v13, %s, v28' % s(sT0))
    A('v_lshlrev_b32 v27, 13, v26')
    A('s_lshl_b32 %s, %s, 8' % (s(sT0), s(sH)))
    A('v_add_u32 v27, %s, v27' % s(sT0))
    A('s_and_b32 %s, s4, 1' % s(sT0))
    A('s_lshl_b32 %s, %s, 7' % (s(sT0), s(sT0)))
    A('v_lshl_add_u32 v28, v21, 3, v27')
    A('v_add_u32 v14, %s, v28' % s(sT0))
    A('s_lshl_b32 %s, s4, 6' % s(sT0))
    A('v_lshl_add_u32 v28, v21, 2, v27')
    A('v_add_u32 v15, %s, v28' % s(sT0))
    A('s_waitcnt lgkmcnt(0)')
    A('s_cmp_lt_u32 s4, 2')
    A('s_cselect_b32 %s, %s, %s' % (s(SRD_B), s(SRD_B), s(sT2)))
    A('s_cselect_b32 %s, %s, %s' % (s(SRD_B + 1), s(SRD_B + 1), s(sT2 + 1)))
    nt = ' nt' if opt.get('nt', True) else ''

    st = Stream(A, 60)
    TMP = [48, 52, 56, 60]

    def wo_issue(m, rh):
        base = 128 + 32 * (2 * m + rh)
        for r1 in range(2):
            A('s_mov_b32 %s, %d' % (s(sT0), (64 * m + 32 * rh + 8 * r1) * ROWB))
            for r2 in range(2):
                for b in range(2):
                    r = 2 * r2 + r1
                    for i in range(2):
                        A('buffer_load_dwordx2 %s, v12, %s, %s offen offset:%d%s' % (
                            v(base + 8 * r + 4 * b + 2 * i, 2), s(SRD_A, 4), s(sT0), (2 * r2 + b) * ROWB + 128 * i, nt))

    def put(f, r, src):
        if f < 32:
            A('v_accvgpr_write_b32 %s, v%d' % (wfreg(f, r), src))
        else:
            A('v_mov_b32 %s, v%d' % (wfreg(f, r), src))

    def wo_consume(m, rh):
        base = 128 + 32 * (2 * m + rh)
        for j in range(8):
            o = TMP[j & 3]
            for r in range(4):
                A('v_perm_b32 v%d, v%d, v%d, %s' % (o + r, base + 8 * r + 4 + (j >> 1), base + 8 * r + (j >> 1),
                                                   s(sPHI if j & 1 else sPLO)))
            if m == 1:
                A('ds_write_b128 %s, %s offset:%d' % (v(vWo), v(o, 4), (9 + j) * 2048 + rh * 1024))
            else:
                for r in range(4):
                    put(f_wo(j), 4 * rh + r, o + r)

    def wo8_issue(m):
        for r in range(8):
            if (r >> 1) & 1 == 0:
                pass
            A('s_mov_b32 %s, %d' % (s(sT0), (64 * m + rowadd(r, 0)) * ROWB))
            for b in range(2):
                A('buffer_load_ushort v%d, v13, %s, %s offen offset:%d%s' % (
                    16 + 16 * m + 2 * r + b, s(SRD_A, 4), s(sT0), b * ROWB, nt))

    def wo8_consume(m):
        for rh in range(2):
            o = TMP[rh]
            for r in range(4):
                rr = 16 + 16 * m + 2 * (4 * rh + r)
                A('v_lshl_or_b32 v%d, v%d, 16, v%d' % (o + r, rr + 1, rr))
            if m == 1:
                A('ds_write_b128 %s, %s offset:%d' % (v(vWo), v(o, 4), (9 + 8) * 2048 + rh * 1024))
            else:
                for r in range(4):
                    put(f_wo(8), 4 * rh + r, o + r)

    for m in range(2):
        for rh in range(2):
            st.add(16, lambda m=m, rh=rh: wo_issue(m, rh), lambda m=m, rh=rh: wo_consume(m, rh),
                   range(128 + 32 * (2 * m + rh), 160 + 32 * (2 * m + rh)))
    for m in range(2):
        st.add(16, lambda m=m: wo8_issue(m), lambda m=m: wo8_consume(m))

    def qk_raw(m, i, n=1):
        return v(128 + 32 * (m & 3) + i, n)

    def qk_issue(m):
        for r in range(8):
            for b in range(2):
                A('s_mov_b32 %s, %d' % (s(sT0), (64 * m + rowadd(r, b)) * 8192))
                A('buffer_load_dwordx2 %s, v14, %s, %s offen%s' % (qk_raw(m, 4 * r + 2 * b, 2), s(SRD_B, 4), s(sT0), nt))

    def qk_consume(m):
        base = 128 + 32 * (m & 3)
        for t in range(4):
            for r in range(8):
                lo, hi = base + 4 * r + (t >> 1), base + 4 * r + 2 + (t >> 1)
                sel = s(sPHI if t & 1 else sPLO)
                tmp = 48 + 8 * (t & 1) + r
                A('v_perm_b32 v%d, v%d, v%d, %s' % (tmp, hi, lo, sel))
                if t < 3:
                    put(f_qk(m, t), r, tmp)
            if t == 3:
                A('ds_write_b128 %s, %s offset:%d' % (v(vWo), v(56, 4), m * 2048))
                A('ds_write_b128 %s, %s offset:%d' % (v(vWo), v(60, 4), m * 2048 + 1024))

    for m in range(9):
        st.add(16, lambda m=m: qk_issue(m), lambda m=m: qk_consume(m), range(128 + 32 * (m & 3), 160 + 32 * (m & 3)))

    def v_issue(m):
        for r in range(8):
            for b in range(2):
                A('s_mov_b32 %s, %d' % (s(sT0), (64 * m + rowadd(r, b)) * 8192))
                A('buffer_load_dword v%d, v15, %s, %s offen%s' % (112 + 16 * m + 8 * b + r, s(SRD_C, 4), s(sT0), nt))

    def v_consume(m):
        for r in range(8):
            t0, t1 = 112 + 16 * m + r, 112 + 16 * m + 8 + r
            tmp = 16 + (r & 7)
            A('v_perm_b32 v%d, v%d, v%d, %s' % (tmp, t1, t0, s(sPLO)))
            A('v_perm_b32 v%d, v%d, v%d, %s' % (t1, t1, t0, s(sPHI)))
            A('v_mov_b32 v%d, v%d' % (t0, tmp))

    for m in (0, 3, 4, 5, 6, 7, 8, 1, 2):
        st.add(16, lambda m=m: v_issue(m), lambda m=m: v_consume(m), range(112 + 16 * m, 128 + 16 * m))
    st.run()

    A('s_mov_b32 %s, 0' % s(sStep))
    A('s_mov_b32 %s, 0x%x' % (s(sMRd), MEMR_OFF))
    A('s_mov_b32 %s, 0' % s(sTag))
    A('s_mov_b32 %s, 0' % s(sTag2))
    A('s_mov_b32 %s, %d' % (s(sPW1), PART_OFF + 32768))
    A('s_mov_b32 %s, %s' % (s(sC2), s(sC)))
    A('s_mov_b32 %s, %s' % (s(sC2 + 1), s(sC)))
    A('s_mov_b32 %s, 0x%x' % (s(sMRd1), MEMR_OFF + 4096))
    A('s_mov_b32 %s, 0x%x' % (s(sMRd2), MEMR_OFF + 8192))
    A('s_mov_b32 %s, 0x%x' % (s(sMWr), MEMR_OFF + MEMR_STRIDE))
    A('s_mov_b32 %s, 0x%x' % (s(sMPrev), MEMR_OFF + 2 * MEMR_STRIDE))
    A('s_mov_b32 %s, %d' % (s(sPB), PART_OFF))
    A('s_mul_i32 %s, %s, %d' % (s(sKV), s(sH), QKV_BLK))
    A('s_add_u32 %s, %s, 0x%x' % (s(sKV), s(sKV), QKV_OFF))
    A('s_mul_i32 %s, %s, %d' % (s(sKVM), s(sH), KVM_BLK))
    A('s_add_u32 %s, %s, 0x%x' % (s(sKVM), s(sKVM), KVM_OFF))
    A('s_and_b32 %s, s4, 1' % s(sT0))
    A('s_lshl_b32 %s, %s, 10' % (s(sT0), s(sT0)))
    A('s_add_u32 %s, %s, %s' % (s(sKVMK), s(sKVM), s(sT0)))
    A('s_cmp_ge_u32 s4, 2')
    A('s_cselect_b32 %s, %s, 0x%x' % (s(sKVMK), s(sKVMK), OOB))
    A('s_lshl_b32 %s, s4, 9' % s(sT0))
    A('s_add_u32 %s, %s, %s' % (s(sKVM), s(sKVM), s(sT0)))
    A('s_add_u32 %s, %s, 2048' % (s(sKVM), s(sKVM)))
    lw, lw2 = A.newlabel('R_team'), A.newlabel('R_teamok')
    A.label(lw)
    A('buffer_load_dword v26, off, %s, 0 offset:8 sc1' % s(SRD_DBG, 4))
    A('s_waitcnt vmcnt(0) lgkmcnt(0)')
    A('v_readfirstlane_b32 %s, v26' % s(sT0))
    A('s_and_b32 %s, %s, 0xffff' % (s(sT1), s(sT0)))
    A('s_cmp_ge_u32 %s, 32' % s(sT1))
    A('s_cbranch_scc1 %s' % lw2)
    A('s_sub_u32 %s, %s, 1' % (s(sSpin), s(sSpin)))
    A('s_cmp_gt_i32 %s, 0' % s(sSpin))
    A('s_cbranch_scc1 %s' % lw)
    A.label(lw2)
    A('s_lshl_b32 %s, %s, 7' % (s(sFA1), s(sH)))
    A('s_add_u32 %s, %s, 0x%x' % (s(sFA1), s(sFA1), FLAG_OFF + F_A1))
    A('s_lshl_b32 %s, %s, 7' % (s(sFLAGO), s(sH)))
    A('s_add_u32 %s, %s, 0x%x' % (s(sFLAGO), s(sFLAGO), FLAG_OFF + F_R))
    A('s_cmp_eq_u32 s4, 3')
    A('s_cselect_b32 %s, %s, 0x%x' % (s(sFLAGO), s(sFLAGO), OOB))
    A('s_mov_b32 %s, %d' % (s(sA1), 0 if flags else 64))
    A('s_mov_b32 %s, 0' % s(sNeedKV))
    if flags:
        import roles
        roles.dbg_wait(A, roles.D_RDY, roles.NAUX, 26, sT1, sSpin)
        wait_kv(A, 26)
    A('s_lshl_b32 %s, s4, 11' % s(sT1))
    A('s_add_u32 %s, %s, %d' % (s(sM0K), s(sT1), L_KT))
    A('s_mov_b32 m0, %s' % s(sM0K))
    A('s_lshl_b32 %s, s4, 8' % s(sM0P))
    A('s_add_u32 %s, %s, %d' % (s(sM0P), s(sM0P), L_MISC))
    A('s_lshl_b32 %s, s4, 4' % s(sM0F))
    A('s_add_u32 %s, %s, %d' % (s(sM0F), s(sM0F), L_MISC + 1024))
    A('s_mov_b32 %s, 0x3f803f80' % s(sOnes))
    A('s_mov_b32 %s, 0x3f803f80' % s(sOnes + 1))
    A('s_lshl_b32 %s, s4, 12' % s(sPF))
    A('s_add_u32 %s, %s, %s' % (s(sPF), s(sPF), s(sKV)))
    A('s_add_u32 %s, %s, %d' % (s(sPF), s(sPF), 2 * NH * QKV_BLK + 8192))
    A('s_add_u32 %s, %s, %s' % (s(sKV), s(sKV), s(sT1)))
    A('s_add_u32 %s, %s, 16384' % (s(sKV), s(sKV)))
    A('s_sub_u32 %s, %s, 8192' % (s(sT1), s(sKV)))
    A('buffer_load_dwordx4 %s, %s, %s offen sc1 lds' % (v(vL16), s(SRD_WS, 4), s(sT1)))
    A('buffer_load_dwordx4 %s, %s, %s offen offset:1024 sc1 lds' % (v(vL16), s(SRD_WS, 4), s(sT1)))
    for i in range(48, 64, 2):
        A('v_mov_b64 %s, 0' % v(i, 2))
    A('s_waitcnt lgkmcnt(0)')
    for q in range(2):
        ring = RB if q % 2 == 0 else RA
        A('ds_read_b128 %s, %s offset:%d' % (v(ring, 4), v(vWo), KORD[q] * 2048))
        A('ds_read_b128 %s, %s offset:%d' % (v(ring + 4, 4), v(vWo), KORD[q] * 2048 + 1024))
    A('s_waitcnt vmcnt(0) lgkmcnt(0)')
    A('s_barrier')
    if stamps:
        for i in range(16):
            A('s_mov_b32 %s, 0' % s(sST + 4 + i))
        A('s_memrealtime %s' % s(sST, 2))
        A('s_waitcnt lgkmcnt(0)')
        A('s_mov_b32 %s, %s' % (s(sST + 4 + 11), s(sST)))
        A('s_sub_u32 %s, %s, %s' % (s(sST + 4 + 10), s(sST), s(sST + 22)))
        A('s_memtime %s' % s(sST, 2))
        A('s_waitcnt lgkmcnt(0)')
    A('s_lshr_b32 %s, %s, 16' % (s(sT0), s(sT0)))
    A('s_cmp_lg_u32 %s, 0' % s(sT0))
    A('s_cbranch_scc1 R_loop_slow')
    gen_loop(A, opt, 'fast')
    gen_loop(A, opt, 'slow')


def gen_loop(A, opt, mode):
    stamps = opt.get('stamps', False)
    stsel = opt.get('stsel', list(range(8)))
    flags = opt.get('flags', True)
    sc = ' sc1' if mode == 'slow' else ''
    L = lambda n: 'R_%s_%s' % (n, mode)
    WS = s(SRD_WS, 4)
    NFIRST = opt.get('nfirst', 5)
    BLK = NH * QKV_BLK
    noslow = opt.get('noslow', 0)
    if noslow & 1:
        BLK = 0
    KSC = '' if noslow & 2 else ' sc1'

    def stamp(i):
        if not stamps or i not in stsel:
            return
        A('s_memtime %s' % s(sST + 2, 2))
        A('s_waitcnt lgkmcnt(0)')
        A('s_sub_u32 %s, %s, %s' % (s(sT3), s(sST + 2), s(sST)))
        A('s_add_u32 %s, %s, %s' % (s(sST + 4 + i), s(sST + 4 + i), s(sT3)))
        A('s_mov_b32 %s, %s' % (s(sST), s(sST + 2)))

    def smf(d, aa, b):
        A('v_smfmac_f32_16x16x64_bf16 %s, %s, %s, %s' % (v(d, 4), v(aa, 4), b, v(vIdx)))

    def vs(q, t):
        smf(AV[t], M[q], wv(KORD[q], t))

    def mload(q):
        A('buffer_load_dwordx4 %s, %s, %s, %s offen offset:%d sc1' % (
            v(M[q], 4), v(vL16), WS, s([sMRd, sMRd1, sMRd2][q >> 2]), 1024 * (q & 3)))

    def check(q):
        A('v_cmp_u_f32 vcc, v%d, v%d' % (M[q], M[q] + 2))

    def ldshalf(dst, slot, h):
        A('ds_read_b128 %s, %s offset:%d' % (v(dst + 4 * h, 4), v(vWo), slot * 2048 + 1024 * h))

    def ldsfrag(dst, slot):
        ldshalf(dst, slot, 0)
        ldshalf(dst, slot, 1)

    def z2(r):
        A('v_mov_b64 %s, 0' % v(r, 2))

    ring = lambda q: RB if q % 2 == 0 else RA

    A('.p2align 6')
    A.label(L('loop'))
    pace = opt.get('pace', 14)
    late = []
    if opt.get('late_prep'):
        late = [lambda i=i: z2(i) for i in range(48, 64, 2)]
    for q in range(NFIRST):
        mload(q)
        if q >= opt.get('pace_from', 0) and q < NFIRST - 1:
            k = pace
            while k > 0 and late:
                late.pop(0)()
                k -= 1
            if k > 0:
                A('s_nop %d' % (k - 1))
    for f in late:
        f()
    A.label(L('mpoll'))
    A('s_waitcnt vmcnt(%d)' % (NFIRST - 1))
    check(0)
    A('s_cbranch_vccnz %s' % L('retry0'))
    A.label(L('mok0'))
    stamp(0)
    issued = NFIRST
    extra = 0
    burst = opt.get('burst', 2)
    for q in range(9):
        m = KORD[q]
        smf(AQ[0], M[q], wqk(m, 0))
        if issued < 9 and burst >= 2:
            mload(issued)
            issued += 1
        if q < 8:
            A('s_waitcnt vmcnt(%d)' % (issued - 1 - (q + 1) + extra))
            check(q + 1)
        else:
            z2(RA)
        smf(AQ[1], M[q], wqk(m, 1))
        if issued < 9:
            mload(issued)
            issued += 1
        if q == 8:
            z2(RA + 2)
        smf(AQ[2], M[q], wqk(m, 2))
        if q >= 2:
            A('s_waitcnt lgkmcnt(%d)' % (2 if q < 8 else 0))
        if q < 8:
            A('s_cbranch_vccnz %s' % L('retry%d' % (q + 1)))
            A.label(L('mok%d' % (q + 1)))
        else:
            z2(RA + 4)
        smf(AQ[3], M[q], v(ring(q), 8))
        if q + 2 < 9:
            ldsfrag(ring(q), KORD[q + 2])
        if q == 8:
            z2(RA + 6)
    assert issued == 9
    T = M[0]
    VT = [RB, RB + 4]
    vs(0, 0)
    A('buffer_load_dwordx4 %s, %s, %s, %s offen sc1' % (v(VT[0], 4), v(vL16), WS, s(sKV)))
    A('v_add_u32 v%d, %d, %s' % (VP, L_KT, v(vL16)))
    vs(0, 1)
    A('buffer_load_dwordx4 %s, %s, %s, %s offen offset:1024 sc1' % (v(VT[1], 4), v(vL16), WS, s(sKV)))
    for t in range(4):
        A('v_add_f32 v%d, v%d, v%d' % (AQ[t], AQ[t], AQ[t] + 1))
        A('v_add_f32 v%d, v%d, v%d' % (AQ[t] + 1, AQ[t] + 2, AQ[t] + 3))
    A('v_cvt_pk_bf16_f32 v%d, v%d, v%d' % (T, AQ[0], AQ[1]))
    A('v_cvt_pk_bf16_f32 v%d, v%d, v%d' % (T + 1, AQ[2], AQ[3]))
    A('v_cvt_pk_bf16_f32 v%d, v%d, v%d' % (T + 2, AQ[0] + 1, AQ[1] + 1))
    A('v_cvt_pk_bf16_f32 v%d, v%d, v%d' % (T + 3, AQ[2] + 1, AQ[3] + 1))
    vs(1, 0)
    A('ds_write2_b64 %s, %s, %s offset0:0 offset1:34' % (v(vXW), v(T, 2), v(T + 2, 2)))
    stamp(1)
    KT = {(0, 0): AQ[0], (0, 1): AQ[1], (1, 0): AQ[2], (1, 1): AQ[3], (2, 0): M[4], (2, 1): M[5], (3, 0): AQ[0], (3, 1): AQ[1]}

    def ktread(m, aa):
        A('ds_read_b128 %s, v%d offset:%d' % (v(KT[(m, aa)], 4), VP, (2 * m + aa) * 1024))
    vs(1, 1)
    ktread(0, 0)
    ktread(0, 1)
    vs(2, 0)
    ktread(1, 0)
    ktread(1, 1)
    vs(2, 1)
    A('buffer_store_dwordx4 %s, %s, %s, %s offen%s' % (v(T, 4), v(vL16), WS, s(sKVMK), KSC))
    vs(3, 0)
    A('s_add_u32 %s, %s, 1' % (s(sNeedKV), s(sStep)))
    A('s_min_u32 %s, %s, %d' % (s(sNeedKV), s(sNeedKV), NSEG - 1))
    A('s_cmp_gt_u32 %s, %s' % (s(sA1), s(sNeedKV)))
    vs(3, 1)
    A('s_waitcnt lgkmcnt(4)')
    A('s_barrier')
    A('ds_read_b128 %s, %s' % (v(M[0], 4), v(vXR)))
    vs(4, 0)
    A('ds_read_b128 %s, %s offset:64' % (v(M[1], 4), v(vXR)))
    A('ds_read_b128 %s, %s offset:128' % (v(M[2], 4), v(vXR)))
    vs(4, 1)
    A('ds_read_b128 %s, %s offset:192' % (v(M[3], 4), v(vXR)))
    ktread(2, 0)
    vs(5, 0)
    if flags:
        A('s_cbranch_scc0 %s' % L('kvwait'))
        A.label(L('kvok'))
    A('v_lshlrev_b32 v%d, 2, %s' % (VP + 1, v(vL16)))
    vs(5, 1)
    A('s_mov_b32 m0, %s' % s(sM0P))
    ktread(2, 1)
    vs(6, 0)
    A('s_add_u32 %s, %s, 2' % (s(sT1), s(sStep)))
    A('s_cmp_gt_u32 %s, %s' % (s(sA1), s(sT1)))
    A('s_cselect_b32 %s, %s, 0x%x' % (s(sT1), s(sPF), OOB))
    vs(6, 1)
    A('buffer_load_dword v%d, %s, %s offen sc1 lds' % (VP + 1, WS, s(sT1)))
    A('v_mov_b32 v%d, %s' % (VP + 1, s(sStep)))
    vs(7, 0)
    A('s_add_u32 %s, %s, %d' % (s(sPF), s(sPF), BLK))
    A('s_add_u32 %s, %s, %d' % (s(sKV), s(sKV), BLK))
    A('s_mov_b32 m0, %s' % s(sM0F))
    vs(7, 1)
    A('s_mov_b64 exec, 1')
    A('buffer_store_dword v%d, off, %s, %s%s' % (VP + 1, WS, s(sFLAGO), KSC))
    A('buffer_load_dwordx4 off, %s, %s sc1 lds' % (WS, s(sFA1)))
    A('s_mov_b64 exec, -1')
    vs(8, 0)
    A('s_mov_b32 m0, %s' % s(sM0K))
    A('s_sub_u32 %s, %s, 8192' % (s(sT1), s(sKV)))
    vs(8, 1)
    stamp(2)
    S0, S1, SM = M[6], M[7], M[8]
    F = [M[0], M[2], AQ[0]]
    order = [8, 0, 1, 2, 3, 4, 5, 6, 7]

    def fread(i):
        ldsfrag(F[i % 3], 9 + order[i])

    waits = {0: 5, 1: 6, 2: 2, 3: 2}
    P, PM = M[4], M[5]
    for m in range(4):
        A('s_waitcnt lgkmcnt(%d)' % waits[m])
        c = lambda d: '0' if m == 0 else v(d, 4)
        A('v_mfma_f32_16x16x32_bf16 %s, %s, %s, %s' % (v(S0, 4), v(KT[(m, 0)], 4), v(M[m], 4), c(S0)))
        if m == 0:
            ktread(3, 0)
        if m == 2:
            A('v_add_f32 v64, v64, v65')
            A('v_add_f32 v65, v66, v67')
        if m == 3:
            A('v_cvt_pk_bf16_f32 v%d, v64, v65' % VP)
            A('v_cvt_pk_bf16_f32 v%d, v68, v69' % (VP + 1))
        A('v_mfma_f32_16x16x32_bf16 %s, %s, %s, %s' % (v(S1, 4), v(KT[(m, 1)], 4), v(M[m], 4), c(S1)))
        if m == 0:
            ktread(3, 1)
        if m == 2:
            A('v_add_f32 v68, v68, v69')
            A('v_add_f32 v69, v70, v71')
        if m == 3:
            A('v_lshrrev_b32 v71, 1, %s' % v(vL16))
            z2(PM + 2)
        A('v_mfma_f32_16x16x32_bf16 %s, %s, %s, %s' % (v(SM, 4), v(M[m], 4), v(M[m], 4), c(SM)))
        if m == 1:
            A('s_cmp_eq_u32 %s, %d' % (s(sStep), NSEG - 1))
        if m == 2:
            fread(0)
    A('buffer_store_dwordx2 %s, v71, %s, %s offen%s' % (v(VP, 2), WS, s(sKVM), KSC))
    fread(1)
    A('s_cbranch_scc1 %s' % L('done'))
    sv = [S0, S0 + 1, S0 + 2, S0 + 3, S1, S1 + 1, S1 + 2, S1 + 3, SM, SM + 1]
    mx, t = SM + 2, SM + 3
    A('v_max3_f32 v%d, v%d, v%d, v%d' % (68, sv[0], sv[1], sv[2]))
    A('v_max3_f32 v%d, v%d, v%d, v%d' % (69, sv[3], sv[4], sv[5]))
    A('v_max3_f32 v%d, v%d, v%d, v%d' % (68, 68, sv[6], sv[7]))
    A('v_mov_b32 v%d, 0' % (PM + 1))
    A('v_max3_f32 v%d, v%d, v%d, v%d' % (69, 69, sv[8], sv[9]))
    A('v_max_f32 v%d, v68, v69' % mx)
    A('v_max_f32 v%d, v68, v69' % t)
    A('v_mov_b64 v[64:65], %s' % s(sOnes, 2))
    A('v_mov_b64 v[66:67], %s' % s(sOnes, 2))
    A('v_permlane16_swap_b32 v%d, v%d' % (mx, t))
    A('v_max_f32 v68, v%d, v%d' % (mx, t))
    A('v_max_f32 v69, v%d, v%d' % (mx, t))
    A('s_mov_b32 %s, %s' % (s(sT0), s(sMRd)))
    A('s_mov_b32 %s, %s' % (s(sMRd), s(sMWr)))
    A('v_permlane32_swap_b32 v68, v69')
    A('v_max_f32 v%d, v68, v69' % mx)
    A('v_mul_f32 v%d, %s, v%d' % (mx, s(sC), mx))
    for i in range(0, 10, 2):
        A('v_pk_fma_f32 %s, %s, %s, %s op_sel_hi:[1,1,0] neg_lo:[0,0,1] neg_hi:[0,0,1]' % (
            v(sv[i], 2), v(sv[i], 2), s(sC2, 2), v(mx, 2)))
    for x in sv:
        A('v_exp_f32 v%d, v%d' % (x, x))
    for i in range(4):
        A('v_cvt_pk_bf16_f32 v%d, v%d, v%d' % (P + i, sv[2 * i], sv[2 * i + 1]))
    A('v_cvt_pk_bf16_f32 v%d, v%d, v%d' % (PM, sv[8], sv[9]))
    stamp(3)
    O = [AQ[2], AQ[3]]
    ACC = [M[6], M[7], M[5], RB, RB + 4, M[8], M[4], AQ[2], AQ[3]]
    A('s_waitcnt vmcnt(5)')
    A('v_mfma_f32_16x16x32_bf16 v[68:71], v[64:67], %s, 0' % v(P, 4))
    z2(ACC[0])
    z2(ACC[0] + 2)
    A('v_mfma_f32_16x16x32_bf16 v[68:71], v[64:67], %s, v[68:71]' % v(PM, 4))
    A('v_mov_b32 v%d, v%d' % (PM + 3, PM))
    z2(ACC[1])
    A('v_mfma_f32_16x16x32_bf16 %s, %s, %s, 0' % (v(O[0], 4), v(VT[0], 4), v(P, 4)))
    z2(ACC[1] + 2)
    z2(ACC[5])
    A('v_mfma_f32_16x16x32_bf16 %s, %s, %s, 0' % (v(O[1], 4), v(VT[1], 4), v(P, 4)))
    z2(ACC[5] + 2)
    z2(ACC[3])
    A('v_mfma_f32_16x16x16_bf16 %s, %s, %s, %s' % (v(O[0], 4), v(VP, 2), v(PM, 2), v(O[0], 4)))
    A('v_rcp_f32 v68, v68')
    A('v_mfma_f32_16x16x16_bf16 %s, %s, %s, %s' % (v(O[1], 4), v(VP, 2), v(PM + 2, 2), v(O[1], 4)))
    fread(2)
    z2(ACC[3] + 2)
    z2(ACC[4])
    z2(ACC[4] + 2)
    z2(ACC[2])
    z2(ACC[2] + 2)
    A('s_mov_b64 exec, %s' % s(sQMASK, 2))
    for tt in range(2):
        for i in range(0, 4, 2):
            A('v_pk_mul_f32 %s, %s, v[68:69] op_sel_hi:[1,0]' % (v(O[tt] + i, 2), v(O[tt] + i, 2)))
    for i in range(4):
        A('v_cvt_pk_bf16_f32 v%d, v%d, v%d' % (P + i, O[0] + i, O[1] + i))
    A('ds_write_b128 %s, %s' % (v(vOW), v(P, 4)))
    A('s_mov_b64 exec, -1')
    for k in (7, 8):
        z2(ACC[k])
        z2(ACC[k] + 2)
    A('s_waitcnt lgkmcnt(0)')
    A('s_barrier')
    OA = [64, 68]
    A('ds_read_b128 %s, %s' % (v(OA[0], 4), v(vOR)))
    A('ds_read_b128 %s, %s offset:128' % (v(OA[1], 4), v(vOR)))
    A('buffer_load_dwordx4 %s, %s, %s offen sc1 lds' % (v(vL16), WS, s(sT1)))
    A('buffer_load_dwordx4 %s, %s, %s offen offset:1024 sc1 lds' % (v(vL16), WS, s(sT1)))
    z2(ACC[6])
    z2(ACC[6] + 2)
    A('s_add_u32 %s, %s, %d' % (s(sKVM), s(sKVM), 0 if noslow & 2 else NH * KVM_BLK))
    A('s_add_u32 %s, %s, %d' % (s(sKVMK), s(sKVMK), 0 if noslow & 2 else NH * KVM_BLK))
    A('s_add_u32 %s, %s, 1' % (s(sStep), s(sStep)))
    A('s_mov_b32 %s, %s' % (s(sMWr), s(sMPrev)))
    A('s_mov_b32 %s, %s' % (s(sMPrev), s(sT0)))
    A('s_add_u32 %s, %s, 4096' % (s(sMRd1), s(sMRd)))
    A('s_add_u32 %s, %s, 8192' % (s(sMRd2), s(sMRd)))
    stamp(4)
    pending = ['OA0', 'OA1']

    def waitfor(tag):
        if tag in pending:
            k = pending.index(tag)
            rest = len(pending) - 1 - k
            A('s_waitcnt lgkmcnt(%d)' % rest)
            del pending[:k + 1]

    work = []
    lo = lambda ti: ACC[ti]
    hi = lambda ti: ACC[ti] + 1

    def fold(ti):
        acc = ACC[ti]
        work.append((ti, 'v_add_f32 v%d, v%d, v%d' % (acc, acc, acc + 1)))
        work.append((ti, 'v_add_f32 v%d, v%d, v%d' % (acc + 1, acc + 2, acc + 3)))
    fold(0)
    work.append((0, 'v_cvt_pk_bf16_f32 v%d, v%d, v%d' % (VP, lo(0), hi(0))))
    work.append((0, 'v_bfi_b32 v%d, 1, %s, v%d' % (VP, s(sTag), VP)))
    work.append((0, 'buffer_store_dword v%d, %s, %s, %s offen%s' % (VP, v(vPart8), WS, s(sPB), sc)))
    for half in range(2):
        b = 1 + 4 * half
        Q = ACC[half]
        for pr in range(2):
            fold(b + 2 * pr)
            fold(b + 2 * pr + 1)
            work.append((b + 2 * pr + 1, 'v_cvt_pk_bf16_f32 v%d, v%d, v%d' % (Q + pr, lo(b + 2 * pr), lo(b + 2 * pr + 1))))
            work.append((b + 2 * pr + 1, 'v_cvt_pk_bf16_f32 v%d, v%d, v%d' % (Q + 2 + pr, hi(b + 2 * pr), hi(b + 2 * pr + 1))))
            if pr == 0:
                work.append((b + 1, 'v_bfi_b32 v%d, 1, %s, v%d' % (Q, s(sTag), Q)))
        work.append((b + 3, 'buffer_store_dwordx4 %s, %s, %s, %s offen%s' % (v(Q, 4), v(vPartOff), WS, s(sPW1 if half else sPB), sc)))
    nv = opt.get('wo_nv', 2)

    def fill(done, n):
        k = 0
        while work and work[0][0] <= done and (k < n or work[0][1].startswith('buffer')):
            it = work.pop(0)[1]
            if it.startswith('buffer'):
                if k:
                    work.insert(0, (done, it))
                    break
                A(it)
            else:
                A(it)
                k += 1

    for ti in range(9):
        waitfor('OA0')
        smf(ACC[ti], OA[0], wfrag(f_wo(order[ti])))
        waitfor('OA1')
        waitfor('F%d' % ti)
        fill(ti - 2, nv)
        smf(ACC[ti], OA[1], v(F[ti % 3], 8))
        if ti + 3 < 9:
            fread(ti + 3)
            pending += ['F%d_lo' % (ti + 3), 'F%d' % (ti + 3)]
            fill(ti - 2, 1)
        else:
            fill(ti - 2 if ti < 8 else ti - 1, nv)
    ldsfrag(RA, KORD[1])
    while work:
        A(work.pop(0)[1])
    stamp(5)
    ldsfrag(RB, KORD[0])
    SEL, RD, TM = AQ[0], AQ[1], AQ[2]
    A('s_cmp_ge_u32 %s, 72' % s(sUnit))
    A('s_cbranch_scc1 %s' % L('nored'))
    A('v_bfe_u32 v%d, %s, %s, 1' % (TM, v(vL16), s(sSelBit)))
    A('v_lshlrev_b32 v%d, 4, v%d' % (TM, TM))
    A('v_mov_b32 v%d, 0x3f80' % (TM + 1))
    A('v_lshlrev_b32 v%d, v%d, v%d' % (TM, TM, TM + 1))
    for q in range(4):
        A('v_cndmask_b32 v%d, 0, v%d, %s' % (SEL + q, TM, s(sSEL + 2 * q, 2)))
    A('v_mov_b64 %s, -1' % v(VP, 2))

    def pload(st):
        for i in range(4):
            A('buffer_load_dwordx4 %s, %s, %s, %s offen offset:%d sc1' % (v(M[4 * st + i], 4), v(vL16), WS, s(sPR), 1024 * i))

    def pcheck(st, younger):
        R = M[4 * st:4 * st + 4]
        for i in range(4):
            A('s_waitcnt vmcnt(%d)' % (3 - i + younger))
            A('v_mfma_f32_16x16x32_bf16 %s, %s, %s, %s' % (v(RD, 4), v(SEL, 4), v(R[i], 4), '0' if i == 0 else v(RD, 4)))
            if i == 1:
                A('v_bitop3_b32 v%d, v%d, v%d, %s bitop3:0x7e' % (TM, R[0], R[1], s(sTag)))
        A('v_bitop3_b32 v%d, v%d, v%d, %s bitop3:0x7e' % (TM + 1, R[2], R[3], s(sTag)))
        A('v_bitop3_b32 v%d, v%d, v%d, 1 bitop3:0xa8' % (TM, TM, TM + 1))
        A('v_cmp_ne_u32 vcc, 0, v%d' % TM)

    if opt.get('stagger', False):
        A('s_waitcnt vmcnt(%d)' % opt.get('pre_poll_vm', 1))
        pload(0)
        A('s_waitcnt vmcnt(4)')
        for i in range(opt.get('stag_gap', 0)):
            A('s_nop 7')
        pload(1)
        A.label(L('rpoll'))
        pcheck(0, 4)
        A('s_cbranch_vccz %s' % L('rok'))
        pload(0)
        pcheck(1, 4)
        A('s_cbranch_vccnz %s' % L('rretry'))
    else:
        A('s_waitcnt vmcnt(%d)' % opt.get('pre_poll_vm', 0))
        pload(0)
        A.label(L('rpoll'))
        pcheck(0, 0)
        A('s_cbranch_vccnz %s' % L('rretry'))
    A.label(L('rok'))
    A('s_nop 3')
    for i in range(4):
        A('v_add_f32_dpp v%d, v%d, v%d row_ror:8 row_mask:0xf bank_mask:0xf' % (TM + i, RD + i, RD + i))
    A('v_cvt_pk_bf16_f32 v%d, v%d, v%d' % (M[8], TM, TM + 1))
    A('v_cvt_pk_bf16_f32 v%d, v%d, v%d' % (M[8] + 1, TM + 2, TM + 3))
    A('buffer_store_dwordx2 %s, %s, %s, %s offen%s' % (v(M[8], 2), v(vPub), WS, s(sMRd), sc))
    A('buffer_store_dwordx2 %s, %s, %s, %s offen%s' % (v(VP, 2), v(vPub), WS, s(sMPrev), sc))
    A.label(L('nored'))
    stamp(6)
    A('s_xor_b32 %s, %s, 1' % (s(sTag), s(sTag)))
    A('v_mov_b32 v%d, %s' % (M[8] + 2, s(sM0F)))
    A('s_waitcnt vmcnt(2)')
    A('ds_read_b64 %s, v%d' % (v(M[8] + 2, 2), M[8] + 2))
    if not opt.get('late_prep'):
        for i in range(48, 64, 2):
            z2(i)
    A('s_waitcnt lgkmcnt(0)')
    if flags:
        A('v_readfirstlane_b32 %s, v%d' % (s(sA1), M[8] + 2))
        A('v_readfirstlane_b32 %s, v%d' % (s(sT3), M[8] + 3))
        A('s_lshl_b32 %s, %s, 1' % (s(sA1), s(sA1)))
        A('s_lshl_b32 %s, %s, 1' % (s(sT3), s(sT3)))
        A('s_add_u32 %s, %s, 1' % (s(sT3), s(sT3)))
        A('s_min_u32 %s, %s, %s' % (s(sA1), s(sA1), s(sT3)))
    for i in range(opt.get('mem_gap', 0)):
        A('s_nop 7')
    A('s_waitcnt vmcnt(%d)' % opt.get('pre_mem_vm', 0))
    A('s_barrier')
    stamp(7)
    A('s_branch %s' % L('loop'))

    A.label(L('retry0'))
    if stamps:
        A('s_add_u32 %s, %s, 1' % (s(sST + 4 + 8), s(sST + 4 + 8)))
    A('s_sub_u32 %s, %s, 1' % (s(sSpin), s(sSpin)))
    A('s_cmp_gt_i32 %s, 0' % s(sSpin))
    A('s_cbranch_scc0 %s' % L('mok0'))
    for q in range(NFIRST):
        mload(q)
    A('s_branch %s' % L('mpoll'))
    for q in range(1, 9):
        A.label(L('retry%d' % q))
        if stamps:
            A('s_add_u32 %s, %s, 0x10000' % (s(sST + 4 + 8), s(sST + 4 + 8)))
        A('s_sub_u32 %s, %s, 1' % (s(sSpin), s(sSpin)))
        A('s_cmp_gt_i32 %s, 0' % s(sSpin))
        A('s_cbranch_scc0 %s' % L('mok%d' % q))
        mload(q)
        A('s_waitcnt vmcnt(0)')
        check(q)
        A('s_cbranch_vccnz %s' % L('retry%d' % q))
        A('s_branch %s' % L('mok%d' % q))
    A.label(L('rretry'))
    if stamps:
        A('s_add_u32 %s, %s, 1' % (s(sST + 4 + 9), s(sST + 4 + 9)))
    A('s_sub_u32 %s, %s, 1' % (s(sSpin), s(sSpin)))
    A('s_cmp_gt_i32 %s, 0' % s(sSpin))
    A('s_cbranch_scc0 %s' % L('rok'))
    pload(1 if opt.get('stagger', False) else 0)
    A('s_branch %s' % L('rpoll'))
    if flags:
        A.label(L('kvwait'))
        wait_kv(A, VP + 1)
        A('s_branch %s' % L('kvok'))

    A.label(L('done'))
    A('s_waitcnt vmcnt(0)')
    A('s_barrier')
    A('v_mov_b32 v%d, %d' % (VP, NSEG))
    A('s_mov_b64 exec, 1')
    A('buffer_store_dword v%d, off, %s, %s sc1' % (VP, WS, s(sFLAGO)))
    if stamps:
        A('s_memrealtime %s' % s(sST + 2, 2))
        A('s_waitcnt lgkmcnt(0)')
        A('s_sub_u32 %s, %s, %s' % (s(sST + 4 + 11), s(sST + 2), s(sST + 4 + 11)))
        A('s_lshl_b32 %s, %s, 2' % (s(sT0), s(sH)))
        A('s_add_u32 %s, %s, s4' % (s(sT0), s(sT0)))
        A('s_lshl_b32 %s, %s, 6' % (s(sT0), s(sT0)))
        A('s_add_u32 %s, %s, 0x%x' % (s(sT0), s(sT0), STAMP_OFF))
        A('v_mov_b32 v20, %s' % s(sST + 4 + 10))
        A('v_mov_b32 v21, %s' % s(sST + 4 + 11))
        A('buffer_atomic_umax v20, off, %s, 0 offset:32' % s(SRD_DBG, 4))
        A('buffer_atomic_umax v21, off, %s, 0 offset:36' % s(SRD_DBG, 4))
        for i in range(12):
            A('v_mov_b32 v20, %s' % s(sST + 4 + i))
            A('buffer_store_dword v20, off, %s, %s offset:%d' % (WS, s(sT0), 4 * i))
            A('s_nop 1')
    A('s_waitcnt vmcnt(0)')
    A('s_endpgm')
```

```python
import math
from asmlib import v, a, s
from layout import *
from role_r import Stream, srd, f2u, SRD_WS, SRD_DBG, SRD_A, SRD_B, SRD_C

WS = s(SRD_WS, 4)
sID, sItem, sSrc, sDst, sFlag, sSpin, sPLO, sPHI = range(28, 36)
sT0, sT1, sT2, sT3 = 36, 37, 38, 39
sBuf, sNeed, sFl2, sSrc2, sC, sHI = 40, 41, 42, 43, 44, 45
sMASK = 46
XBUF = 36864


def wf4(f):
    return ('a', 4 * f) if f < 64 else ('v', 80 + 4 * (f - 64))


def rg(t, n=1, off=0):
    return a(t[1] + off, n) if t[0] == 'a' else v(t[1] + off, n)


def put(A, dst, src):
    A('%s %s, v%d' % ('v_accvgpr_write_b32' if dst[0] == 'a' else 'v_mov_b32', dst, src))


def lane_consts(A):
    A('v_and_b32 v20, 63, v0')
    A('v_and_b32 v21, 15, v20')
    A('v_lshrrev_b32 v22, 4, v20')
    A('v_lshlrev_b32 v1, 4, v20')
    A('s_mov_b32 %s, 0x05040100' % s(sPLO))
    A('s_mov_b32 %s, 0x07060302' % s(sPHI))
    A('s_mov_b32 %s, 0xffff0000' % s(sHI))
    A('s_mov_b32 %s, %d' % (s(sSpin), 400000))


def stage_consts(A, vsrc, vxa0, vxa1):
    A('v_lshrrev_b32 v23, 3, v20')
    A('s_lshl_b32 %s, s4, 3' % s(sT0))
    A('v_add_u32 v23, %s, v23' % s(sT0))
    A('v_bfe_u32 v24, v23, 1, 3')
    A('v_and_b32 v25, 7, v20')
    A('v_xor_b32 v24, v24, v25')
    A('v_mul_u32_u24 v23, 1152, v23')
    A('v_lshl_add_u32 v%d, v24, 4, v23' % vsrc)
    A('v_lshrrev_b32 v23, 3, v21')
    A('v_lshlrev_b32 v23, 10, v23')
    A('v_and_b32 v24, 7, v21')
    A('v_lshl_add_u32 v23, v24, 7, v23')
    A('v_bfe_u32 v24, v21, 1, 3')
    A('v_xor_b32 v24, v24, v22')
    A('v_lshl_add_u32 v%d, v24, 4, v23' % vxa0)
    A('v_xor_b32 v%d, 64, v%d' % (vxa1, vxa0))


def stage_issue(A, vsrc, ssrc, sbuf):
    A('s_lshl_b32 %s, s4, 10' % s(sT0))
    A('s_add_u32 m0, %s, %s' % (s(sT0), s(sbuf)))
    for cb in range(9):
        if cb:
            A('s_add_u32 m0, m0, %d' % (4096 - 128))
        A('buffer_load_dwordx4 v%d, %s, %s offen offset:%d sc1 lds' % (vsrc, WS, s(ssrc), 128 * cb))


def poll(A, sflagoff, nlanes, sneed, vt, enable=True, first=None, sleep=2, wide=False):
    if not enable:
        if first:
            A('s_waitcnt vmcnt(0)')
            first()
        return
    l0, l1 = A.newlabel('poll'), A.newlabel('pollok')
    m = (1 << nlanes) - 1

    def setexec():
        A('s_mov_b32 exec_lo, 0x%x' % (m & 0xffffffff))
        A('s_mov_b32 exec_hi, 0x%x' % (m >> 32))
    def ld():
        if wide:
            A('buffer_load_dwordx4 %s, v%d, %s, %s offen sc1' % (v(vt, 4), vt + 4, WS, s(sflagoff)))
        else:
            A('buffer_load_dword v%d, v%d, %s, %s offen sc1' % (vt, vt + 1, WS, s(sflagoff)))
    A('v_lshlrev_b32 v%d, 3, v1' % (vt + (4 if wide else 1)))
    setexec()
    if first:
        l2 = A.newlabel('pollchk')
        ld()
        A('s_mov_b64 exec, -1')
        A('s_waitcnt vmcnt(0)')
        first()
        setexec()
        A('s_branch %s' % l2)
    A.label(l0)
    ld()
    A('s_waitcnt vmcnt(0)')
    if first:
        A.label(l2)
    if wide:
        A('v_min3_u32 v%d, v%d, v%d, v%d' % (vt, vt, vt + 1, vt + 2))
        A('v_min_u32 v%d, v%d, v%d' % (vt, vt, vt + 3))
    A('v_cmp_gt_u32 vcc, %s, v%d' % (s(sneed), vt))
    A('s_cbranch_vccz %s' % l1)
    A('s_sleep %d' % sleep)
    A('s_sub_u32 %s, %s, 1' % (s(sSpin), s(sSpin)))
    A('s_cmp_gt_i32 %s, 0' % s(sSpin))
    A('s_cbranch_scc1 %s' % l0)
    A.label(l1)
    A('s_mov_b64 exec, -1')


def signal(A, sflagoff, sval, vt):
    A('s_waitcnt vmcnt(0)')
    A('s_barrier')
    l = A.newlabel('nosig')
    A('s_cmp_lg_u32 s4, 0')
    A('s_cbranch_scc1 %s' % l)
    A('v_mov_b32 v%d, %s' % (vt, s(sval)))
    A('s_mov_b64 exec, 1')
    A('buffer_store_dword v%d, off, %s, %s sc1' % (vt, WS, s(sflagoff)))
    A('s_mov_b64 exec, -1')
    A.label(l)


def wave_signal(A, sflagoff, sval, vt):
    A('v_mov_b32 v%d, %s' % (vt, s(sval)))
    A('s_mov_b64 exec, 1')
    A('buffer_store_dword v%d, off, %s, %s sc1' % (vt, WS, s(sflagoff)))
    A('s_mov_b64 exec, -1')


def role_end(A, opt, which):
    if opt.get('stamps'):
        A('s_memrealtime s[98:99]')
        A('s_lshl_b32 %s, s3, 4' % s(sT0))
        A('s_add_u32 %s, %s, 0x%x' % (s(sT0), s(sT0), STAMP_OFF + 0x4000))
        A('s_waitcnt lgkmcnt(0)')
        A('v_mov_b32 v8, s100')
        A('v_mov_b32 v9, s98')
        A('v_mov_b32 v10, s96')
        A('v_mov_b32 v11, s97')
        A('s_mov_b64 exec, 1')
        A('buffer_store_dwordx4 v[8:11], off, %s, %s' % (WS, s(sT0)))
        A('v_sub_u32 v12, v9, v8')
        A('v_sub_u32 v13, v10, v8')
        A('buffer_atomic_umax v12, off, %s, 0 offset:%d' % (s(SRD_DBG, 4), 40 + 4 * which))
        if which < 2:
            A('buffer_atomic_umax v13, off, %s, 0 offset:%d' % (s(SRD_DBG, 4), 56 + 4 * which))
        A('s_lshl_b32 %s, s3, 2' % s(sT0))
        A('s_add_u32 %s, %s, s4' % (s(sT0), s(sT0)))
        A('s_lshl_b32 %s, %s, 6' % (s(sT0), s(sT0)))
        A('s_add_u32 %s, %s, 0x%x' % (s(sT0), s(sT0), STAMP2_OFF))
        for i in range(16):
            A('v_mov_b32 v%d, s%d' % (12 + i, 80 + i))
        for i in range(4):
            A('buffer_store_dwordx4 %s, off, %s, %s offset:%d' % (v(12 + 4 * i, 4), WS, s(sT0), 16 * i))
        A('s_add_u32 %s, %s, 0x10000' % (s(sT0), s(sT0)))
        for i in range(8):
            A('v_mov_b32 v%d, s%d' % (32 + i, 64 + i))
        for i in range(2):
            A('buffer_store_dwordx4 %s, off, %s, %s offset:%d' % (v(32 + 4 * i, 4), WS, s(sT0), 16 * i))
    A('s_waitcnt vmcnt(0)')
    A('s_endpgm')


def lap(A, opt, i):
    if opt.get('stamps'):
        A('s_memrealtime s[98:99]')
        A('s_waitcnt lgkmcnt(0)')
        A('s_sub_u32 s99, s98, s97')
        A('s_add_u32 s%d, s%d, s99' % (80 + i, 80 + i))
        A('s_mov_b32 s97, s98')
        A('s_mov_b32 s%d, s98' % (88 + i))


def tick(A, opt, i):
    if opt.get('stamps'):
        A('s_memrealtime s[98:99]')
        A('s_waitcnt lgkmcnt(0)')
        A('s_mov_b32 s%d, s98' % (64 + i))


def mark(A, opt, reg):
    if opt.get('stamps'):
        A('s_memrealtime s[98:99]')
        A('s_waitcnt lgkmcnt(0)')
        A('s_mov_b32 s%d, s98' % reg)
        A('s_mov_b32 s97, s98')
        for i in range(8):
            A('s_mov_b32 s%d, 0' % (80 + i))


def hold_back(A, opt, vt):
    dbg_wait(A, D_RDY, NAUX, vt, sT0, sSpin)
    if opt.get('hold', True):
        A('s_mov_b32 %s, 1' % s(sNeed))
        A('s_and_b32 %s, %s, 31' % (s(sT3), s(sID)))
        A('s_lshl_b32 %s, %s, 7' % (s(sT3), s(sT3)))
        A('s_add_u32 %s, %s, 0x%x' % (s(sT3), s(sT3), FLAG_OFF + F_A1))
        poll(A, sT3, 1, sNeed, vt, True, sleep=8)


def mfma(A, d, x, y, c):
    A('v_mfma_f32_16x16x32_bf16 %s, %s, %s, %s' % (d, x, y, c))


def load_cols2(A, st, srdreg, voff, stride, frag, nks, raw, nt):
    def issue(ks):
        for j in range(8):
            A('s_mov_b32 %s, %d' % (s(sT0), (32 * ks + j) * stride))
            A('buffer_load_dword v%d, v%d, %s, %s offen%s' % (raw(ks) + j, voff, s(srdreg, 4), s(sT0), nt))

    def consume(ks):
        for t in range(2):
            for r in range(4):
                d = frag(ks, t)
                if d[0] == 'a':
                    tmp = 24 + 4 * t + r
                    A('v_perm_b32 v%d, v%d, v%d, %s' % (tmp, raw(ks) + 2 * r + 1, raw(ks) + 2 * r, s(sPHI if t else sPLO)))
                    put(A, rg(d, 1, r), tmp)
                else:
                    A('v_perm_b32 %s, v%d, v%d, %s' % (rg(d, 1, r), raw(ks) + 2 * r + 1, raw(ks) + 2 * r, s(sPHI if t else sPLO)))
    for ks in range(nks):
        st.add(8, lambda ks=ks: issue(ks), lambda ks=ks: consume(ks), range(raw(ks), raw(ks) + 8))


def load_cols4(A, st, srdreg, voff, stride, frag, nks, raw, nt):
    def issue(ks):
        for j in range(8):
            A('s_mov_b32 %s, %d' % (s(sT0), (32 * ks + j) * stride))
            A('buffer_load_dwordx2 %s, v%d, %s, %s offen%s' % (v(raw(ks) + 2 * j, 2), voff, s(srdreg, 4), s(sT0), nt))

    def consume(ks):
        for t in range(4):
            for r in range(4):
                d = frag(ks, t)
                lo, hi = raw(ks) + 4 * r + (t >> 1), raw(ks) + 4 * r + 2 + (t >> 1)
                sel = s(sPHI if t & 1 else sPLO)
                if d[0] == 'a':
                    tmp = 24 + 4 * (t & 1) + r
                    A('v_perm_b32 v%d, v%d, v%d, %s' % (tmp, hi, lo, sel))
                    put(A, rg(d, 1, r), tmp)
                else:
                    A('v_perm_b32 %s, v%d, v%d, %s' % (rg(d, 1, r), hi, lo, sel))
    for ks in range(nks):
        st.add(8, lambda ks=ks: issue(ks), lambda ks=ks: consume(ks), range(raw(ks), raw(ks) + 16))


def load_out(A, st, srdreg, voff16, voff2, frag, nks, raw, nt):
    def issue(ks):
        for h in range(2):
            A('s_mov_b32 %s, %d' % (s(sT0), (32 * ks + 4 * h) * ROWB))
            for j in range(4):
                A('buffer_load_dwordx4 %s, v%d, %s, %s offen offset:%d%s' % (
                    v(raw(ks) + 4 * (4 * h + j), 4), voff16, s(srdreg, 4), s(sT0), j * ROWB, nt))
            for j in range(4):
                A('buffer_load_ushort v%d, v%d, %s, %s offen offset:%d%s' % (
                    raw(ks) + 32 + 4 * h + j, voff2, s(srdreg, 4), s(sT0), j * ROWB, nt))

    def consume(ks):
        for j in range(9):
            for r in range(4):
                d = frag(ks, j)
                tmp = 24 + 4 * (j & 1) + r
                dst = 'v%d' % tmp if d[0] == 'a' else rg(d, 1, r)
                if j < 8:
                    A('v_perm_b32 %s, v%d, v%d, %s' % (dst, raw(ks) + 8 * r + 4 + (j >> 1), raw(ks) + 8 * r + (j >> 1),
                                                      s(sPHI if j & 1 else sPLO)))
                else:
                    A('v_lshl_or_b32 %s, v%d, 16, v%d' % (dst, raw(ks) + 32 + 2 * r + 1, raw(ks) + 32 + 2 * r))
                if d[0] == 'a':
                    put(A, rg(d, 1, r), tmp)
    for ks in range(nks):
        st.add(16, lambda ks=ks: issue(ks), lambda ks=ks: consume(ks), range(raw(ks), raw(ks) + 40))


def out_consts(A, srow0, v16, v2):
    A('v_lshlrev_b32 v23, 3, v22')
    A('v_add_u32 v23, %s, v23' % s(srow0))
    A('s_mov_b32 %s, 1152' % s(sT1))
    A('v_mul_lo_u32 v23, v23, %s' % s(sT1))
    A('s_lshl_b32 %s, s4, 8' % s(sT0))
    A('v_lshl_add_u32 v24, v21, 4, v23')
    A('v_add_u32 v%d, %s, v24' % (v16, s(sT0)))
    A('s_lshl_b32 %s, s4, 5' % s(sT0))
    A('s_add_u32 %s, %s, 1024' % (s(sT0), s(sT0)))
    A('v_lshl_add_u32 v24, v21, 1, v23')
    A('v_add_u32 v%d, %s, v24' % (v2, s(sT0)))


def pstore_consts(A, tokstride, vp):
    A('s_mov_b32 %s, %d' % (s(sT1), 4 * tokstride))
    A('v_mul_lo_u32 v23, v22, %s' % s(sT1))
    A('v_lshl_add_u32 v23, v21, 4, v23')
    A('s_lshl_b32 %s, s4, 8' % s(sT0))
    A('v_add_u32 v%d, %s, v23' % (vp, s(sT0)))


def left_store(A, LQ, sdl):
    A('v_permlane16_swap_b32 v%d, v%d' % (LQ, LQ + 2))
    A('v_permlane16_swap_b32 v%d, v%d' % (LQ + 1, LQ + 3))
    A('buffer_store_dwordx4 %s, v1, %s, %s offen sc1' % (v(LQ, 4), WS, s(sdl)))


def out_gemm(A, nks, frag, vla, ldsoff, XF, ACC, OUT, vp, LQ, sdst, sdl, tokstride):
    for aa in range(2):
        for ks in range(nks):
            A('ds_read_b128 %s, v%d offset:%d' % (v(XF + 4 * ks, 4), vla, ldsoff + (2 * ks + aa) * 1024))
        for ks in range(nks):
            A('s_waitcnt lgkmcnt(%d)' % (nks - 1 - ks))
            for j in range(9):
                c = '0' if ks == 0 else v(ACC + 4 * j, 4)
                if j < 8:
                    mfma(A, v(ACC + 4 * j, 4), v(XF + 4 * ks, 4), rg(frag(ks, j), 4), c)
                else:
                    mfma(A, v(ACC + 4 * j, 4), rg(frag(ks, j), 4), v(XF + 4 * ks, 4), c)
        for i in range(4):
            o = OUT + 4 * (i & 1)
            for q in range(4):
                A('v_cvt_pk_bf16_f32 v%d, v%d, v%d' % (o + q, ACC + 8 * q + i, ACC + 8 * q + 4 + i))
            A('s_add_u32 %s, %s, %d' % (s(sT0), s(sdst), (16 * aa + i) * tokstride))
            A('buffer_store_dwordx4 %s, v%d, %s, %s offen sc1' % (v(o, 4), vp, WS, s(sT0)))
        A('v_cvt_pk_bf16_f32 v%d, v%d, v%d' % (LQ + 2 * aa, ACC + 32, ACC + 33))
        A('v_cvt_pk_bf16_f32 v%d, v%d, v%d' % (LQ + 2 * aa + 1, ACC + 34, ACC + 35))
    left_store(A, LQ, sdl)


def out_gemm2(A, nks, frag, vla, ldsoff, XF, ACC0, ACC1, OUT, vp, LQ, sdst, sdl, tokstride, fillers):
    def rd(ks, aa):
        A('ds_read_b128 %s, v%d offset:%d' % (v(XF + 4 * ks, 4), vla, ldsoff + (2 * ks + aa) * 1024))

    def epilogue(aa, ACC):
        out = []
        for i in range(4):
            o = OUT + 4 * (i & 1)
            for q in range(0, 4, 2):
                out.append(lambda o=o, q=q, i=i: (
                    A('v_cvt_pk_bf16_f32 v%d, v%d, v%d' % (o + q, ACC + 8 * q + i, ACC + 8 * q + 4 + i)),
                    A('v_cvt_pk_bf16_f32 v%d, v%d, v%d' % (o + q + 1, ACC + 8 * q + 8 + i, ACC + 8 * q + 12 + i))))
            out.append(lambda o=o, i=i: (
                A('s_add_u32 %s, %s, %d' % (s(sT0), s(sdst), (16 * aa + i) * tokstride)),
                A('buffer_store_dwordx4 %s, v%d, %s, %s offen sc1' % (v(o, 4), vp, WS, s(sT0)))))
        out.append(lambda: (A('v_cvt_pk_bf16_f32 v%d, v%d, v%d' % (LQ + 2 * aa, ACC + 32, ACC + 33)),
                            A('v_cvt_pk_bf16_f32 v%d, v%d, v%d' % (LQ + 2 * aa + 1, ACC + 34, ACC + 35))))
        return out
    for ks in range(nks):
        rd(ks, 0)
    for aa, ACC in enumerate((ACC0, ACC1)):
        fl = list(fillers) if aa == 0 else epilogue(0, ACC0)
        every = max(1, (9 * nks - 4) // max(1, len(fl)))
        cnt = 0
        for ks in range(nks):
            A('s_waitcnt lgkmcnt(%d)' % (nks - 1 if aa == 0 else nks - 1 - ks))
            for j in range(9):
                c = '0' if ks == 0 else v(ACC + 4 * j, 4)
                if j < 8:
                    mfma(A, v(ACC + 4 * j, 4), v(XF + 4 * ks, 4), rg(frag(ks, j), 4), c)
                else:
                    mfma(A, v(ACC + 4 * j, 4), rg(frag(ks, j), 4), v(XF + 4 * ks, 4), c)
                cnt += 1
                if fl and cnt >= 3 and cnt % every == 0:
                    fl.pop(0)()
            if aa == 0:
                rd(ks, 1)
        for f in fl:
            f()
    for f in epilogue(1, ACC1):
        f()
    left_store(A, LQ, sdl)


def xloop(A, vxa0, vxa1, XF, body, hook=None):
    def rd(ks):
        b = XF + 8 * (ks & 1)
        for aa in range(2):
            A('ds_read_b128 %s, v%d offset:%d' % (v(b + 4 * aa, 4), vxa1 if ks & 1 else vxa0, (ks >> 1) * 4096 + aa * 2048))
    rd(0)
    rd(1)
    for ks in range(18):
        A('s_waitcnt lgkmcnt(%d)' % (2 if ks < 17 else 0))
        b = XF + 8 * (ks & 1)
        body(ks, b, b + 4)
        if ks + 2 < 18:
            rd(ks + 2)
        if hook:
            hook(ks)


def gen_A1(A, opt):
    nt = ' nt' if opt.get('nt', True) else ''
    flags = opt.get('flags', True)
    A.label('A1_entry')
    for i in range(8):
        tick(A, opt, i)
    vSrc, vXA0, vXA1, vQK = 2, 3, 4, 5
    lane_consts(A)
    stage_consts(A, vSrc, vXA0, vXA1)
    sH, sP = sFl2, sSrc2
    A('s_lshr_b32 %s, %s, 1' % (s(sH), s(sID)))
    A('s_and_b32 %s, %s, 1' % (s(sP), s(sID)))
    A('s_load_dwordx2 %s, s[0:1], %d' % (s(SRD_B, 2), K_WQ))
    A('s_load_dwordx2 %s, s[0:1], %d' % (s(sT2, 2), K_WK))
    A('s_mov_b32 %s, 0x%x' % (s(SRD_B + 2), 576 * 8192))
    A('s_mov_b32 %s, 0x20000' % s(SRD_B + 3))
    srd(A, SRD_C, K_WV, 576 * 8192)
    A('v_lshlrev_b32 v23, 16, v22')
    A('s_lshl_b32 %s, %s, 8' % (s(sT0), s(sH)))
    A('v_add_u32 v23, %s, v23' % s(sT0))
    A('s_and_b32 %s, s4, 1' % s(sT0))
    A('s_lshl_b32 %s, %s, 7' % (s(sT0), s(sT0)))
    A('v_lshl_add_u32 v24, v21, 3, v23')
    A('v_add_u32 v6, %s, v24' % s(sT0))
    A('s_lshl_b32 %s, s4, 6' % s(sT0))
    A('v_lshl_add_u32 v24, v21, 2, v23')
    A('v_add_u32 v7, %s, v24' % s(sT0))
    A('v_lshrrev_b32 v23, 1, v22')
    A('v_lshlrev_b32 v23, 11, v23')
    A('v_and_b32 v24, 1, v22')
    A('v_lshl_add_u32 v23, v24, 9, v23')
    A('v_lshl_add_u32 v23, v21, 4, v23')
    A('s_lshl_b32 %s, s4, 12' % s(sT0))
    A('v_add_u32 v%d, %s, v23' % (vQK, s(sT0)))
    A('s_waitcnt lgkmcnt(0)')
    A('s_cmp_lt_u32 s4, 2')
    A('s_cselect_b32 %s, %s, %s' % (s(SRD_B), s(SRD_B), s(sT2)))
    A('s_cselect_b32 %s, %s, %s' % (s(SRD_B + 1), s(SRD_B + 1), s(sT2 + 1)))
    fqk = lambda ks, t: wf4(4 * ks + t)
    fv = lambda ks, t: wf4(72 + 2 * ks + t)
    st = Stream(A, 60)
    load_cols4(A, st, SRD_B, 6, 8192, fqk, 18, lambda ks: 128 + 16 * (ks % 8), nt)
    load_cols2(A, st, SRD_C, 7, 8192, fv, 18, lambda ks: 32 + 8 * (ks % 6), nt)
    st.run()
    A('s_mov_b32 %s, 0' % s(sItem))
    A('s_mul_i32 %s, %s, %d' % (s(sSrc), s(sP), 32 * ROWB))
    A('s_add_u32 %s, %s, 0x%x' % (s(sSrc), s(sSrc), H1_OFF))
    A('s_lshl_b32 %s, %s, 5' % (s(sT0), s(sP)))
    A('s_add_u32 %s, %s, %s' % (s(sT0), s(sT0), s(sH)))
    A('s_mul_i32 %s, %s, %d' % (s(sDst), s(sT0), QKV_BLK))
    A('s_add_u32 %s, %s, 0x%x' % (s(sDst), s(sDst), QKV_OFF))
    A('s_lshl_b32 %s, %s, 7' % (s(sFlag), s(sH)))
    A('s_lshl_b32 %s, %s, 2' % (s(sT0), s(sP)))
    A('s_add_u32 %s, %s, %s' % (s(sFlag), s(sFlag), s(sT0)))
    A('s_add_u32 %s, %s, 0x%x' % (s(sFlag), s(sFlag), FLAG_OFF + F_A1))
    A('s_mov_b32 %s, 0' % s(sBuf))
    tick(A, opt, 1)
    dbg_wait(A, D_RDY, NAUX, 8, sT0, sSpin)
    tick(A, opt, 2)
    A('s_mov_b32 %s, 1' % s(sNeed))
    A('s_lshl_b32 %s, %s, 8' % (s(sT2), s(sP)))
    A('s_add_u32 %s, %s, 0x%x' % (s(sT2), s(sT2), FLAG_OFF + F_H1))
    poll(A, sT2, 2, sNeed, 8, flags, sleep=1)
    tick(A, opt, 3)
    stage_issue(A, vSrc, sSrc, sBuf)
    for hh in range(2):
        A('s_mov_b32 %s, 0x%x' % (s(sT2), FLAG_OFF + F_H1 + 8192 * hh))
        poll(A, sT2, 64, sNeed, 8, flags, sleep=1)
    A('s_waitcnt vmcnt(0)')
    A('s_barrier')
    XF, ACC = 8, 24
    mark(A, opt, 96)
    A.label('A1_loop')
    A('s_xor_b32 %s, %s, %d' % (s(sBuf), s(sBuf), XBUF))
    A('s_add_u32 %s, %s, %d' % (s(sSrc), s(sSrc), 64 * ROWB))
    A('s_cmp_lt_u32 %s, 31' % s(sItem))
    A('s_cselect_b32 %s, %s, 0x%x' % (s(sT1), s(sSrc), OOB))
    stage_issue(A, vSrc, sT1, sBuf)

    def body(ks, f0, f1):
        for aa, f in enumerate((f0, f1)):
            for t in range(4):
                d = v(ACC + 4 * (4 * aa + t), 4)
                mfma(A, d, rg(fqk(ks, t), 4), v(f, 4), '0' if ks == 0 else d)
            for t in range(2):
                d = v(ACC + 32 + 4 * (2 * t + aa), 4)
                mfma(A, d, v(f, 4), rg(fv(ks, t), 4), '0' if ks == 0 else d)
    xloop(A, vXA0, vXA1, XF, body)
    A('s_lshl_b32 %s, %s, 1' % (s(sT0), s(sBuf)))
    A('s_sub_u32 %s, %s, %d' % (s(sT0), s(sT0), XBUF))
    A('v_add_u32 v%d, %s, v%d' % (vXA0, s(sT0), vXA0))
    A('v_add_u32 v%d, %s, v%d' % (vXA1, s(sT0), vXA1))
    k = 0
    for aa in range(2):
        T = [ACC + 4 * (4 * aa + t) for t in range(4)]
        for c in range(2):
            o = 72 + 4 * (k & 1)
            k += 1
            for ii in range(2):
                i = 2 * c + ii
                A('v_cvt_pk_bf16_f32 v%d, v%d, v%d' % (o + 2 * ii, T[0] + i, T[1] + i))
                A('v_cvt_pk_bf16_f32 v%d, v%d, v%d' % (o + 2 * ii + 1, T[2] + i, T[3] + i))
            A('buffer_store_dwordx4 %s, v%d, %s, %s offen offset:%d sc1' % (v(o, 4), vQK, WS, s(sDst), aa * 1024 + c * 256))
    A('s_lshl_b32 %s, s4, 11' % s(sT0))
    A('s_add_u32 %s, %s, %s' % (s(sT0), s(sT0), s(sDst)))
    A('s_add_u32 %s, %s, 16384' % (s(sT0), s(sT0)))
    for t in range(2):
        o = 72 + 4 * (k & 1)
        k += 1
        b = ACC + 32 + 8 * t
        for q in range(4):
            A('v_cvt_pk_bf16_f32 v%d, v%d, v%d' % (o + q, b + 2 * q, b + 2 * q + 1))
        A('buffer_store_dwordx4 %s, v1, %s, %s offen offset:%d sc1' % (v(o, 4), WS, s(sT0), t * 1024))
    A('s_add_u32 %s, %s, 1' % (s(sItem), s(sItem)))
    A('s_add_u32 %s, %s, %d' % (s(sDst), s(sDst), 2 * NH * QKV_BLK))
    signal(A, sFlag, sItem, 8)
    A('s_cmp_lt_u32 %s, 32' % s(sItem))
    A('s_cbranch_scc1 A1_loop')
    role_end(A, opt, 1)


def round_pair(A, x, y, t):
    A('v_cvt_pk_bf16_f32 v%d, v%d, v%d' % (t, x, y))
    A('v_lshlrev_b32 v%d, 16, v%d' % (x, t))
    A('v_and_b32 v%d, %s, v%d' % (y, s(sHI), t))


def gen_A2(A, opt):
    nt = ' nt' if opt.get('nt', True) else ''
    flags = opt.get('flags', True)
    NS = opt.get('a2sets', 3)
    A.label('A2_entry')
    vP, vP8, vKM, vVM, vMask = 2, 3, 4, 5, 6
    TOK = 16 * 1024
    lane_consts(A)
    sHP, sP, sDL = 48, 49, 59
    A('s_and_b32 %s, %s, 15' % (s(sHP), s(sID)))
    A('s_lshr_b32 %s, %s, 4' % (s(sP), s(sID)))
    srd(A, SRD_A, K_WO, 4096 * ROWB)
    A('s_lshl_b32 %s, %s, 8' % (s(sT2), s(sHP)))
    out_consts(A, sT2, 8, 9)
    pstore_consts(A, TOK, vP)
    A('v_lshrrev_b32 v23, 2, v21')
    A('v_lshlrev_b32 v23, 8, v23')
    A('v_lshl_add_u32 v23, v22, 5, v23')
    A('v_and_b32 v24, 1, v21')
    A('v_lshl_add_u32 v%d, v24, 3, v23' % vKM)
    A('v_lshrrev_b32 v%d, 1, v1' % vVM)
    A('s_and_b32 %s, s4, 1' % s(sT0))
    A('s_lshl_b32 %s, %s, 4' % (s(sT0), s(sT0)))
    A('v_lshlrev_b32 v23, 2, v22')
    A('v_sub_u32 v23, v21, v23')
    A('v_add_u32 v%d, %s, v23' % (vMask, s(sT0)))
    A('s_waitcnt lgkmcnt(0)')
    hold_back(A, opt, 244)
    fo = lambda ks, j: wf4(9 * ks + j)
    st = Stream(A, 60)
    load_out(A, st, SRD_A, 8, 9, fo, 8, lambda ks: 112 + 40 * (ks % 3), nt)
    st.run()
    CM = 112
    A('v_mov_b32 v23, 0xff800000')
    for ap in range(2):
        for i in range(4):
            A('v_cmp_gt_i32 vcc, %d, v%d' % (16 * ap + i, vMask))
            A('v_cndmask_b32 v%d, 0, v23, vcc' % (CM + 4 * ap + i))
    A('s_mov_b32 %s, 0x%x' % (s(sC), f2u(math.log2(math.e))))
    sScale = 50
    A('s_mov_b32 %s, 0x%x' % (s(sScale), f2u(128 ** -0.5)))
    A('s_mov_b32 %s, %s' % (s(sItem), s(sP)))
    A('s_lshr_b32 %s, s4, 1' % s(sT0))
    A('s_lshl_b32 %s, %s, 1' % (s(sT1), s(sHP)))
    A('s_add_u32 %s, %s, %s' % (s(sT1), s(sT1), s(sT0)))
    A('s_lshl_b32 %s, %s, 5' % (s(sT0), s(sP)))
    A('s_add_u32 %s, %s, %s' % (s(sT0), s(sT0), s(sT1)))
    A('s_mul_i32 %s, %s, %d' % (s(sSrc), s(sT0), QKV_BLK))
    A('s_add_u32 %s, %s, 0x%x' % (s(sSrc), s(sSrc), QKV_OFF))
    A('s_mul_i32 %s, %s, %d' % (s(sSrc2), s(sT0), KVM_BLK))
    A('s_add_u32 %s, %s, 0x%x' % (s(sSrc2), s(sSrc2), KVM_OFF))
    sFA1, sFR = 51, 52
    A('s_lshl_b32 %s, %s, 7' % (s(sFA1), s(sT1)))
    A('s_add_u32 %s, %s, 0x%x' % (s(sFA1), s(sFA1), FLAG_OFF + F_A1))
    A('s_lshl_b32 %s, %s, 7' % (s(sFR), s(sT1)))
    A('s_add_u32 %s, %s, 0x%x' % (s(sFR), s(sFR), FLAG_OFF + F_R))
    A('s_mul_i32 %s, %s, %d' % (s(sDst), s(sP), 32 * TOK))
    A('s_lshl_b32 %s, %s, 10' % (s(sT0), s(sHP)))
    A('s_add_u32 %s, %s, %s' % (s(sDst), s(sDst), s(sT0)))
    A('s_add_u32 %s, %s, 0x%x' % (s(sDst), s(sDst), P2_OFF))
    A('s_lshl_b32 %s, %s, 12' % (s(sDL), s(sID)))
    A('s_lshl_b32 %s, s4, 10' % s(sT0))
    A('s_add_u32 %s, %s, %s' % (s(sDL), s(sDL), s(sT0)))
    A('s_add_u32 %s, %s, 0x%x' % (s(sDL), s(sDL), P2L_OFF))
    sFlStep, sOne = 57, 58
    A('s_lshl_b32 %s, %s, 11' % (s(sFlag), s(sP)))
    A('s_lshl_b32 %s, %s, 7' % (s(sT0), s(sHP)))
    A('s_add_u32 %s, %s, %s' % (s(sFlag), s(sFlag), s(sT0)))
    A('s_add_u32 %s, %s, 0x%x' % (s(sFlag), s(sFlag), FLAG_OFF + F_A2 + OOB))
    A('s_mov_b32 %s, 0x%x' % (s(sFlStep), (-OOB) & 0xffffffff))
    A('s_mov_b32 %s, 1' % s(sOne))
    Q, K, V, KM, VM = 120, 136, 168, 200, 216
    S, P, O = 224, 236, 8
    XF = 200
    sA1seen, sQ0, sQ1, sK0 = 53, 54, 55, 56

    def pf_check():
        l0, l = A.newlabel('A2_a1'), A.newlabel('A2_have')
        if flags:
            A.label(l0)
            A('s_cmp_gt_u32 %s, %s' % (s(sA1seen), s(sNeed)))
            A('s_cbranch_scc1 %s' % l)
            A('buffer_load_dwordx2 v[244:245], off, %s, %s sc1' % (WS, s(sFA1)))
            A('s_waitcnt vmcnt(0)')
            A('v_readfirstlane_b32 %s, v244' % s(sA1seen))
            A('v_readfirstlane_b32 %s, v245' % s(sT0))
            A('s_lshl_b32 %s, %s, 1' % (s(sA1seen), s(sA1seen)))
            A('s_lshl_b32 %s, %s, 1' % (s(sT0), s(sT0)))
            A('s_add_u32 %s, %s, 1' % (s(sT0), s(sT0)))
            A('s_min_u32 %s, %s, %s' % (s(sA1seen), s(sA1seen), s(sT0)))
            A('s_sub_u32 %s, %s, 1' % (s(sSpin), s(sSpin)))
            A('s_cmp_gt_i32 %s, 0' % s(sSpin))
            A('s_cbranch_scc1 %s' % l0)
            A.label(l)
        A('s_and_b32 %s, s4, 1' % s(sQ0))
        A('s_lshl_b32 %s, %s, 10' % (s(sQ0), s(sQ0)))
        A('s_add_u32 %s, %s, %s' % (s(sQ0), s(sQ0), s(sSrc)))
        A('s_add_u32 %s, %s, 4096' % (s(sQ1), s(sQ0)))

    def pf_loads():
        out = []
        for m in range(4):
            out.append(lambda m=m: A('buffer_load_dwordx4 %s, v1, %s, %s offen offset:%d sc1' % (
                v(Q + 4 * m, 4), WS, s(sQ1 if m >= 2 else sQ0), 2048 * (m & 1))))
        for blk in range(4):
            for i in range(4):
                out.append(lambda blk=blk, i=i: (
                    A('s_add_u32 %s, %s, %d' % (s(sK0), s(sSrc), 8192 + 4096 * blk)) if i == 0 else None,
                    A('buffer_load_dwordx4 %s, v1, %s, %s offen offset:%d sc1' % (v(K + 16 * blk + 4 * i, 4), WS, s(sK0), 1024 * i))))
        return out

    def prefetch():
        pf_check()
        for f in pf_loads():
            f()
    A('s_mov_b32 %s, 0' % s(sA1seen))
    A('s_mov_b32 %s, %s' % (s(sNeed), s(sItem)))
    prefetch()
    A('s_waitcnt vmcnt(0)')
    mark(A, opt, 96)
    A.label('A2_loop')
    A('s_waitcnt vmcnt(9)')
    for m in range(4):
        for ap in range(2):
            d = v(S + 4 * ap, 4)
            mfma(A, d, v(K + 8 * m + 4 * ap, 4), v(Q + 4 * m, 4), v(CM + 4 * ap, 4) if m == 0 else d)
    A('s_add_u32 %s, %s, 1' % (s(sNeed), s(sItem)))
    lap(A, opt, 0)
    poll(A, sFR, 1, sNeed, 40, flags, first=lambda: (lap(A, opt, 1), signal(A, sFlag, sOne, 42)), sleep=1)
    lap(A, opt, 2)
    for m in range(4):
        for c in range(2):
            A('buffer_load_dwordx2 %s, v%d, %s, %s offen offset:%d sc1' % (
                v(KM + 4 * m + 2 * c, 2), vKM, WS, s(sSrc2), (m >> 1) * 1024 + (8 * (m & 1) + c) * 16))
    for w in range(4):
        A('buffer_load_dwordx2 %s, v%d, %s, %s offen offset:%d sc1' % (v(VM + 2 * w, 2), vVM, WS, s(sSrc2), 2048 + 512 * w))
    A('s_waitcnt vmcnt(4)')
    for m in range(4):
        d = v(S + 8, 4)
        mfma(A, d, v(KM + 4 * m, 4), v(Q + 4 * m, 4), '0' if m == 0 else d)
    lap(A, opt, 3)
    sv = [S + i for i in range(10)]
    for i in range(0, 10, 2):
        round_pair(A, sv[i], sv[i + 1], 40 + i // 2)
    for x in sv:
        A('v_mul_f32 v%d, %s, v%d' % (x, s(sScale), x))
    for i in range(0, 10, 2):
        round_pair(A, sv[i], sv[i + 1], 40 + i // 2)
    A('v_max3_f32 v40, v%d, v%d, v%d' % tuple(sv[0:3]))
    A('v_max3_f32 v41, v%d, v%d, v%d' % tuple(sv[3:6]))
    A('v_max3_f32 v40, v40, v%d, v%d' % tuple(sv[6:8]))
    A('v_max3_f32 v41, v41, v%d, v%d' % tuple(sv[8:10]))
    A('v_max_f32 v42, v40, v41')
    A('v_max_f32 v43, v40, v41')
    A('v_permlane16_swap_b32 v42, v43')
    A('v_max_f32 v40, v42, v43')
    A('v_max_f32 v41, v42, v43')
    A('v_permlane32_swap_b32 v40, v41')
    A('v_max_f32 v42, v40, v41')
    for x in sv:
        A('v_sub_f32 v%d, v%d, v42' % (x, x))
    for x in sv:
        A('v_mul_f32 v%d, %s, v%d' % (x, s(sC), x))
    for x in sv:
        A('v_exp_f32 v%d, v%d' % (x, x))
    A('v_add_f32 v40, v%d, v%d' % (sv[0], sv[1]))
    A('v_add_f32 v41, v%d, v%d' % (sv[2], sv[3]))
    for i in range(4, 10, 2):
        A('v_add_f32 v40, v40, v%d' % sv[i])
        A('v_add_f32 v41, v41, v%d' % sv[i + 1])
    A('v_add_f32 v42, v40, v41')
    A('v_add_f32 v43, v40, v41')
    A('v_permlane16_swap_b32 v42, v43')
    A('v_add_f32 v40, v42, v43')
    A('v_add_f32 v41, v42, v43')
    A('v_permlane32_swap_b32 v40, v41')
    A('v_add_f32 v42, v40, v41')
    A('v_rcp_f32 v42, v42')
    for x in sv:
        A('v_mul_f32 v%d, v%d, v42' % (x, x))
    for i in range(4):
        A('v_cvt_pk_bf16_f32 v%d, v%d, v%d' % (P + i, sv[2 * i], sv[2 * i + 1]))
    A('v_cvt_pk_bf16_f32 v%d, v%d, v%d' % (P + 4, sv[8], sv[9]))
    A('v_mov_b32 v%d, 0' % (P + 5))
    A('v_mov_b32 v%d, 0' % (P + 6))
    A('v_mov_b32 v%d, v%d' % (P + 7, P + 4))
    A('s_waitcnt vmcnt(0)')
    for tl in range(8):
        mfma(A, v(O + 4 * tl, 4), v(V + 4 * tl, 4), v(P, 4), '0')
    for tl in range(8):
        A('v_mfma_f32_16x16x16_bf16 %s, %s, %s, %s' % (v(O + 4 * tl, 4), v(VM + 2 * (tl >> 1), 2), v(P + 4 + 2 * (tl & 1), 2), v(O + 4 * tl, 4)))
    A('s_lshr_b32 %s, s4, 1' % s(sT0))
    A('s_lshl_b32 %s, %s, 13' % (s(sT0), s(sT0)))
    A('s_and_b32 %s, s4, 1' % s(sT1))
    A('s_lshl_b32 %s, %s, 10' % (s(sT1), s(sT1)))
    A('s_add_u32 %s, %s, %s' % (s(sT0), s(sT0), s(sT1)))
    A('v_add_u32 v40, %s, v1' % s(sT0))
    for w in range(4):
        o = 44 + 4 * w
        for i in range(4):
            A('v_cvt_pk_bf16_f32 v%d, v%d, v%d' % (o + i, O + 8 * w + i, O + 8 * w + 4 + i))
        A('ds_write_b128 v40, %s offset:%d' % (v(o, 4), 2048 * w))
    A('s_add_u32 %s, %s, %d' % (s(sItem), s(sItem), NS))
    A('s_add_u32 %s, %s, %d' % (s(sSrc), s(sSrc), NS * NH * QKV_BLK))
    A('s_add_u32 %s, %s, %d' % (s(sSrc2), s(sSrc2), NS * NH * KVM_BLK))
    A('s_min_u32 %s, %s, 63' % (s(sNeed), s(sItem)))
    A('s_cmp_lt_u32 %s, 64' % s(sItem))
    A('s_cselect_b32 %s, %s, 0x%x' % (s(sSrc), s(sSrc), OOB))
    pf_check()
    A('s_waitcnt lgkmcnt(0)')
    A('s_barrier')
    lap(A, opt, 4)
    out_gemm2(A, 8, fo, 1, 0, XF, 8, 44, 248, vP, 244, sDst, sDL, TOK, pf_loads())
    lap(A, opt, 5)
    A('s_add_u32 %s, %s, %d' % (s(sDst), s(sDst), NS * 32 * TOK))
    A('s_add_u32 %s, %s, %d' % (s(sDL), s(sDL), NS * 16 * 4096))
    A('s_add_u32 %s, %s, %s' % (s(sFlag), s(sFlag), s(sFlStep)))
    A('s_mov_b32 %s, %d' % (s(sFlStep), 2048 * NS))
    A('s_cmp_lt_u32 %s, 64' % s(sItem))
    A('s_cbranch_scc1 A2_loop')
    signal(A, sFlag, sOne, 42)
    role_end(A, opt, 2)


def gen_DE(A, opt):
    nt = ' nt' if opt.get('nt', True) else ''
    flags = opt.get('flags', True)
    A.label('DE_entry')
    vSrc, vXA0, vXA1, vP, vP8, vHW = 2, 3, 4, 5, 6, 7
    TOK = 36 * 1024
    sDL = 59
    L_H = 0
    L_XB = 8192
    lane_consts(A)
    stage_consts(A, vSrc, vXA0, vXA1)
    sF, sP = 48, 49
    A('s_cmp_ge_u32 %s, 36' % s(sID))
    A('s_cselect_b32 %s, 1, 0' % s(sP))
    A('s_mul_i32 %s, %s, 36' % (s(sT0), s(sP)))
    A('s_sub_u32 %s, %s, %s' % (s(sF), s(sID), s(sT0)))
    srd(A, SRD_A, K_WD, 4608 * ROWB)
    srd(A, SRD_B, K_WG, 576 * 9216)
    srd(A, SRD_C, K_WU, 576 * 9216)
    A('s_lshl_b32 %s, %s, 7' % (s(sT2), s(sF)))
    out_consts(A, sT2, 8, 9)
    pstore_consts(A, TOK, vP)
    A('s_mov_b32 %s, %d' % (s(sT1), 8 * 9216))
    A('v_mul_lo_u32 v23, v22, %s' % s(sT1))
    A('v_lshl_add_u32 v23, v21, 2, v23')
    A('s_lshl_b32 %s, %s, 8' % (s(sT0), s(sF)))
    A('s_lshl_b32 %s, s4, 6' % s(sT1))
    A('s_add_u32 %s, %s, %s' % (s(sT0), s(sT0), s(sT1)))
    A('v_add_u32 v10, %s, v23' % s(sT0))
    A('s_lshl_b32 %s, s4, 11' % s(sT0))
    A('s_add_u32 %s, %s, %d' % (s(sT0), s(sT0), L_H))
    A('v_add_u32 v%d, %s, v1' % (vHW, s(sT0)))
    A('s_waitcnt lgkmcnt(0)')
    hold_back(A, opt, 244)
    fd = lambda ks, j: wf4(9 * ks + j)
    fg = lambda ks, t: wf4(36 + 2 * ks + t)
    fu = lambda ks, t: wf4(72 + 2 * ks + t)
    st = Stream(A, 60)
    load_out(A, st, SRD_A, 8, 9, fd, 4, lambda ks: 112 + 40 * (ks % 3), nt)
    load_cols2(A, st, SRD_B, 10, 9216, fg, 18, lambda ks: 32 + 8 * (ks % 6), nt)
    load_cols2(A, st, SRD_C, 10, 9216, fu, 18, lambda ks: 32 + 8 * (ks % 6), nt)
    st.run()
    A('s_mov_b32 %s, 0' % s(sItem))
    A('s_mul_i32 %s, %s, %d' % (s(sSrc), s(sP), 32 * ROWB))
    A('s_add_u32 %s, %s, 0x%x' % (s(sSrc), s(sSrc), H2_OFF))
    A('s_mul_i32 %s, %s, %d' % (s(sDst), s(sP), 32 * TOK))
    A('s_lshl_b32 %s, %s, 10' % (s(sT0), s(sF)))
    A('s_add_u32 %s, %s, %s' % (s(sDst), s(sDst), s(sT0)))
    A('s_add_u32 %s, %s, 0x%x' % (s(sDst), s(sDst), P3_OFF))
    A('s_lshl_b32 %s, %s, 12' % (s(sDL), s(sID)))
    A('s_lshl_b32 %s, s4, 10' % s(sT0))
    A('s_add_u32 %s, %s, %s' % (s(sDL), s(sDL), s(sT0)))
    A('s_add_u32 %s, %s, 0x%x' % (s(sDL), s(sDL), P3L_OFF))
    A('s_mul_i32 %s, %s, 4608' % (s(sFlag), s(sP)))
    A('s_lshl_b32 %s, %s, 7' % (s(sT0), s(sF)))
    A('s_add_u32 %s, %s, %s' % (s(sFlag), s(sFlag), s(sT0)))
    A('s_lshl_b32 %s, s4, 2' % s(sT0))
    A('s_add_u32 %s, %s, %s' % (s(sFlag), s(sFlag), s(sT0)))
    sFlStep = 57
    A('s_add_u32 %s, %s, 0x%x' % (s(sFlag), s(sFlag), FLAG_OFF + F_DE + OOB))
    A('s_mov_b32 %s, 0x%x' % (s(sFlStep), (-OOB) & 0xffffffff))
    A('s_lshl_b32 %s, %s, 12' % (s(sFl2), s(sP)))
    A('s_lshl_b32 %s, s4, 10' % s(sT0))
    A('s_add_u32 %s, %s, %s' % (s(sFl2), s(sFl2), s(sT0)))
    A('s_add_u32 %s, %s, 0x%x' % (s(sFl2), s(sFl2), FLAG_OFF + F_C))
    A('s_mov_b32 %s, %d' % (s(sBuf), L_XB))
    A('v_add_u32 v%d, %d, v%d' % (vXA0, L_XB, vXA0))
    A('v_add_u32 v%d, %d, v%d' % (vXA1, L_XB, vXA1))
    A('s_mov_b32 %s, 1' % s(sNeed))
    sHave = 50
    A('s_mov_b32 %s, 0' % s(sHave))
    XF, ACC = 8, 24
    mark(A, opt, 96)
    A.label('DE_loop')
    A('s_cmp_lg_u32 %s, 0' % s(sHave))
    A('s_cbranch_scc1 DE_have')
    poll(A, sFl2, 8, sNeed, 8, flags, first=lambda: wave_signal(A, sFlag, sNeed, 10), sleep=1)
    lap(A, opt, 0)
    stage_issue(A, vSrc, sSrc, sBuf)
    A('s_waitcnt vmcnt(0)')
    A.label('DE_have')
    A('s_waitcnt vmcnt(9)')
    lap(A, opt, 1)
    A('s_barrier')
    lap(A, opt, 2)
    A('s_add_u32 %s, %s, 8192' % (s(sFl2), s(sFl2)))
    A('s_add_u32 %s, %s, %d' % (s(sSrc), s(sSrc), 64 * ROWB))
    A('s_cmp_lt_u32 %s, 31' % s(sItem))
    A('s_cselect_b32 %s, %s, 0x%x' % (s(sT1), s(sFl2), OOB))
    A('v_lshlrev_b32 v73, 3, v1')
    A('v_and_b32 v73, 0x380, v73')
    A('buffer_load_dword v72, v73, %s, %s offen sc1' % (WS, s(sT1)))

    def hook(ks):
        if ks != opt.get('de_hook', 7):
            return
        lap(A, opt, 3)
        A('s_waitcnt vmcnt(0)')
        lap(A, opt, 4)
        A('s_cmp_lg_u32 %s, 0' % s(sHave))
        A('s_cselect_b32 %s, %s, 0x%x' % (s(sT1), s(sFlag), OOB))
        wave_signal(A, sT1, sNeed, 73)
        A('s_xor_b32 %s, %s, %d' % (s(sBuf), s(sBuf), L_XB ^ (L_XB + XBUF)))
        A('s_mov_b32 %s, 0' % s(sHave))
        if flags:
            A('v_cmp_gt_u32 vcc, %s, v72' % s(sNeed))
            A('s_cbranch_vccnz DE_nopf')
            A('s_mov_b32 %s, 1' % s(sHave))
            stage_issue(A, vSrc, sSrc, sBuf)
            A.label('DE_nopf')

    def body(ks, f0, f1):
        for aa, f in enumerate((f0, f1)):
            for mt, fr in enumerate((fg, fu)):
                for t in range(2):
                    d = v(ACC + 4 * (4 * aa + 2 * mt + t), 4)
                    mfma(A, d, rg(fr(ks, t), 4), v(f, 4), '0' if ks == 0 else d)
    xloop(A, vXA0, vXA1, XF, body, hook)
    A('s_lshl_b32 %s, %s, 1' % (s(sT0), s(sBuf)))
    A('s_sub_u32 %s, %s, %d' % (s(sT0), s(sT0), 2 * L_XB + XBUF))
    A('v_add_u32 v%d, %s, v%d' % (vXA0, s(sT0), vXA0))
    A('v_add_u32 v%d, %s, v%d' % (vXA1, s(sT0), vXA1))
    for aa in range(2):
        G0, G1, U0, U1 = [ACC + 16 * aa + 4 * q for q in range(4)]
        for i in range(4):
            round_pair(A, G0 + i, G1 + i, 56 + i)
            round_pair(A, U0 + i, U1 + i, 60 + i)
        for i in range(4):
            A('v_mul_f32 v%d, v%d, v%d' % (G0 + i, G0 + i, U0 + i))
            A('v_mul_f32 v%d, v%d, v%d' % (G1 + i, G1 + i, U1 + i))
        for i in range(4):
            A('v_cvt_pk_bf16_f32 v%d, v%d, v%d' % (64 + 4 * aa + i, G0 + i, G1 + i))
        A('ds_write_b128 v%d, %s offset:%d' % (vHW, v(64 + 4 * aa, 4), 1024 * aa))
    A('s_waitcnt lgkmcnt(0)')
    A('s_barrier')
    lap(A, opt, 5)
    out_gemm(A, 4, fd, 1, L_H, XF, ACC, 60, vP, 68, sDst, sDL, TOK)
    lap(A, opt, 6)
    A('s_add_u32 %s, %s, 1' % (s(sItem), s(sItem)))
    A('s_add_u32 %s, %s, %d' % (s(sDst), s(sDst), 64 * TOK))
    A('s_add_u32 %s, %s, %d' % (s(sDL), s(sDL), 72 * 4096))
    A('s_add_u32 %s, %s, %s' % (s(sFlag), s(sFlag), s(sFlStep)))
    A('s_mov_b32 %s, 9216' % s(sFlStep))
    A('s_cmp_lt_u32 %s, 32' % s(sItem))
    A('s_cbranch_scc1 DE_loop')
    A('s_waitcnt vmcnt(0)')
    wave_signal(A, sFlag, sNeed, 10)
    role_end(A, opt, 3)


def wave_sum(A, x, t):
    for r in (8, 4, 2, 1):
        A('v_add_f32_dpp v%d, v%d, v%d row_ror:%d row_mask:0xf bank_mask:0xf' % (x, x, x, r))
    A('v_mov_b32 v%d, v%d' % (t, x))
    A('v_permlane16_swap_b32 v%d, v%d' % (x, t))
    A('v_add_f32 v%d, v%d, v%d' % (x, x, t))
    A('v_mov_b32 v%d, v%d' % (t, x))
    A('v_permlane32_swap_b32 v%d, v%d' % (x, t))
    A('v_add_f32 v%d, v%d, v%d' % (x, x, t))


def round1(A, x):
    A('v_cvt_pk_bf16_f32 v%d, v%d, v%d' % (x, x, x))
    A('v_lshlrev_b32 v%d, 16, v%d' % (x, x))


def ln_norm(A, X, n, Dv, T, total, tailmask=None):
    acc, mean, pk = T, T + 1, T + 2
    A('v_add_f32 v%d, v%d, v%d' % (acc, X, X + 1))
    for i in range(2, n):
        A('v_add_f32 v%d, v%d, v%d' % (acc, acc, X + i))
    total(acc, 0)
    A('v_mul_f32 v%d, 0x%x, v%d' % (mean, f2u(1.0 / 576), acc))
    for i in range(n):
        A('v_sub_f32 v%d, v%d, v%d' % (Dv + i, X + i, mean))
    order = list(range(n - 4, n)) + list(range(n - 4))
    A('v_mul_f32 v%d, v%d, v%d' % (acc, Dv + order[0], Dv + order[0]))
    for k, i in enumerate(order[1:]):
        if k == 3 and tailmask is not None:
            A('v_cndmask_b32 v%d, 0, v%d, %s' % (acc, acc, s(tailmask, 2)))
        A('v_fmac_f32 v%d, v%d, v%d' % (acc, Dv + i, Dv + i))
    total(acc, 1)
    round1(A, mean)
    for i in range(n):
        A('v_sub_f32 v%d, v%d, v%d' % (Dv + i, X + i, mean))
    A('v_mul_f32 v%d, 0x%x, v%d' % (acc, f2u(1.0 / 576), acc))
    round1(A, acc)
    A('v_add_f32 v%d, 0x%x, v%d' % (acc, f2u(1e-5), acc))
    round1(A, acc)
    A('v_sqrt_f32 v%d, v%d' % (acc, acc))
    round1(A, acc)
    A('v_rcp_f32 v%d, v%d' % (acc, acc))
    for i in range(0, n, 2):
        round_pair(A, Dv + i, Dv + i + 1, pk)
    for i in range(n):
        A('v_mul_f32 v%d, v%d, v%d' % (Dv + i, Dv + i, acc))
    for i in range(0, n, 2):
        round_pair(A, Dv + i, Dv + i + 1, pk)


def ln_fin(A, Dv, n, SC, SH, OUTP, pk):
    for i in range(n):
        A('v_mul_f32 v%d, v%d, v%d' % (Dv + i, Dv + i, SC + i))
    for i in range(0, n, 2):
        round_pair(A, Dv + i, Dv + i + 1, pk)
    for i in range(n):
        A('v_add_f32 v%d, v%d, v%d' % (Dv + i, Dv + i, SH + i))
    for i in range(0, n, 2):
        A('v_cvt_pk_bf16_f32 v%d, v%d, v%d' % (OUTP + i // 2, Dv + i, Dv + i + 1))


def ln_mod(A, X, n, SC, SH, OUTP, T, total, tailmask=None):
    ln_norm(A, X, n, T + 4, T, total, tailmask)
    ln_fin(A, T + 4, n, SC, SH, OUTP, T + 2)


NCF = 40


def gen_CF(A, opt):
    flags = opt.get('flags', True)
    ncf = opt.get('ncf', NCF)
    A.label('CF_entry')
    vA, vB, vC, vC2 = 2, 3, 4, 5
    SEL, GA, CB, SB, GB, X, XR, D, T, LD = 12, 28, 40, 52, 64, 76, 88, 96, 108, 128
    TOK2, TOK3 = 16 * 1024, 36 * 1024
    vS, vS2 = 124, 125
    lane_consts(A)
    srd(A, SRD_A, K_X, 2048 * ROWB)
    srd(A, SRD_B, K_OUT, 2048 * ROWB)
    A('v_and_b32 v23, 1, v22')
    A('v_lshlrev_b32 v24, 10, v23')
    A('v_lshrrev_b32 v25, 1, v22')
    A('v_lshl_add_u32 v25, v25, 4, v21')
    A('v_lshl_add_u32 v%d, v25, 4, v24' % vA)
    A('v_lshlrev_b32 v26, 9, v23')
    A('v_lshl_add_u32 v%d, v25, 4, v26' % vS)
    A('v_lshlrev_b32 v26, 12, v23')
    A('v_lshl_add_u32 v26, v21, 9, v26')
    A('v_mov_b32 v24, 0x%x' % OOB)
    A('v_cmp_gt_u32 vcc, 8, v20')
    A('v_cndmask_b32 v%d, v24, v%d, vcc' % (vS2, vS))
    A('v_cmp_gt_u32 %s, 8, v25' % s(sMASK, 2))
    A('v_cndmask_b32 v%d, v24, v26, %s' % (vB, s(sMASK, 2)))
    A('v_lshlrev_b32 v25, 4, v25')
    A('v_lshl_add_u32 v%d, v23, 3, v25' % vC)
    A('v_cndmask_b32 v%d, v24, v%d, %s' % (vC2, vC, s(sMASK, 2)))
    A('v_and_b32 v23, 16, v1')
    A('v_mov_b32 v24, 0x3f80')
    A('v_lshlrev_b32 v23, v23, v24')
    A('v_lshrrev_b32 v24, 1, v21')
    A('v_lshrrev_b32 v25, 1, v22')
    A('v_lshlrev_b32 v25, 2, v25')
    A('v_xor_b32 v24, v24, v25')
    for q in range(4):
        A('v_cmp_eq_u32 vcc, %d, v24' % q)
        A('v_cndmask_b32 v%d, 0, v23, vcc' % (SEL + q))
    dbg_wait(A, D_RDY, NAUX, 23, sT0, sSpin)
    A('s_mov_b32 %s, 1' % s(sNeed))
    for hh in range(2):
        A('s_mov_b32 %s, 0x%x' % (s(sT2), FLAG_OFF + F_MOD + 54 * 128 * hh))
        poll(A, sT2, 54, sNeed, 24, flags)
    A('v_lshlrev_b32 v23, 1, v%d' % vC)
    A('v_lshlrev_b32 v24, 1, v%d' % vC2)
    for reg, idx in ((GA, 2), (SB, 3), (CB, 4), (GB, 5)):
        A('s_mov_b32 %s, 0x%x' % (s(sT0), MOD_OFF + idx * 2304))
        for c in range(3):
            A('buffer_load_dwordx4 %s, v%d, %s, %s offen offset:%d sc1' % (v(reg + 4 * c, 4), 24 if c == 2 else 23, WS, s(sT0), 1024 * c))
    A('s_waitcnt vmcnt(0) lgkmcnt(0)')
    for i in range(12):
        A('v_add_f32 v%d, 1.0, v%d' % (CB + i, CB + i))
    for i in range(0, 12, 2):
        round_pair(A, CB + i, CB + i + 1, 23)
    sRow, sSeg = 48, 49
    A('s_mul_i32 %s, s4, %d' % (s(sItem), ncf))
    A('s_add_u32 %s, %s, %s' % (s(sItem), s(sItem), s(sID)))
    sPrev, XO = 50, 16
    A('s_mov_b32 %s, -1' % s(sPrev))

    def reduce(np_, tok, off, offl, sit):
        A('s_mul_i32 %s, %s, %d' % (s(sSrc), s(sit), tok))
        A('s_add_u32 %s, %s, 0x%x' % (s(sSrc), s(sSrc), off))
        A('s_mul_i32 %s, %s, %d' % (s(sSrc2), s(sSeg), np_ * 4096))
        A('s_and_b32 %s, %s, 31' % (s(sT0), s(sit)))
        A('s_lshl_b32 %s, %s, 4' % (s(sT0), s(sT0)))
        A('s_add_u32 %s, %s, %s' % (s(sSrc2), s(sSrc2), s(sT0)))
        A('s_add_u32 %s, %s, 0x%x' % (s(sSrc2), s(sSrc2), offl))
        n = 3 * np_ // 2
        regs = 30
        issued = 0

        def issue(k):
            L, c = divmod(k, 3)
            if c == 0 and L and L % 2 == 0:
                A('s_add_u32 %s, %s, 4096' % (s(sSrc), s(sSrc)))
            if c == 2:
                if L:
                    A('s_add_u32 %s, %s, 8192' % (s(sSrc2), s(sSrc2)))
                A('buffer_load_dwordx4 %s, v%d, %s, %s offen sc1' % (v(LD + 4 * (k % regs), 4), vB, WS, s(sSrc2)))
            else:
                A('buffer_load_dwordx4 %s, v%d, %s, %s offen offset:%d sc1' % (
                    v(LD + 4 * (k % regs), 4), vA, WS, s(sSrc), 512 * c + 2048 * (L & 1)))
        while issued < min(n, regs):
            issue(issued)
            issued += 1
        for k in range(n):
            A('s_waitcnt vmcnt(%d)' % (issued - 1 - k))
            d = v(D + 4 * (k % 3), 4)
            mfma(A, d, v(SEL, 4), v(LD + 4 * (k % regs), 4), '0' if k < 3 else d)
            if issued < n:
                issue(issued)
                issued += 1
        for i in range(0, 12, 2):
            round_pair(A, D + i, D + i + 1, T)

    def gate_add(G, XR):
        for i in range(12):
            A('v_mul_f32 v%d, v%d, v%d' % (D + i, D + i, G + i))
        for i in range(0, 12, 2):
            round_pair(A, D + i, D + i + 1, T)
        for i in range(12):
            A('v_add_f32 v%d, v%d, v%d' % (X + i, X + i, D + i))
        for i in range(0, 12, 2):
            round_pair(A, X + i, X + i + 1, XR + i // 2)

    def total(reg, which):
        wave_sum(A, reg, 10)

    def unpack(src):
        for i in range(6):
            A('v_lshlrev_b32 v%d, 16, v%d' % (X + 2 * i, src + i))
            A('v_and_b32 v%d, %s, v%d' % (X + 2 * i + 1, s(sHI), src + i))

    def row_store(R, srdq, soff, sc):
        A('v_mov_b64 %s, %s' % (v(R + 6, 2), v(R + 4, 2)))
        A('v_permlane16_swap_b32 v%d, v%d' % (R, R + 2))
        A('v_permlane16_swap_b32 v%d, v%d' % (R + 1, R + 3))
        A('v_permlane16_swap_b32 v%d, v%d' % (R + 4, R + 6))
        A('v_permlane16_swap_b32 v%d, v%d' % (R + 5, R + 7))
        A('buffer_store_dwordx4 %s, v%d, %s, %s offen%s' % (v(R, 4), vS, srdq, s(soff), sc))
        A('buffer_store_dwordx4 %s, v%d, %s, %s offen offset:1024%s' % (v(R + 4, 4), vS2, srdq, s(soff), sc))

    def need_flag(sit, shift, base):
        A('s_lshr_b32 %s, %s, 5' % (s(sSeg), s(sit)))
        A('s_mul_i32 %s, %s, %d' % (s(sFl2), s(sSeg), shift))
        A('s_add_u32 %s, %s, 0x%x' % (s(sFl2), s(sFl2), FLAG_OFF + base))

    A('s_mov_b32 %s, 1' % s(sNeed))
    mark(A, opt, 96)
    A.label('CF_loop')
    A('s_cmp_ge_u32 %s, 2048' % s(sItem))
    A('s_cbranch_scc1 CF_skipC')
    A('s_mul_i32 %s, %s, %d' % (s(sRow), s(sItem), ROWB))
    for c in range(3):
        A('buffer_load_dwordx2 %s, v%d, %s, %s offen offset:%d' % (v(XR + 2 * c, 2), vC2 if c == 2 else vC, s(SRD_A, 4), s(sRow), 512 * c))
    need_flag(sItem, 2048, F_A2)
    A('s_waitcnt vmcnt(0)')
    unpack(XR)
    poll(A, sFl2, 16, sNeed, 10, flags, sleep=opt.get('cf_sleep', 4))
    lap(A, opt, 0)
    reduce(16, TOK2, P2_OFF, P2L_OFF, sItem)
    lap(A, opt, 1)
    gate_add(GA, XR)
    ln_mod(A, X, 12, CB, SB, D, T, total, tailmask=sMASK)
    A('s_add_u32 %s, %s, 0x%x' % (s(sT0), s(sRow), H2_OFF))
    row_store(D, WS, sT0, ' sc1')
    A('s_lshl_b32 %s, %s, 7' % (s(sFlag), s(sItem)))
    A('s_add_u32 %s, %s, 0x%x' % (s(sFlag), s(sFlag), FLAG_OFF + F_C))
    A('v_mov_b32 v10, 1')
    lap(A, opt, 2)
    A('s_waitcnt vmcnt(0)')
    lap(A, opt, 3)
    A('s_mov_b64 exec, 1')
    A('buffer_store_dword v10, off, %s, %s sc1' % (WS, s(sFlag)))
    A('s_mov_b64 exec, -1')
    A.label('CF_skipC')
    A('s_cmp_ge_u32 %s, 2048' % s(sPrev))
    A('s_cbranch_scc1 CF_skipF')
    need_flag(sPrev, 4608, F_DE)
    unpack(XO)
    poll(A, sFl2, 36, sNeed, 6, flags, sleep=opt.get('cf_sleep', 4), wide=True)
    lap(A, opt, 4)
    reduce(36, TOK3, P3_OFF, P3L_OFF, sPrev)
    lap(A, opt, 5)
    gate_add(GB, XO)
    A('s_mul_i32 %s, %s, %d' % (s(sRow), s(sPrev), ROWB))
    row_store(XO, s(SRD_B, 4), sRow, '')
    lap(A, opt, 6)
    A.label('CF_skipF')
    for i in range(0, 6, 2):
        A('v_mov_b64 %s, %s' % (v(XO + i, 2), v(XR + i, 2)))
    A('s_mov_b32 %s, %s' % (s(sPrev), s(sItem)))
    A('s_add_u32 %s, %s, %d' % (s(sItem), s(sItem), 4 * ncf))
    A('s_cmp_lt_u32 %s, 2048' % s(sPrev))
    A('s_cbranch_scc1 CF_loop')
    role_end(A, opt, 0)


NAUX = 160
D_RDY, D_CNT = 64, 192


def dbg_arrive(A, off, vt):
    A('s_waitcnt vmcnt(0)')
    A('s_barrier')
    l = A.newlabel('noarr')
    A('s_cmp_lg_u32 s4, 0')
    A('s_cbranch_scc1 %s' % l)
    A('v_mov_b32 v%d, 1' % vt)
    A('s_mov_b64 exec, 1')
    A('buffer_atomic_add v%d, off, %s, 0 offset:%d' % (vt, s(SRD_DBG, 4), off))
    A('s_mov_b64 exec, -1')
    A.label(l)


def dbg_wait(A, off, n, vt, st, sspin, sleep=4, bar=True):
    l0, l1 = A.newlabel('dw'), A.newlabel('dwok')
    A('s_cmp_lg_u32 s4, 0')
    A('s_cbranch_scc1 %s' % l1)
    A.label(l0)
    A('buffer_load_dword v%d, off, %s, 0 offset:%d sc1' % (vt, s(SRD_DBG, 4), off))
    A('s_waitcnt vmcnt(0)')
    A('v_readfirstlane_b32 %s, v%d' % (s(st), vt))
    A('s_cmp_ge_u32 %s, %d' % (s(st), n))
    A('s_cbranch_scc1 %s' % l1)
    A('s_sleep %d' % sleep)
    A('s_sub_u32 %s, %s, 1' % (s(sspin), s(sspin)))
    A('s_cmp_gt_i32 %s, 0' % s(sspin))
    A('s_cbranch_scc1 %s' % l0)
    A.label(l1)
    if bar:
        A('s_barrier')


def gen_aux(A, opt):
    A.label('AUX_entry')
    for i in range(8):
        tick(A, opt, i)
    srd(A, SRD_A, K_WMOD, 576 * 6912)
    srd(A, SRD_B, K_C, 1152)
    srd(A, SRD_C, K_X, 2048 * ROWB)
    A('s_mov_b32 %s, 0xffff0000' % s(sHI))
    A('s_mov_b32 %s, 400000' % s(sSpin))
    A('s_mov_b32 %s, 1' % s(sNeed))
    A('v_lshrrev_b32 v1, 2, v0')
    A('v_and_b32 v2, 3, v0')
    A('v_mul_u32_u24 v3, 6912, v1')
    A('v_lshl_add_u32 v3, v2, 4, v3')
    A('s_lshl_b32 %s, %s, 6' % (s(sT1), s(sID)))
    A('s_cmp_lt_u32 %s, 108' % s(sID))
    A('s_cselect_b32 %s, %s, 0x%x' % (s(sT1), s(sT1), OOB))
    A('v_add_u32 v3, %s, v3' % s(sT1))
    A('v_lshlrev_b32 v4, 1, v1')
    A('v_and_b32 v5, 63, v0')
    A('v_lshlrev_b32 v6, 3, v5')
    A('v_mov_b32 v8, 0x%x' % OOB)
    A('v_cmp_gt_u32 %s, 16, v5' % s(sMASK, 2))
    A('v_cndmask_b32 v7, v8, v6, %s' % s(sMASK, 2))
    A('s_lshl_b32 %s, %s, 2' % (s(sSrc), s(sID)))
    A('s_add_u32 %s, %s, s4' % (s(sSrc), s(sSrc)))
    A('s_mul_i32 %s, %s, %d' % (s(sSrc), s(sSrc), 4 * ROWB))
    A('s_cmp_lt_u32 %s, 128' % s(sID))
    A('s_cselect_b32 %s, %s, 0x%x' % (s(sSrc), s(sSrc), OOB))
    A('s_waitcnt lgkmcnt(0)')
    C0, W0, RAW = 10, 20, 100
    for i in range(4):
        A('v_mov_b32 v%d, 0' % (60 + i))
    A('v_lshlrev_b32 v9, 4, v0')
    A('s_mul_i32 %s, %s, 4608' % (s(sT0), s(sID)))
    A('s_add_u32 %s, %s, 0x%x' % (s(sT0), s(sT0), FLAG_OFF))
    A('buffer_store_dwordx4 v[60:63], v9, %s, %s offen sc1' % (WS, s(sT0)))
    A('v_cmp_gt_u32 vcc, 32, v0')
    A('v_cndmask_b32 v9, v8, v9, vcc')
    A('s_add_u32 %s, %s, 4096' % (s(sT0), s(sT0)))
    A('buffer_store_dwordx4 v[60:63], v9, %s, %s offen sc1' % (WS, s(sT0)))
    for i in range(9):
        A('buffer_load_ushort v%d, v4, %s, 0 offen offset:%d' % (C0 + i, s(SRD_B, 4), 128 * i))
    for i in range(9):
        A('s_mov_b32 %s, %d' % (s(sT0), 64 * 6912 * i))
        A('buffer_load_dwordx4 %s, v3, %s, %s offen nt' % (v(W0 + 4 * i, 4), s(SRD_A, 4), s(sT0)))
    for r in range(4):
        for q in range(3):
            if r == 3 and q == 2:
                A('s_add_u32 %s, %s, 1024' % (s(sT0), s(sSrc)))
            A('buffer_load_dwordx2 %s, v%d, %s, %s offen offset:%d' % (
                v(RAW + 6 * r + 2 * q, 2), 7 if q == 2 else 6, s(SRD_C, 4), s(sT0 if (r, q) == (3, 2) else sSrc),
                ROWB * r + (0 if (r, q) == (3, 2) else 512 * q)))
    A('s_waitcnt vmcnt(30)')
    tick(A, opt, 1)
    A('s_barrier')
    A('v_mov_b32 v66, 1')
    A('s_cmp_eq_u32 s4, 3')
    A('s_cselect_b32 %s, 0, 0x1000' % s(sT0))
    A('s_mov_b64 exec, 1')
    A('buffer_atomic_add v66, off, %s, %s offset:%d sc0' % (s(SRD_DBG, 4), s(sT0), D_CNT))
    A('s_mov_b64 exec, -1')
    A('s_cbranch_scc0 AUX_arrived')
    A('s_waitcnt vmcnt(0)')
    A('v_readfirstlane_b32 %s, v66' % s(sT0))
    A('s_cmp_lg_u32 %s, %d' % (s(sT0), NAUX - 1))
    A('s_cbranch_scc1 AUX_arrived')
    A('v_mov_b32 v66, %d' % NAUX)
    A('s_mov_b64 exec, 1')
    A('buffer_store_dword v66, off, %s, 0 offset:%d sc1' % (s(SRD_DBG, 4), D_RDY))
    A('s_mov_b64 exec, -1')
    A.label('AUX_arrived')
    A('s_cmp_ge_u32 %s, 108' % s(sID))
    A('s_cbranch_scc1 AUX_nomod')
    A('s_waitcnt vmcnt(22)')
    for i in range(9):
        x = C0 + i
        A('v_lshlrev_b32 v%d, 16, v%d' % (x, x))
        A('v_mul_f32 v64, 0x%x, v%d' % (f2u(-math.log2(math.e)), x))
        A('v_exp_f32 v64, v64')
        A('v_add_f32 v64, 1.0, v64')
        A('v_rcp_f32 v64, v64')
        A('v_mul_f32 v%d, v%d, v64' % (x, x))
        round1(A, x)
    AC = 68
    for j in range(8):
        A('v_mov_b32 v%d, 0' % (AC + j))
    for i in range(9):
        A('s_waitcnt vmcnt(%d)' % (21 - i))
        for q in range(4):
            w = W0 + 4 * i + q
            A('v_lshlrev_b32 v64, 16, v%d' % w)
            A('v_and_b32 v65, %s, v%d' % (s(sHI), w))
            A('v_fmac_f32 v%d, v64, v%d' % (AC + 2 * q, C0 + i))
            A('v_fmac_f32 v%d, v65, v%d' % (AC + 2 * q + 1, C0 + i))
    tick(A, opt, 2)
    A('v_mul_u32_u24 v9, 144, v1')
    A('v_lshl_add_u32 v9, v2, 5, v9')
    A('ds_write_b128 v9, %s' % v(AC, 4))
    A('ds_write_b128 v9, %s offset:16' % v(AC + 4, 4))
    A('s_waitcnt lgkmcnt(0)')
    A('s_barrier')
    A('s_cmp_lg_u32 s4, 0')
    A('s_cbranch_scc1 AUX_modst')
    A('v_lshrrev_b32 v9, 5, v0')
    A('v_mul_u32_u24 v9, %d, v9' % (32 * 144))
    A('v_and_b32 v64, 31, v0')
    A('v_lshl_add_u32 v9, v64, 2, v9')
    for r in range(32):
        A('ds_read_b32 v%d, v9 offset:%d' % (W0 + r, 144 * r))
    A('s_waitcnt lgkmcnt(0)')
    for stp in (16, 8, 4, 2, 1):
        for r in range(stp):
            A('v_add_f32 v%d, v%d, v%d' % (W0 + r, W0 + r, W0 + r + stp))
    A('v_mov_b32 v%d, v%d' % (W0 + 1, W0))
    A('v_permlane32_swap_b32 v%d, v%d' % (W0, W0 + 1))
    A('v_add_f32 v%d, v%d, v%d' % (W0, W0, W0 + 1))
    round1(A, W0)
    A('v_lshlrev_b32 v64, 2, v64')
    A('s_lshl_b32 %s, %s, 7' % (s(sT0), s(sID)))
    A('s_add_u32 %s, %s, 0x%x' % (s(sT0), s(sT0), MOD_OFF))
    A('s_mov_b32 exec_hi, 0')
    A('buffer_store_dword v%d, v64, %s, %s offen sc1' % (W0, WS, s(sT0)))
    A('s_mov_b64 exec, -1')
    dbg_wait(A, D_RDY, NAUX, 65, sT1, sSpin, 1, bar=False)
    tick(A, opt, 3)
    A('s_lshl_b32 %s, %s, 7' % (s(sT0), s(sID)))
    A('s_add_u32 %s, %s, 0x%x' % (s(sT0), s(sT0), FLAG_OFF + F_MOD))
    wave_signal(A, sT0, sNeed, 65)
    A.label('AUX_modst')
    A.label('AUX_nomod')
    A('s_cmp_ge_u32 %s, 128' % s(sID))
    A('s_cbranch_scc1 AUX_noln')
    X, SC, SH, T, DV = 10, 24, 36, 48, 128

    def total(reg, which):
        wave_sum(A, reg, 9)
    A('s_waitcnt vmcnt(1)')
    for r in range(4):
        for i in range(6):
            A('v_lshlrev_b32 v%d, 16, v%d' % (X + 2 * i, RAW + 6 * r + i))
            A('v_and_b32 v%d, %s, v%d' % (X + 2 * i + 1, s(sHI), RAW + 6 * r + i))
        ln_norm(A, X, 12, DV + 12 * r, T, total, sMASK)
    tick(A, opt, 4)
    dbg_wait(A, D_RDY, NAUX, 65, sT1, sSpin, 1)
    tick(A, opt, 5)
    A('v_lshlrev_b32 v1, 4, v5')
    A('s_mov_b32 %s, 0x%x' % (s(sT2), FLAG_OFF + F_MOD))
    poll(A, sT2, 36, sNeed, 64, True, sleep=1)
    tick(A, opt, 6)
    A('s_mov_b32 %s, 0x%x' % (s(sT0), MOD_OFF))
    A('s_mov_b32 %s, 0x%x' % (s(sT1), MOD_OFF + 2304))
    A('v_lshlrev_b32 v9, 1, v7')
    for q in range(3):
        A('buffer_load_dwordx4 %s, v%d, %s, %s offen offset:%d sc1' % (v(SH + 4 * q, 4), 9 if q == 2 else 1, WS, s(sT0), 1024 * q))
        A('buffer_load_dwordx4 %s, v%d, %s, %s offen offset:%d sc1' % (v(SC + 4 * q, 4), 9 if q == 2 else 1, WS, s(sT1), 1024 * q))
    A('s_waitcnt vmcnt(0)')
    for i in range(12):
        A('v_add_f32 v%d, 1.0, v%d' % (SC + i, SC + i))
    for i in range(0, 12, 2):
        round_pair(A, SC + i, SC + i + 1, 9)
    A('s_add_u32 %s, %s, 0x%x' % (s(sSrc), s(sSrc), H1_OFF))
    for r in range(4):
        ln_fin(A, DV + 12 * r, 12, SC, SH, RAW + 6 * r, 9)
        for q in range(3):
            if r == 3 and q == 2:
                A('s_add_u32 %s, %s, 1024' % (s(sSrc), s(sSrc)))
            A('buffer_store_dwordx2 %s, v%d, %s, %s offen offset:%d sc1' % (
                v(RAW + 6 * r + 2 * q, 2), 7 if q == 2 else 6, WS, s(sSrc), ROWB * r + (0 if (r, q) == (3, 2) else 512 * q)))
    A('s_lshl_b32 %s, %s, 7' % (s(sT2), s(sID)))
    A('s_add_u32 %s, %s, 0x%x' % (s(sT2), s(sT2), FLAG_OFF + F_H1))
    signal(A, sT2, sNeed, 9)
    tick(A, opt, 7)
    A.label('AUX_noln')
```
